```python
import torch

def _softmax(x, axis=-1):
    return torch.softmax(x, dim=axis)

def _gelu(x):
    return torch.nn.functional.gelu(x, approximate='tanh')

def _silu(x):
    return torch.nn.functional.silu(x)

def _sigmoid(x):
    return torch.sigmoid(x)

def _layernorm(x, axis=-1, eps=1e-05):
    m = x.mean(dim=axis, keepdim=True)
    v = x.var(dim=axis, keepdim=True, unbiased=False)
    return (x - m) / torch.sqrt(v + eps)

def _scatter_add(tgt, idx, src, axis=0):
    return tgt.clone().index_add_(axis, idx, src)

def _segment_sum(src, seg, n):
    out = torch.zeros((n,) + src.shape[1:], dtype=src.dtype)
    return out.index_add_(0, seg, src)

def _pad(x, pw):
    flat = tuple((v for pair in reversed(pw) for v in pair))
    return torch.nn.functional.pad(x, flat)
kernel_name = 'adaLN_cond__sliding_block_cached__dense_activation_relu__prompt'

def setup_inputs():

    _w = lambda a: (lambda t: t.to(torch.bfloat16) if t.is_floating_point() else t)(torch.as_tensor(a))

    def _A_setup():
        B, Sq, D = (1, 2048, 1024)
        Hq, Hkv, Sk, Dh = (32, 4, 2048, 128)
        assert Hq % Hkv == 0, (Hq, Hkv)
        return {'x': _w((lambda *s: torch.randn(*s, dtype=torch.bfloat16) * 0.05)(B, Sq, D)), 'k_cache': _w((lambda *s: torch.randn(*s, dtype=torch.bfloat16) * 3.2)(B, Hkv, Sk, Dh)), 'v_cache': _w((lambda *s: torch.randn(*s, dtype=torch.bfloat16) * 0.4)(B, Hkv, Sk, Dh)), 'wq': _w((lambda *s: torch.randn(*s, dtype=torch.bfloat16) * 3.2)(D, Hq * Dh) * D ** (-0.5)), 'wo': _w((lambda *s: torch.randn(*s, dtype=torch.bfloat16) * 0.4)(Hq * Dh, D) * (Hq * Dh) ** (-0.5))}
    _A_in = _A_setup()

    def _B_setup():
        B, S, D, Dff = (1, 2048, 1024, 3584)
        return {'x': _w((lambda *s: torch.randn(*s, dtype=torch.bfloat16) * 0.05)(B, S, D)), 'w1': _w((lambda *s: torch.randn(*s, dtype=torch.bfloat16) * 0.05)(D, Dff)), 'w2': _w((lambda *s: torch.randn(*s, dtype=torch.bfloat16) * 0.05)(Dff, D))}
    _B_in = _B_setup()
    return {'A_x': _A_in['x'], 'A_k_cache': _A_in['k_cache'], 'A_v_cache': _A_in['v_cache'], 'A_wq': _A_in['wq'], 'A_wo': _A_in['wo'], 'B_x': _B_in['x'], 'B_w1': _B_in['w1'], 'B_w2': _B_in['w2'], 'c': _w((lambda *s: torch.randn(*s, dtype=torch.bfloat16) * 0.1)(1, 1024) * 8.0), 'w_mod': _w((lambda *s: torch.randn(*s, dtype=torch.bfloat16) * 0.1)(1024, 6 * 1024) * 1024 ** (-0.5) * 8.0)}

def reference(A_x, A_k_cache, A_v_cache, A_wq, A_wo, B_x, B_w1, B_w2, c, w_mod):

    def _A_ref(x, k_cache, v_cache, wq, wo):
        B, Sq, D = x.shape
        Hq, Dh = (32, 128)
        Hkv, Sk = (k_cache.shape[1], k_cache.shape[2])
        W = min(4096, max(256, Sk // 4))
        rep = Hq // Hkv
        q = (lambda x, *d: x.permute(*d))((x @ wq).reshape(B, Sq, Hq, Dh), 0, 2, 1, 3)
        k = (lambda x, n, axis: torch.repeat_interleave(x, n, dim=axis))(k_cache[:, :, Sk - W:, :], rep, axis=1)
        v = (lambda x, n, axis: torch.repeat_interleave(x, n, dim=axis))(v_cache[:, :, Sk - W:, :], rep, axis=1)
        scores = torch.einsum('bhqd,bhkd->bhqk', q, k) * Dh ** (-0.5)
        p = _softmax(scores, axis=-1)
        o = torch.einsum('bhqk,bhkd->bhqd', p, v)
        return (lambda x, *d: x.permute(*d))(o, 0, 2, 1, 3).reshape(B, Sq, Hq * Dh) @ wo

    def _B_ref(x, w1, w2):
        h = torch.einsum('bsd,df->bsf', x, w1)
        zero = torch.zeros_like(h)
        h = torch.maximum(h, zero)
        return torch.einsum('bsf,fd->bsd', h, w2)
    x = A_x
    mod = (_silu(c) @ w_mod).reshape(c.shape[0], 6, 1, -1)
    sa, ca, ga, sb, cb, gb = (mod[:, 0].clone(), mod[:, 1].clone(), mod[:, 2].clone(), mod[:, 3].clone(), mod[:, 4].clone(), mod[:, 5].clone())
    h = _layernorm(x, axis=-1) * (1 + ca) + sa
    x = x + ga * _A_ref(h, A_k_cache, A_v_cache, A_wq, A_wo)
    h = _layernorm(x, axis=-1) * (1 + cb) + sb
    x = x + gb * _B_ref(h, B_w1, B_w2)
    return x
```

```python
import re
class Asm:
    def __init__(self):
        self.lines = []
        self.uid = 0
    def __call__(self, s=""):
        for l in s.split("\n"):
            l = l.strip()
            if not l: continue
            m = re.search(r"offset:(\d+)", l)
            if m:
                v = int(m.group(1))
                if l.startswith("buffer_"): assert v < 4096, l
                if l.startswith("ds_"): assert v < 65536, l
                if l.startswith("global_"): assert v < 4096, l
            if l.endswith(":") or l.startswith("."):
                self.lines.append(l)
            else:
                self.lines.append("    " + l)
    def raw(self, s): self.lines.append(s)
    def label(self, base):
        self.uid += 1
        return "L_%s_%d" % (base, self.uid)
    def text(self): return "\n".join(self.lines) + "\n"

HEADER = """; Kernarg layout (104 bytes, ptrs only, base s[0:1]):
"""

def kernel_begin(a, name):
    a.raw(".globl %s" % name)
    a.raw(".p2align 8")
    a.raw(".type %s,@function" % name)
    a.raw("%s:" % name)

def kernel_desc(name, vgpr, sgpr=102, accum=None, ids="x"):
    if accum is None: accum = min(256, (vgpr + 3)//4*4)
    s = ".amdhsa_kernel %s\n" % name
    s += "  .amdhsa_next_free_vgpr %d\n" % vgpr
    s += "  .amdhsa_next_free_sgpr %d\n" % sgpr
    s += "  .amdhsa_accum_offset %d\n" % accum
    s += "  .amdhsa_group_segment_fixed_size 0\n"
    s += "  .amdhsa_kernarg_size 104\n"
    s += "  .amdhsa_user_sgpr_count 2\n"
    s += "  .amdhsa_user_sgpr_kernarg_segment_ptr 1\n"
    s += "  .amdhsa_system_sgpr_workgroup_id_x 1\n"
    if "y" in ids: s += "  .amdhsa_system_sgpr_workgroup_id_y 1\n"
    if "z" in ids: s += "  .amdhsa_system_sgpr_workgroup_id_z 1\n"
    s += "  .amdhsa_float_denorm_mode_32 3\n"
    s += ".end_amdhsa_kernel\n"
    return s

def assemble_file(launches, bodies, descs, extra_head=""):
    s = HEADER + extra_head
    for k, g, b, lds in launches:
        s += "; @launch kernel=%s grid=(%d,%d,%d) block=(%d,%d,%d) lds=%d\n" % (k, g[0], g[1], g[2], b[0], b[1], b[2], lds)
    s += '.amdgcn_target "amdgcn-amd-amdhsa--gfx950"\n.text\n'
    for b in bodies: s += b
    s += "L_code_end:\n    s_endpgm\n"
    s += '.section .rodata,"a"\n'
    for d in descs:
        s += ".p2align 6\n" + d
    return s
```

```python
from asmlib import *
from gen_small import *
from gen_gemm import lane_common, tr_lane_terms

KRING = 65536
VRING = 65536+49152
BIAS = 30.0

def gen_attn(name="attn_kernel", stamp=None, fallback=True, dbg=""):
    a = Asm(); L = name
    kernel_begin(a, name)
    a(f"""
    s_cmp_ge_u32 s2, 256
    s_cbranch_scc1 L_{L}_done
    s_load_dwordx4 s[4:7], s[0:1], 8
    s_load_dwordx2 s[8:9], s[0:1], 24      ; wq
    s_load_dwordx2 s[10:11], s[0:1], 96    ; ws
    """)
    if stamp is not None: stamp_begin(a)
    lane_common(a)
    a("""
    s_and_b32 s21, s2, 7
    s_lshr_b32 s22, s2, 3
    s_and_b32 s23, s21, 3
    s_lshl_b32 s24, s23, 3
    s_and_b32 s25, s22, 7
    s_add_u32 s24, s24, s25                ; head
    s_lshr_b32 s25, s21, 2
    s_lshl_b32 s25, s25, 2
    s_lshr_b32 s26, s22, 3
    s_add_u32 s25, s25, s26
    s_lshl_b32 s25, s25, 3
    s_lshl_b32 s26, s20, 1
    s_add_u32 s25, s25, s26
    v_add_u32 v3, 0x10000, v2
    v_lshrrev_b32 v32, 4, v1               ; L>>4
    v_and_b32 v33, 15, v1                  ; p
    v_lshlrev_b32 v34, 2, v32
    v_xor_b32 v34, v33, v34                ; p ^ ((L>>4)<<2)
    v_lshlrev_b32 v34, 4, v34
    v_lshl_add_u32 v4, v32, 13, v34        ; W: row*8192 + c*16
    v_add_u32 v5, 31744, v4                ; + 4*8192 - 1024
    v_add_u32 v6, 63488, v4
    v_add_u32 v7, 95232, v4
    v_lshl_add_u32 v16, v32, 8, v34        ; V: row*256 + c*16
    """)
    for i in range(4):
        a(f"""
        v_add_u32 v35, {4*i}, v32
        v_xor_b32 v35, v33, v35
        v_lshlrev_b32 v35, 4, v35
        v_lshl_add_u32 v{12+i}, v32, 8, v35
        """)
    tr_lane_terms(a, 32, 33, 34, 35)
    a("""
    v_lshrrev_b32 v35, 1, v34              ; sw>>1
    v_lshl_add_u32 v35, v33, 1, v35        ; c0 = 2*(g&1) + (sw>>1)
    v_bfe_u32 v36, v1, 2, 2                ; i>>2
    v_lshlrev_b32 v37, 2, v36              ; swz = (i>>2)<<2
    v_and_b32 v34, 1, v34
    v_lshlrev_b32 v34, 3, v34              ; half8*8
    v_lshl_add_u32 v38, v32, 8, v34
    v_lshrrev_b32 v39, 5, v1               ; hh
    v_lshl_add_u32 v39, v39, 2, v36        ; 4hh + (i>>2)
    v_lshl_add_u32 v39, v39, 8, v34
    """)
    for db in range(4):
        a(f"""
        v_or_b32 v42, {4*db}, v35
        v_xor_b32 v42, v42, v37
        v_lshl_add_u32 v{8+db}, v42, 4, v38
        v_lshl_add_u32 v{28+db}, v42, 4, v39
        v_add_u32 v{28+db}, {VRING}, v{28+db}
        """)
    a("""
    v_and_b32 v32, 31, v1                  ; r
    v_lshrrev_b32 v33, 5, v1               ; hh
    v_and_b32 v34, 15, v1
    """)
    for ds in range(8):
        a(f"""
        v_or_b32 v35, {2*ds}, v33
        v_xor_b32 v35, v35, v34
        v_lshlrev_b32 v35, 4, v35
        v_lshl_add_u32 v{20+ds}, v32, 8, v35
        v_add_u32 v{20+ds}, {KRING}, v{20+ds}
        """)
    a("s_waitcnt lgkmcnt(0)")
    if stamp is not None: stamp_mid(a, 0)
    srd(a, 12, 8, 1024*4096*2)
    a(f"""
    s_lshl_b32 s26, s25, 16
    s_add_u32 s26, s26, {WS_HF}
    s_add_u32 s16, s10, s26
    s_addc_u32 s17, s11, 0
    s_mov_b32 s18, 131072
    s_mov_b32 s19, 0x20000
    """)
    srd(a, 32, 4, 4*2048*128*2)
    srd(a, 36, 6, 4*2048*128*2)
    srd(a, 40, 10, 2048*4096*2, WS_OF)
    a(f"""
    s_mul_i32 s28, s20, {16*8192}
    s_lshl_b32 s26, s24, 8
    s_add_u32 s28, s28, s26                ; W soffset
    s_mov_b32 s29, 0                       ; h soffset
    s_lshl_b32 s30, s20, 12
    s_lshl_b32 s44, s23, 19                ; g*524288
    s_add_u32 s44, s44, {1536*256}
    s_add_u32 s44, s44, s30
    """)
    QACC = 64
    def qacc(db, qb): r = QACC+(2*db+qb)*16; return r
    def hbuf(buf, qb, ks): r = 32*buf+16*qb+4*ks; return f"a[{r}:{r+3}]"
    def wfr(q, db): return 128+(q % 2)*16+4*db
    def w_dma(slot):
        a(f"s_add_u32 m0, s30, {slot*16384}")
        a("s_nop 0")
        for j in range(4): a(f"buffer_load_dwordx4 v{4+j}, s[12:15], s28 offen offset:{1024*j} lds")
        a(f"s_add_u32 s28, s28, {64*8192}")
    def h_load(buf, ks):
        a(f"buffer_load_dwordx4 {hbuf(buf,0,ks)}, v2, s[16:19], s29 offen offset:{1024*ks}")
        a(f"buffer_load_dwordx4 {hbuf(buf,1,ks)}, v3, s[16:19], s29 offen offset:{1024*ks}")
    def k_dma(ldsoff_expr, tile_soff):
        a(f"s_add_u32 m0, s30, {ldsoff_expr}")
        a("s_nop 0")
        for j in range(4): a(f"buffer_load_dwordx4 v{12+j}, s[32:35], {tile_soff} offen offset:{1024*j} lds")
    def v_dma(ldsoff_expr, tile_soff):
        a(f"s_add_u32 m0, s30, {ldsoff_expr}")
        a("s_nop 0")
        for j in range(4): a(f"buffer_load_dwordx4 v16, s[36:39], {tile_soff} offen offset:{1024*j} lds")
    def wreads(t, ks):
        q = 4*t+ks; slot = t % 4; out = []
        for db in range(4):
            r = wfr(q, db)
            for hf in range(2):
                out.append(f"ds_read_b64_tr_b16 a[{r+2*hf}:{r+2*hf+1}], v{8+db} offset:{slot*16384+(16*ks+4*hf)*256}")
        return out
    for i in range(128): a(f"v_mov_b32 v{QACC+i}, 0")
    for t in range(4):
        for ks in range(3): h_load(t, ks)
        w_dma(t)
        h_load(t, 3); a("s_add_u32 s29, s29, 4096")
    a(f"s_add_u32 s45, s44, {16384}")
    k_dma(KRING, "s44"); k_dma(KRING+16384, "s45"); v_dma(VRING, "s44")
    a(f"s_waitcnt vmcnt({36+12})")
    a("s_barrier")
    for s in wreads(0, 0): a(s)
    if stamp is not None: stamp_mid(a, 1); a("s_nop 0")
    def qbody(tail):
        for t in range(4):
            last = tail and t == 3
            for ks in range(4):
                if ks == 3 and not last:
                    n = 30 if not tail else (2-t)*12
                    a(f"s_waitcnt vmcnt({n}) lgkmcnt(0)")
                    a("s_barrier")
                if ks < 3: rl = wreads(t, ks+1)
                else: rl = [] if last else wreads(t+1, 0)
                q = 4*t+ks
                for db in range(4):
                    if not (ks == 3 and not last):
                        a(f"s_waitcnt lgkmcnt({6 if rl else 2*(3-db)})")
                    r = wfr(q, db)
                    for qb in range(2):
                        c = qacc(db, qb)
                        a(f"v_mfma_f32_32x32x16_bf16 v[{c}:{c+15}], a[{r}:{r+3}], {hbuf(t,qb,ks)}, v[{c}:{c+15}]")
                        if qb == 0:
                            for s in rl[2*db:2*db+2]: a(s)
                    if ks == 3 and db == 0 and not tail: w_dma(t)
                if not tail:
                    h_load(t, ks)
                    if ks == 3: a("s_add_u32 s29, s29, 4096")
    a("s_mov_b32 s31, 3")
    a(f"L_{L}_qloop:")
    qbody(False)
    a(f"""
    s_sub_u32 s31, s31, 1
    s_cmp_lg_u32 s31, 0
    s_cbranch_scc1 L_{L}_qloop
    """)
    qbody(True)
    if stamp is not None: stamp_mid(a, 2)
    QF = 192
    def qf(qb, ds): r = QF+32*qb+4*ds; return f"v[{r}:{r+3}]"
    a(f"s_add_u32 s45, s44, {2*16384}")
    k_dma(KRING+2*16384, "s45")
    a(f"s_add_u32 s45, s44, {16384}")
    v_dma(VRING+16384, "s45")
    a("s_nop 7")
    for qb in range(2):
        for ds in range(8):
            c = qacc(ds >> 1, qb)+8*(ds & 1)
            for j in range(4):
                a(f"v_cvt_pk_bf16_f32 v{QF+32*qb+4*ds+j}, v{c+2*j}, v{c+2*j+1}")
    def S(b, qb): return 64+32*b+16*qb
    def P(b, qb, ks): return 128+16*b+8*qb+4*ks
    def NM(qb): return 160+16*qb
    def O(db, qb): return (2*db+qb)*16
    RING = 128
    LREG = (40, 41)
    PDI = 4
    def item_reads(it, slot):
        r = RING+4*(slot % 8)
        if it[0] == 'K':
            _, half, ds = it[:3]
            return [f"ds_read_b128 a[{r}:{r+3}], v{20+ds} offset:{half*8192}"]
        _, half, ks, db = it[:4]
        return [f"ds_read_b64_tr_b16 a[{r+2*hf}:{r+2*hf+1}], v{28+db} offset:{(half*32+16*ks+8*hf)*256}" for hf in range(2)]
    def item_mfma(it, slot, qb):
        r = RING+4*(slot % 8)
        if it[0] == 'K':
            _, half, ds, sb, cmode = it
            d = S(sb, qb)
            if ds == 0: c = "0" if cmode == 'zero' else f"v[{NM(qb)}:{NM(qb)+15}]"
            else: c = f"v[{d}:{d+15}]"
            return f"v_mfma_f32_32x32x16_bf16 v[{d}:{d+15}], a[{r}:{r+3}], {qf(qb, ds)}, {c}"
        _, half, ks, db, pb = it
        o = O(db, qb); p = P(pb, qb, ks)
        return f"v_mfma_f32_32x32x16_bf16 a[{o}:{o+15}], a[{r}:{r+3}], v[{p}:{p+3}], a[{o}:{o+15}]"
    def nreads(it): return 1 if it[0] == 'K' else 2
    def softmax_ops(sb, pb):
        ops = []; prev = None
        for qb in range(2):
            for j in range(8):
                e0 = S(sb, qb)+2*j; e1 = e0+1
                ops.append(f"v_exp_f32 v{e0}, v{e0}")
                ops.append(f"v_exp_f32 v{e1}, v{e1}")
                if prev: ops += prev
                prev = [f"v_add_f32 v{LREG[qb]}, v{LREG[qb]}, v{e0}",
                        f"v_cvt_pk_bf16_f32 v{P(pb, qb, j >> 2)+(j & 3)}, v{e0}, v{e1}",
                        f"v_add_f32 v{LREG[qb]}, v{LREG[qb]}, v{e1}"]
        ops.append("s_nop 0"); ops += prev
        return ops
    def emit_items(items, future, valu, extra=None, slot0=0, pre_issued=True):
        seq = items+future
        n = len(items); gaps = 2*n
        vi = 0
        for i, it in enumerate(items):
            young = sum(nreads(x) for x in seq[i+1:i+PDI])
            a(f"s_waitcnt lgkmcnt({young})")
            a(item_mfma(it, slot0+i, 0))
            if extra and i in extra: extra[i]()
            if i+PDI < len(seq):
                for s in item_reads(seq[i+PDI], slot0+i+PDI): a(s)
            tgt = (len(valu)*(2*i+1))//gaps
            while vi < tgt: a(valu[vi]); vi += 1
            a(item_mfma(it, slot0+i, 1))
            tgt = (len(valu)*(2*i+2))//gaps
            while vi < tgt: a(valu[vi]); vi += 1
        assert vi == len(valu)
    def kitems(half, sb, cmode='nm'): return [('K', half, ds, sb, cmode) for ds in range(8)]
    def vitems(half, pb): return [('V', half, ks, db, pb) for ks in range(2) for db in range(4)]

    a(f"L_{L}_att:")
    a("v_mov_b32 v40, 0\nv_mov_b32 v41, 0")
    head1 = kitems(0, 0, 'zero'); head2 = kitems(1, 1)
    for i in range(PDI):
        for s in item_reads(head1[i], i): a(s)
    zinit = [f"v_accvgpr_write_b32 a{i}, 0" for i in range(128)]
    emit_items(head1, head2, zinit, slot0=0)
    a("s_nop 7\ns_nop 7")
    if fallback:
        a(f"s_cmp_eq_u32 s46, 1\ns_cbranch_scc1 L_{L}_havem")
    for qb in range(2):
        s = S(0, qb); m = 42+qb
        a(f"v_max3_f32 v{m}, v{s}, v{s+1}, v{s+2}")
        for j in range(3, 15, 2): a(f"v_max3_f32 v{m}, v{m}, v{s+j}, v{s+j+1}")
        a(f"v_max_f32 v{m}, v{m}, v{s+15}")
    a("v_mov_b32 v44, v42\nv_mov_b32 v45, v43\ns_nop 1")
    a("v_permlane32_swap_b32 v42, v44\nv_permlane32_swap_b32 v43, v45\ns_nop 1")
    a("v_max_f32 v42, v42, v44\nv_max_f32 v43, v43, v45")
    a(f"v_sub_f32 v42, {-BIAS}, v42\nv_sub_f32 v43, {-BIAS}, v43".replace("-30.0", "0xc1f00000"))
    if fallback: a(f"L_{L}_havem:")
    for qb in range(2):
        for j in range(16): a(f"v_mov_b32 v{NM(qb)+j}, v{42+qb}")
        for j in range(16): a(f"v_add_f32 v{S(0,qb)+j}, v{S(0,qb)+j}, v{42+qb}")
    body_a = kitems(0, 0)+vitems(0, 0)
    body_b = kitems(1, 1)+vitems(1, 1)
    def adv_k_first():
        for ds in range(8): a(f"v_add_u32 v{20+ds}, 16384, v{20+ds}")
    emit_items(head2, body_a[:PDI], softmax_ops(0, 0), extra={4: adv_k_first}, slot0=8)
    a(f"""
    s_mov_b32 s47, 16384
    s_mov_b32 s48, 1
    s_add_u32 s49, s44, 16384
    L_{L}_aloop:
    s_add_u32 s50, s47, 16384
    s_cmp_eq_u32 s50, 49152
    s_cselect_b32 s50, 0, s50
    s_add_u32 s51, s50, 16384
    s_cmp_eq_u32 s51, 49152
    s_cselect_b32 s51, 0, s51
    s_sub_u32 s52, s50, s47               ; delta K
    s_sub_u32 s53, s47, s51               ; delta V
    """)
    emit_items(body_a, body_b[:PDI], softmax_ops(1, 1), slot0=0)
    def adv_k():
        for ds in range(8): a(f"v_add_u32 v{20+ds}, s52, v{20+ds}")
    def sync_and_dma():
        a("s_waitcnt vmcnt(0)")
        a("s_barrier")
        a(f"""
        s_cmp_ge_u32 s48, 7
        s_cbranch_scc1 L_{L}_nov
        s_add_u32 s45, s49, 16384
        s_add_u32 s54, s50, {VRING}
        """)
        v_dma("s54", "s45")
        a(f"""
        s_cmp_ge_u32 s48, 6
        s_cbranch_scc1 L_{L}_nov
        s_add_u32 s45, s49, 32768
        s_add_u32 s54, s51, {KRING}
        """)
        k_dma("s54", "s45")
        a(f"L_{L}_nov:")
    def adv_v():
        for db in range(4): a(f"v_add_u32 v{28+db}, s53, v{28+db}")
    ex = {4: adv_k, 12: lambda: (sync_and_dma(), adv_v())}
    emit_items(body_b, body_a[:PDI], softmax_ops(0, 0), extra=ex, slot0=16)
    a(f"""
    s_mov_b32 s47, s50
    s_add_u32 s49, s49, 16384
    s_add_u32 s48, s48, 1
    s_cmp_lt_u32 s48, 8
    s_cbranch_scc1 L_{L}_aloop
    s_waitcnt lgkmcnt(0)
    """)
    t1 = vitems(0, 0); t2 = vitems(1, 1)
    for i in range(PDI):
        for s in item_reads(t1[i], i): a(s)
    emit_items(t1, t2[:PDI], softmax_ops(1, 1), slot0=0)
    a("s_nop 1")
    emit_items(t2, [], [], slot0=8)
    if stamp is not None: stamp_mid(a, 3)
    a("""
    v_mov_b32 v44, v40
    v_mov_b32 v45, v41
    s_nop 1
    v_permlane32_swap_b32 v40, v44
    v_permlane32_swap_b32 v41, v45
    s_nop 1
    v_add_f32 v40, v40, v44
    v_add_f32 v41, v41, v45
    """)
    if fallback:
        a(f"""
        s_cmp_eq_u32 s46, 1
        s_cbranch_scc1 L_{L}_fin
        v_mov_b32 v46, 0x6c800000          ; 2^90
        v_cmp_nle_f32 vcc, v40, v46
        v_cmp_nle_f32 s[56:57], v41, v46
        s_or_b64 vcc, vcc, s[56:57]
        s_cmp_lg_u64 vcc, 0
        s_cselect_b32 s58, 1, 0
        v_mov_b32 v46, s58
        v_mov_b32 v47, s30
        v_lshrrev_b32 v47, 10, v47         ; w*4
        s_barrier
        ds_write_b32 v47, v46
        s_waitcnt lgkmcnt(0)
        s_barrier
        v_mov_b32 v47, 0
        ds_read_b128 v[48:51], v47
        s_waitcnt lgkmcnt(0)
        v_or_b32 v48, v48, v49
        v_or_b32 v50, v50, v51
        v_or_b32 v48, v48, v50
        s_nop 0
        v_readfirstlane_b32 s58, v48
        s_cmp_eq_u32 s58, 0
        s_cbranch_scc1 L_{L}_fin
        """)
        a(f"""
        s_barrier
        v_mov_b32 v42, 0xff800000
        v_mov_b32 v43, 0xff800000
        s_mov_b32 s48, 0
        s_mov_b32 s49, s44
        ; K read addresses back to slot 0 : current slot offset is s47 (tile 8 % 3), registers point there
        L_{L}_fbsub:
        """)
        for ds in range(8): a(f"v_subrev_u32 v{20+ds}, s47, v{20+ds}")
        a(f"L_{L}_fbloop:")
        k_dma(KRING, "s49")
        a("s_waitcnt vmcnt(0)\ns_barrier")
        for half in range(2):
            for ds in range(8):
                a(f"ds_read_b128 a[{RING+4*ds}:{RING+4*ds+3}], v{20+ds} offset:{half*8192}")
            a("s_waitcnt lgkmcnt(0)")
            for ds in range(8):
                for qb in range(2):
                    d = S(0, qb); c = "0" if ds == 0 else f"v[{d}:{d+15}]"
                    a(f"v_mfma_f32_32x32x16_bf16 v[{d}:{d+15}], a[{RING+4*ds}:{RING+4*ds+3}], {qf(qb, ds)}, {c}")
            a("s_nop 7\ns_nop 7")
            for qb in range(2):
                s = S(0, qb); m = 42+qb
                for j in range(0, 16, 2): a(f"v_max3_f32 v{m}, v{m}, v{s+j}, v{s+j+1}")
        a(f"""
        s_barrier
        s_add_u32 s49, s49, 16384
        s_add_u32 s48, s48, 1
        s_cmp_lt_u32 s48, 8
        s_cbranch_scc1 L_{L}_fbloop
        v_mov_b32 v44, v42
        v_mov_b32 v45, v43
        s_nop 1
        v_permlane32_swap_b32 v42, v44
        v_permlane32_swap_b32 v43, v45
        s_nop 1
        v_max_f32 v42, v42, v44
        v_max_f32 v43, v43, v45
        v_sub_f32 v42, 0, v42
        v_sub_f32 v43, 0, v43
        s_mov_b32 s46, 1
        """)
        for db in range(4): a(f"v_subrev_u32 v{28+db}, 16384, v{28+db}")
        a(f"s_add_u32 s45, s44, 16384")
        k_dma(KRING, "s44"); k_dma(KRING+16384, "s45"); v_dma(VRING, "s44"); v_dma(VRING+16384, "s45")
        a(f"s_add_u32 s45, s44, 32768")
        k_dma(KRING+32768, "s45")
        a(f"""
        s_waitcnt vmcnt(0)
        s_barrier
        s_branch L_{L}_att
        L_{L}_fin:
        """)
    a("""
    v_rcp_f32 v40, v40
    v_rcp_f32 v41, v41
    s_nop 7
    s_nop 7
    """)
    for qb in range(2):
        a(f"""
        s_add_u32 s26, s25, {qb}
        s_mul_i32 s26, s26, {4096*64}
        s_lshl_b32 s27, s24, 13
        s_add_u32 s26, s26, s27
        """)
        for db in range(4):
            o = O(db, qb)
            for j in range(16): a(f"v_accvgpr_read_b32 v{64+j}, a{o+j}")
            for j in range(16): a(f"v_mul_f32 v{64+j}, v{64+j}, v{40+qb}")
            t = 80+8*(db & 1)
            for j in range(8): a(f"v_cvt_pk_bf16_f32 v{t+j}, v{64+2*j}, v{64+2*j+1}")
            if db == 2: a("s_add_u32 s26, s26, 4096")
            a(f"buffer_store_dwordx4 v[{t}:{t+3}], v2, s[40:43], s26 offen offset:{(db&1)*2048}")
            a(f"buffer_store_dwordx4 v[{t+4}:{t+7}], v2, s[40:43], s26 offen offset:{(db&1)*2048+1024}")
    if stamp is not None:
        stamp_mid(a, 4); stamp_end2(a, stamp, 10)
    a(f"""
    L_{L}_done:
    s_endpgm
    """)
    txt = a.text()
    txt = txt.replace(f"L_{L}_qloop:", f"s_mov_b32 s46, 0\nL_{L}_qloop:")
    return (name, (256,1,1), (256,1,1), 163840), txt, kernel_desc(name, 256+192, accum=256)
```

```python
from asmlib import *
from gen_small import *

def lane_common(a):
    a("""
    v_lshrrev_b32 v2, 6, v0
    v_and_b32 v1, 63, v0
    v_readfirstlane_b32 s20, v2
    v_lshlrev_b32 v2, 4, v1
    """)

def tr_lane_terms(a, vk, vg1, vsw, t0):
    a(f"""
    v_lshrrev_b32 v{t0}, 5, v1            ; g>>1
    v_bfe_u32 v{vk}, v1, 2, 2             ; i>>2
    v_lshl_add_u32 v{vk}, v{t0}, 3, v{vk}
    v_bfe_u32 v{vg1}, v1, 4, 1
    v_and_b32 v{t0}, 1, v1
    v_bfe_u32 v{vsw}, v1, 1, 1
    v_lshl_or_b32 v{vsw}, v{t0}, 1, v{vsw}
    """)

def gen_gemm(name, kind, dbg="", stamp=None):
    a0 = Asm(); L = name
    class A2:
        inloop = False
        def __call__(self, txt=""):
            if self.inloop:
                out = []
                for l in txt.split("\n"):
                    t = l.strip()
                    if "novmem" in dbg and t.startswith("buffer_load"): continue
                    if "noact" in dbg and t.startswith("buffer_load") and not t.endswith("lds"): continue
                    if "now" in dbg and t.startswith("buffer_load") and t.endswith("lds"): continue
                    if "nolds" in dbg and t.startswith("ds_read"): continue
                    if "nomfma" in dbg and t.startswith("v_mfma"): continue
                    if "nobar" in dbg and t.startswith("s_barrier"): continue
                    out.append(l)
                txt = "\n".join(out)
            a0(txt)
        def raw(self, s): a0.raw(s)
        def text(self): return a0.text()
    a = A2()
    if kind == "oproj":
        NB, KT, NSLOT, PD = 2, 64, 8, 4
        w_arg, w_stride, w_bytes = 32, 2048, 4096*1024*2
        act_off, actK = WS_OF, 4096
    elif kind == "ffn2":
        NB, KT, NSLOT, PD = 2, 56, 8, 4
        w_arg, w_stride, w_bytes = 56, 2048, 3584*1024*2
        act_off, actK = WS_HIDF, 3584
    elif kind == "ffn1":
        NB, KT, NSLOT, PD = 7, 16, 4, 1
        w_arg, w_stride, w_bytes = 48, 7168, 1024*3584*2
        act_off, actK = WS_H2F, 1024
    ROWB = NB*64
    SLOT = 64*ROWB
    ND = SLOT//1024//4
    D = NSLOT-1 if PD == 4 else NSLOT
    NBUF = NSLOT
    ACC = 64
    def acc(nb): return f"v[{ACC+16*nb}:{ACC+16*nb+15}]"
    ACT = 0
    def act(buf, ks): r = ACT+16*buf+4*ks; return f"a[{r}:{r+3}]"
    FR = NBUF*16
    NRING = 8 if PD == 4 else 2
    def frag(q, nb): r = FR+(q % NRING)*NB*4+nb*4; return r
    NAG = FR+NRING*NB*4
    kernel_begin(a, name)
    a(f"""
    s_cmp_ge_u32 s2, 256
    s_cbranch_scc1 L_{L}_done
    s_load_dwordx2 s[4:5], s[0:1], {w_arg}
    s_load_dwordx2 s[6:7], s[0:1], 96
    s_load_dwordx2 s[8:9], s[0:1], 0
    s_load_dwordx2 s[10:11], s[0:1], 80
    """)
    if stamp is not None: stamp_begin(a)
    lane_common(a)
    a("s_and_b32 s21, s2, 7\ns_lshr_b32 s22, s2, 3")
    if NB == 2:
        a("""
        s_lshr_b32 s23, s21, 1
        s_lshl_b32 s23, s23, 2
        s_lshr_b32 s24, s22, 3
        s_add_u32 s23, s23, s24
        s_and_b32 s24, s21, 1
        s_lshl_b32 s24, s24, 3
        s_and_b32 s25, s22, 7
        s_add_u32 s24, s24, s25          ; n tile
        s_lshl_b32 s25, s24, 7
        """)
    else:
        a("""
        s_lshr_b32 s23, s21, 2
        s_lshl_b32 s23, s23, 3
        s_lshr_b32 s24, s22, 2
        s_add_u32 s23, s23, s24
        s_and_b32 s24, s21, 3
        s_lshl_b32 s24, s24, 2
        s_and_b32 s25, s22, 3
        s_add_u32 s24, s24, s25          ; n tile
        s_mul_i32 s25, s24, 448
        """)
    if "sameN" in dbg: a("s_mov_b32 s24, 0\ns_mov_b32 s25, 0")
    if "sameT" in dbg: a("s_mov_b32 s23, 0")
    a("""
    s_lshl_b32 s23, s23, 2
    s_add_u32 s23, s23, s20
    """)
    if NB == 2:
        a("""
        v_lshrrev_b32 v3, 3, v1          ; row_in
        v_and_b32 v4, 7, v1              ; p
        v_bfe_u32 v5, v1, 4, 1           ; (row_in>>1)&1
        v_lshlrev_b32 v5, 2, v5
        v_xor_b32 v4, v4, v5             ; c
        v_lshlrev_b32 v4, 4, v4
        v_lshl_add_u32 v8, v3, 11, v4
        v_add_u32 v9, 15360, v8          ; +8 rows*2048 - 1024
        """)
    else:
        a("s_mov_b32 s26, 0x924924a")
        a(f"s_mov_b32 s27, {w_stride}")
        for j in range(ND):
            a(f"""
            v_add_u32 v3, {64*j}, v1
            v_mul_hi_u32 v4, v3, s26     ; row
            v_mul_u32_u24 v5, 28, v4
            v_sub_u32 v5, v3, v5         ; chunk
            v_mul_lo_u32 v4, v4, s27
            v_lshl_add_u32 v4, v5, 4, v4
            v_subrev_u32 v{8+j}, {1024*(j%4)}, v4
            """)
    tr_lane_terms(a, 3, 4, 5, 6)
    if NB == 2:
        a("""
        v_lshrrev_b32 v6, 1, v5          ; sw>>1
        v_lshl_add_u32 v6, v4, 1, v6     ; 2*(g&1) + (sw>>1)
        v_bfe_u32 v7, v1, 3, 1
        v_lshlrev_b32 v7, 2, v7          ; swz
        v_and_b32 v5, 1, v5
        v_lshlrev_b32 v5, 3, v5          ; half8*8
        v_lshl_add_u32 v5, v3, 7, v5     ; k*128 + half8*8
        v_xor_b32 v16, v6, v7
        v_or_b32 v6, 4, v6
        v_xor_b32 v17, v6, v7
        v_lshl_add_u32 v16, v16, 4, v5
        v_lshl_add_u32 v17, v17, 4, v5
        """)
    else:
        a(f"""
        v_mul_u32_u24 v3, {ROWB}, v3
        v_lshlrev_b32 v4, 5, v4
        v_lshlrev_b32 v5, 3, v5
        v_add3_u32 v16, v3, v4, v5
        v_add_u32 v17, {2*SLOT}, v16
        """)
    a("s_waitcnt lgkmcnt(0)")
    if stamp is not None: stamp_mid(a, 0)
    srd(a, 12, 4, w_bytes)
    a(f"""
    s_mul_i32 s26, s23, {actK*64}
    s_add_u32 s26, s26, {act_off}
    s_add_u32 s16, s6, s26
    s_addc_u32 s17, s7, 0
    s_mov_b32 s18, {actK*64}
    s_mov_b32 s19, 0x20000
    s_mul_i32 s28, s20, {16*w_stride}
    s_add_u32 s28, s28, s25
    s_mov_b32 s29, 0
    s_mul_i32 s30, s20, {SLOT//4}
    """)
    npre = 0
    if kind == "oproj":
        srd(a, 32, 8, 2048*1024*2)
        srd(a, 36, 6, 6144*4, WS_MOD)
        srd(a, 40, 6, 2048*1024*2, WS_X1F)
        a(f"""
        v_and_b32 v3, 31, v1
        v_lshrrev_b32 v4, 5, v1
        s_lshl_b32 s26, s23, 16          ; tb*32*2048
        s_add_u32 s26, s26, s25
        v_lshlrev_b32 v3, 11, v3
        v_lshl_add_u32 v3, v4, 4, v3
        v_lshlrev_b32 v4, 5, v4
        s_lshl_b32 s27, s25, 1
        s_add_u32 s27, s27, {2*4096}
        """)
        for nb in range(2):
            for s in range(2):
                j = nb*2+s
                a(f"buffer_load_dwordx4 v[{20+4*j}:{23+4*j}], v3, s[32:35], s26 offen offset:{nb*64+s*32}")
        for nb in range(2):
            for s in range(2):
                j = nb*2+s
                a(f"buffer_load_dwordx4 v[{192+8*j}:{195+8*j}], v4, s[36:39], s27 offen offset:{nb*128+s*64}")
                a(f"buffer_load_dwordx4 v[{196+8*j}:{199+8*j}], v4, s[36:39], s27 offen offset:{nb*128+s*64+16}")
        npre = 12
    elif kind == "ffn2":
        srd(a, 32, 6, 2048*1024*2, WS_X1F)
        srd(a, 36, 6, 6144*4, WS_MOD)
        srd(a, 40, 10, 2048*1024*2)
        a(f"""
        v_lshrrev_b32 v4, 5, v1
        s_lshl_b32 s26, s23, 16          ; tb*65536
        s_lshl_b32 s27, s24, 12
        s_add_u32 s26, s26, s27
        v_lshlrev_b32 v4, 5, v4
        s_lshl_b32 s27, s25, 1
        s_add_u32 s27, s27, {5*4096}
        """)
        for j in range(4):
            a(f"buffer_load_dwordx4 v[{20+4*j}:{23+4*j}], v2, s[32:35], s26 offen offset:{j*1024}")
        for nb in range(2):
            for s in range(2):
                j = nb*2+s
                a(f"buffer_load_dwordx4 v[{192+8*j}:{195+8*j}], v4, s[36:39], s27 offen offset:{nb*128+s*64}")
                a(f"buffer_load_dwordx4 v[{196+8*j}:{199+8*j}], v4, s[36:39], s27 offen offset:{nb*128+s*64+16}")
        npre = 12
    else:
        srd(a, 40, 6, 2048*3584*2, WS_HIDF)
    for i in range(NB*16): a(f"v_mov_b32 v{ACC+i}, 0")

    def w_dma(slot):
        a(f"s_add_u32 m0, s30, {slot*SLOT}")
        a("s_nop 0")
        for j in range(ND):
            if j == 4:
                a(f"s_add_u32 m0, s30, {slot*SLOT+4096}")
                a("s_nop 0")
            a(f"buffer_load_dwordx4 v{8+j}, s[12:15], s28 offen offset:{1024*(j%4)} lds")
        a(f"s_add_u32 s28, s28, {64*w_stride}")
    def act_load(buf, ks):
        a(f"buffer_load_dwordx4 {act(buf,ks)}, v2, s[16:19], s29 offen offset:{1024*ks}")
    def act_adv(): a("s_add_u32 s29, s29, 4096")
    def frag_read_list(t, ks):
        q = 4*t+ks; slot = t % NSLOT; out = []
        for nb in range(NB):
            r = frag(q, nb)
            for hf in range(2):
                if NB == 2:
                    out.append(f"ds_read_b64_tr_b16 a[{r+2*hf}:{r+2*hf+1}], v{16+nb} offset:{slot*SLOT+(16*ks+4*hf)*ROWB}")
                else:
                    base = 16 if slot < 2 else 17
                    out.append(f"ds_read_b64_tr_b16 a[{r+2*hf}:{r+2*hf+1}], v{base} offset:{(slot%2)*SLOT+(16*ks+4*hf)*ROWB+64*nb}")
        return out
    def mfma(t, ks, nb):
        q = 4*t+ks; r = frag(q, nb)
        a(f"v_mfma_f32_32x32x16_bf16 {acc(nb)}, a[{r}:{r+3}], {act(t % NBUF, ks)}, {acc(nb)}")

    if PD == 4:
        for t in range(D):
            w_dma(t % NSLOT)
            for ks in range(4): act_load(t % NBUF, ks)
            act_adv()
        a(f"s_waitcnt vmcnt({4+(D-1)*(ND+4)})")
        a("s_barrier")
        for ks in range(4):
            for s in frag_read_list(0, ks): a(s)
    else:
        for t in range(D):
            for ks in range(3): act_load(t, ks)
            w_dma(t)
            act_load(t, 3); act_adv()
        a(f"s_waitcnt vmcnt({(D-1)*(ND+4)})")
        a("s_barrier")
        for s in frag_read_list(0, 0): a(s)

    if stamp is not None: stamp_mid(a, 1)
    def body(t0, tail):
        for u in range(NSLOT):
            t = u
            tt = (KT-NSLOT+u) if tail else None
            has_load = (not tail) or (tt+D < KT)
            last = tail and u == NSLOT-1
            if PD == 4:
                if not last:
                    if not tail: n = 4+(D-2)*(ND+4)
                    else:
                        rem = KT-1-(tt+1)
                        rem = min(rem, D-2)
                        n = 4+rem*(ND+4)
                    a(f"s_waitcnt vmcnt({n})")
                    a("s_barrier")
                else:
                    a("s_waitcnt vmcnt(0)")
                reads = [] if last else [frag_read_list(t+1, ks) for ks in range(4)]
                for ks in range(4):
                    younger = 3*2*NB if not last else (3-ks)*2*NB
                    a(f"s_waitcnt lgkmcnt({min(15, younger)})")
                    rl = list(reads[ks]) if reads else []
                    mfma(t, ks, 0)
                    for s in rl[:2]: a(s)
                    if ks == 0 and has_load: w_dma((t+D) % NSLOT)
                    if ks >= 0 and has_load and ks > 0: act_load((t+D) % NBUF, ks-1)
                    mfma(t, ks, 1)
                    for s in rl[2:]: a(s)
                if has_load:
                    act_load((t+D) % NBUF, 3); act_adv()
            else:
                for ks in range(4):
                    if ks == 3 and not last:
                        if not tail: n = 2*(ND+4)+3
                        else:
                            n = min(KT-1-(tt+1), 2)*(ND+4)
                        a(f"s_waitcnt vmcnt({n}) lgkmcnt(0)")
                        a("s_barrier")
                    if ks < 3: rl = frag_read_list(t, ks+1)
                    else: rl = [] if last else frag_read_list(t+1, 0)
                    for nb in range(NB):
                        if not (ks == 3 and not last):
                            a(f"s_waitcnt lgkmcnt({2*(NB-1) if rl else 2*(NB-1-nb)})")
                        mfma(t, ks, nb)
                        for s in rl[2*nb:2*nb+2]: a(s)
                        if ks == 3 and nb == 0 and has_load: w_dma((t+D) % NSLOT)
                    if has_load:
                        act_load((t+D) % NBUF, ks)
                        if ks == 3: act_adv()
    nloop = KT//NSLOT-1
    a(f"s_mov_b32 s31, {nloop}")
    a(f"L_{L}_loop:")
    a.inloop = True
    body(0, False)
    a(f"""
    s_sub_u32 s31, s31, 1
    s_cmp_lg_u32 s31, 0
    s_cbranch_scc1 L_{L}_loop
    """)
    body(0, True)
    a.inloop = False
    if stamp is not None: stamp_mid(a, 2)
    a("s_nop 15")
    a("s_mov_b32 s44, 0xffff0000")
    if kind in ("oproj", "ffn2"):
        for j in range(4):
            nb, s = j >> 1, j & 1
            for d in range(4):
                a(f"v_lshlrev_b32 v40, 16, v{20+4*j+d}")
                a(f"v_and_b32 v41, s44, v{20+4*j+d}")
                a(f"v_fmac_f32 v40, v{192+8*j+2*d}, v{ACC+16*nb+8*s+2*d}")
                a(f"v_fmac_f32 v41, v{192+8*j+2*d+1}, v{ACC+16*nb+8*s+2*d+1}")
                a(f"v_cvt_pk_bf16_f32 v{44+4*j+d}, v40, v41")
        if kind == "oproj":
            a("""
            s_lshl_b32 s26, s23, 16
            s_lshl_b32 s27, s24, 12
            s_add_u32 s26, s26, s27
            """)
            for j in range(4):
                a(f"buffer_store_dwordx4 v[{44+4*j}:{47+4*j}], v2, s[40:43], s26 offen offset:{1024*j}")
        else:
            a("""
            v_and_b32 v3, 31, v1
            v_lshrrev_b32 v4, 5, v1
            v_lshlrev_b32 v3, 11, v3
            v_lshl_add_u32 v3, v4, 4, v3
            s_lshl_b32 s26, s23, 16
            s_add_u32 s26, s26, s25
            """)
            for j in range(4):
                a(f"buffer_store_dwordx4 v[{44+4*j}:{47+4*j}], v3, s[40:43], s26 offen offset:{(j>>1)*64+(j&1)*32}")
    else:
        a(f"""
        s_mul_i32 s26, s23, {3584*64}
        s_mul_i32 s27, s24, {28*512}
        s_add_u32 s26, s26, s27
        """)
        for nb in range(NB):
            for s in range(2):
                j = 2*nb+s
                o = 20+4*(j % 8)
                for d in range(4):
                    r = ACC+16*nb+8*s+2*d
                    a(f"v_max_f32 v{r}, 0, v{r}")
                    a(f"v_max_f32 v{r+1}, 0, v{r+1}")
                    a(f"v_cvt_pk_bf16_f32 v{o+d}, v{r}, v{r+1}")
                if j % 4 == 0 and j > 0: a("s_add_u32 s26, s26, 4096")
                a(f"buffer_store_dwordx4 v[{o}:{o+3}], v2, s[40:43], s26 offen offset:{1024*(j % 4)}")
    if stamp is not None: stamp_mid(a, 3)
    if stamp is not None: stamp_end2(a, stamp, 6)
    a(f"""
    L_{L}_done:
    s_endpgm
    """)
    nv = 256+NAG
    return (name, (256,1,1), (256,1,1), NSLOT*SLOT), a.text(), kernel_desc(name, nv, accum=256)
```

```python
from asmlib import *

WS_MOD  = 0x0000000
WS_HF   = 0x0100000
WS_OF   = 0x1000000
WS_X1F  = 0x2000000
WS_H2F  = 0x2400000
WS_HIDF = 0x3000000

def srd(a, r, base, nbytes, off=0):
    if off:
        a(f"s_add_u32 s{r}, s{base}, {off}")
        a(f"s_addc_u32 s{r+1}, s{base+1}, 0")
    else:
        a(f"s_mov_b32 s{r}, s{base}")
        a(f"s_mov_b32 s{r+1}, s{base+1}")
    a(f"s_mov_b32 s{r+2}, {nbytes}")
    a(f"s_mov_b32 s{r+3}, 0x20000")

def gen_k0(name="k0_kernel", prefetch=None):
    a = Asm()
    kernel_begin(a, name)
    a(f"""
    s_cmp_ge_u32 s2, 96
    s_cbranch_scc1 L_k0_done
    s_load_dwordx4 s[4:7], s[0:1], 64
    s_load_dwordx2 s[8:9], s[0:1], 96
    v_lshrrev_b32 v1, 3, v0              ; 8w+g
    v_and_b32 v2, 7, v0                  ; cc
    v_lshlrev_b32 v3, 5, v1
    s_mov_b32 s24, 196608                ; 16*12288
    v_mul_lo_u32 v4, v1, s24
    v_lshlrev_b32 v2, 4, v2
    s_lshl_b32 s25, s2, 7
    v_add3_u32 v4, v4, v2, s25
    s_waitcnt lgkmcnt(0)
    """)
    srd(a, 12, 4, 2048)
    srd(a, 16, 6, 1024*6144*2)
    srd(a, 20, 8, 6144*4, WS_MOD)
    a("""
    buffer_load_dwordx4 v[8:11], v3, s[12:15], 0 offen
    buffer_load_dwordx4 v[12:15], v3, s[12:15], 0 offen offset:16
    s_mov_b32 s26, 0
    """)
    for i in range(16):
        a(f"buffer_load_dwordx4 v[{64+4*i}:{67+4*i}], v4, s[16:19], s26 offen")
        if i < 15: a(f"s_add_u32 s26, s26, 12288")
    if prefetch:
        prefetch(a)
        npf = prefetch.n
    else:
        npf = 0
    a(f"""
    s_mov_b32 s27, 0xffff0000
    s_mov_b32 s28, 0xbfb8aa3b            ; -log2(e)
    s_waitcnt vmcnt({16+npf})
    """)
    for j in range(8):
        a(f"v_lshlrev_b32 v{16+2*j}, 16, v{8+j}")
        a(f"v_and_b32 v{17+2*j}, s27, v{8+j}")
    for j in range(16): a(f"v_mul_f32 v{32+j}, s28, v{16+j}")
    for j in range(16): a(f"v_exp_f32 v{32+j}, v{32+j}")
    for j in range(16): a(f"v_add_f32 v{32+j}, 1.0, v{32+j}")
    for j in range(16): a(f"v_rcp_f32 v{32+j}, v{32+j}")
    for j in range(16): a(f"v_mul_f32 v{16+j}, v{16+j}, v{32+j}")
    for j in range(8): a(f"v_cvt_pk_bf16_f32 v{8+j}, v{16+2*j}, v{17+2*j}")
    for j in range(8):
        a(f"v_lshlrev_b32 v{16+2*j}, 16, v{8+j}")
        a(f"v_and_b32 v{17+2*j}, s27, v{8+j}")
    for e in range(8): a(f"v_mov_b32 v{32+e}, 0")
    for i in range(16):
        a(f"s_waitcnt vmcnt({15-i+npf})")
        for d in range(4):
            r = 64+4*i+d
            a(f"v_lshlrev_b32 v40, 16, v{r}")
            a(f"v_and_b32 v41, s27, v{r}")
            a(f"v_fmac_f32 v{32+2*d}, v{16+i}, v40")
            a(f"v_fmac_f32 v{33+2*d}, v{16+i}, v41")
    a("s_nop 1")
    for e in range(8): a(f"v_add_f32_dpp v{32+e}, v{32+e}, v{32+e} row_ror:8 row_mask:0xf bank_mask:0xf")
    for e in range(8): a(f"v_mov_b32 v{40+e}, v{32+e}")
    a("s_nop 1")
    for e in range(8): a(f"v_permlane16_swap_b32 v{32+e}, v{40+e}")
    a("s_nop 1")
    for e in range(8): a(f"v_add_f32 v{32+e}, v{32+e}, v{40+e}")
    for e in range(8): a(f"v_mov_b32 v{40+e}, v{32+e}")
    a("s_nop 1")
    for e in range(8): a(f"v_permlane32_swap_b32 v{32+e}, v{40+e}")
    a("s_nop 1")
    for e in range(8): a(f"v_add_f32 v{32+e}, v{32+e}, v{40+e}")
    a("""
    v_and_b32 v5, 63, v0
    v_lshrrev_b32 v6, 6, v0              ; wave
    v_lshlrev_b32 v7, 8, v6              ; w*256
    v_lshl_add_u32 v7, v5, 5, v7
    v_cmp_gt_u32 vcc, 8, v5
    s_and_saveexec_b64 s[30:31], vcc
    ds_write_b128 v7, v[32:35]
    ds_write_b128 v7, v[36:39] offset:16
    s_mov_b64 exec, s[30:31]
    s_waitcnt lgkmcnt(0)
    s_barrier
    v_cmp_gt_u32 vcc, 64, v0
    s_and_saveexec_b64 s[30:31], vcc
    s_cbranch_execz L_k0_end
    v_lshlrev_b32 v7, 2, v0
    """)
    for j in range(8): a(f"ds_read_b32 v{16+j}, v7 offset:{256*j}")
    a("""
    s_lshl_b32 s25, s2, 8
    v_add_u32 v6, s25, v7
    s_waitcnt lgkmcnt(0)
    v_add_f32 v16, v16, v17
    v_add_f32 v18, v18, v19
    v_add_f32 v20, v20, v21
    v_add_f32 v22, v22, v23
    v_add_f32 v16, v16, v18
    v_add_f32 v20, v20, v22
    v_add_f32 v16, v16, v20
    buffer_store_dword v16, v6, s[20:23], 0 offen
    L_k0_end:
    L_k0_done:
    s_endpgm
    """)
    return (name, (96,1,1), (512,1,1), 2048), a.text(), kernel_desc(name, 128, sgpr=40)

def gen_ln(name, src, dst_off, shift_idx, scale_idx, outscale):
    a = Asm()
    L = name
    kernel_begin(a, name)
    import struct
    osc = struct.unpack("<I", struct.pack("<f", outscale))[0]
    a(f"""
    s_cmp_ge_u32 s2, 256
    s_cbranch_scc1 L_{L}_done
    s_load_dwordx2 s[4:5], s[0:1], 0
    s_load_dwordx2 s[8:9], s[0:1], 96
    v_and_b32 v1, 7, v0
    v_lshrrev_b32 v2, 3, v0              ; 8w + cl
    v_and_b32 v3, 7, v2                  ; cl
    v_lshrrev_b32 v4, 6, v0              ; w
    v_lshl_add_u32 v5, v4, 4, v3
    s_lshr_b32 s10, s2, 2
    s_and_b32 s11, s2, 3
    s_lshl_b32 s10, s10, 16
    s_lshl_b32 s11, s11, 7
    s_add_u32 s10, s10, s11
    v_lshlrev_b32 v6, 9, v5
    v_lshl_add_u32 v6, v1, 4, v6
    v_add_u32 v6, s10, v6
    v_lshlrev_b32 v9, 5, v5
    """)
    if src == 'x':
        a("""
        s_lshl_b32 s12, s2, 14
        v_lshlrev_b32 v7, 11, v1
        v_lshl_add_u32 v7, v5, 4, v7
        v_add_u32 v7, s12, v7
        """)
    a("s_waitcnt lgkmcnt(0)")
    if src == 'x':
        srd(a, 12, 4, 2048*1024*2)
        a("buffer_load_dwordx4 v[12:15], v7, s[12:15], 0 offen")
        a("buffer_load_dwordx4 v[16:19], v7, s[12:15], 0 offen offset:128")
    else:
        srd(a, 12, 8, 2048*1024*2, src[1])
        a("v_add_u32 v7, 4096, v6")
        a("buffer_load_dwordx4 v[12:15], v6, s[12:15], 0 offen")
        a("buffer_load_dwordx4 v[16:19], v7, s[12:15], 0 offen")
    srd(a, 16, 8, 6144*4, WS_MOD)
    srd(a, 20, 8, 2048*1024*2, dst_off)
    a(f"s_mov_b32 s24, {scale_idx*4096}")
    a(f"s_mov_b32 s25, {shift_idx*4096}")
    a("buffer_load_dwordx4 v[52:55], v9, s[16:19], s24 offen")
    a("buffer_load_dwordx4 v[56:59], v9, s[16:19], s24 offen offset:16")
    a("buffer_load_dwordx4 v[60:63], v9, s[16:19], s24 offen offset:256")
    a("buffer_load_dwordx4 v[64:67], v9, s[16:19], s24 offen offset:272")
    a("buffer_load_dwordx4 v[68:71], v9, s[16:19], s25 offen")
    a("buffer_load_dwordx4 v[72:75], v9, s[16:19], s25 offen offset:16")
    a("buffer_load_dwordx4 v[76:79], v9, s[16:19], s25 offen offset:256")
    a("buffer_load_dwordx4 v[80:83], v9, s[16:19], s25 offen offset:272")
    a("s_mov_b32 s27, 0xffff0000")
    a("s_waitcnt vmcnt(8)")
    for j in range(8):
        a(f"v_lshlrev_b32 v{20+2*j}, 16, v{12+j}")
        a(f"v_and_b32 v{21+2*j}, s27, v{12+j}")
    def reduce_lanes(r, t):
        a("s_nop 1")
        a(f"v_add_f32_dpp v{r}, v{r}, v{r} row_ror:8 row_mask:0xf bank_mask:0xf")
        a(f"v_mov_b32 v{t}, v{r}")
        a("s_nop 1")
        a(f"v_permlane16_swap_b32 v{r}, v{t}")
        a("s_nop 1")
        a(f"v_add_f32 v{r}, v{r}, v{t}")
        a(f"v_mov_b32 v{t}, v{r}")
        a("s_nop 1")
        a(f"v_permlane32_swap_b32 v{r}, v{t}")
        a("s_nop 1")
        a(f"v_add_f32 v{r}, v{r}, v{t}")
    a("v_add_f32 v36, v20, v21")
    a("v_add_f32 v37, v22, v23")
    for j in range(2, 8):
        a(f"v_add_f32 v{36+(j&1)}, v{36+(j&1)}, v{20+2*j}")
        a(f"v_add_f32 v{36+(j&1)}, v{36+(j&1)}, v{21+2*j}")
    a("v_add_f32 v36, v36, v37")
    reduce_lanes(36, 38)
    a("v_mul_f32 v36, 0x3c000000, v36")
    for j in range(16): a(f"v_sub_f32 v{84+j}, v{20+j}, v36")
    a("v_mul_f32 v37, v84, v84")
    a("v_mul_f32 v39, v85, v85")
    for j in range(2, 16, 2):
        a(f"v_fmac_f32 v37, v{84+j}, v{84+j}")
        a(f"v_fmac_f32 v39, v{85+j}, v{85+j}")
    a("v_add_f32 v37, v37, v39")
    reduce_lanes(37, 38)
    a("""
    v_lshlrev_b32 v40, 6, v1
    v_lshl_add_u32 v41, v4, 3, v40
    v_and_b32 v42, 63, v0
    v_cmp_gt_u32 vcc, 8, v42
    s_and_saveexec_b64 s[30:31], vcc
    ds_write_b64 v41, v[36:37]
    s_mov_b64 exec, s[30:31]
    s_waitcnt lgkmcnt(0)
    s_barrier
    ds_read_b128 v[84:87], v40
    ds_read_b128 v[88:91], v40 offset:16
    ds_read_b128 v[92:95], v40 offset:32
    ds_read_b128 v[96:99], v40 offset:48
    s_waitcnt lgkmcnt(0)
    """)
    a("v_add_f32 v36, v84, v86")
    for j in range(2, 8): a(f"v_add_f32 v36, v36, v{84+2*j}")
    a("v_mul_f32 v36, 0x3e000000, v36")
    a("v_add_f32 v37, v85, v87")
    for j in range(2, 8): a(f"v_add_f32 v37, v37, v{85+2*j}")
    for j in range(8): a(f"v_sub_f32 v{84+2*j}, v{84+2*j}, v36")
    a("v_mul_f32 v38, v84, v84")
    for j in range(1, 8): a(f"v_fmac_f32 v38, v{84+2*j}, v{84+2*j}")
    a(f"""
    v_mov_b32 v39, 0x43000000
    v_fmac_f32 v37, v39, v38             ; M2 total
    v_mov_b32 v39, 0x3727c5ac            ; 1e-5
    v_fmac_f32 v39, 0x3a800000, v37
    v_rsq_f32 v39, v39
    s_waitcnt vmcnt(0)
    """)
    for j in range(16): a(f"v_sub_f32 v{20+j}, v{20+j}, v36")
    for j in range(16): a(f"v_add_f32 v{52+j}, 1.0, v{52+j}")
    for j in range(16): a(f"v_mul_f32 v{20+j}, v{20+j}, v39")
    for j in range(16): a(f"v_fmac_f32 v{68+j}, v{20+j}, v{52+j}")
    if outscale != 1.0:
        a(f"s_mov_b32 s28, {osc}")
        for j in range(16): a(f"v_mul_f32 v{68+j}, s28, v{68+j}")
    for j in range(8): a(f"v_cvt_pk_bf16_f32 v{12+j}, v{68+2*j}, v{69+2*j}")
    a(f"""
    v_add_u32 v7, 4096, v6
    buffer_store_dwordx4 v[12:15], v6, s[20:23], 0 offen
    buffer_store_dwordx4 v[16:19], v7, s[20:23], 0 offen
    L_{L}_done:
    s_endpgm
    """)
    return (name, (256,1,1), (512,1,1), 512), a.text(), kernel_desc(name, 104, sgpr=40)


WS_STAMP = 0x8000000
def stamp_begin(a):
    a("""
    s_memtime s[90:91]
    s_memrealtime s[92:93]
    """)
def stamp_end(a, slot, wsreg):
    a(f"""
    s_waitcnt vmcnt(0) lgkmcnt(0)
    s_memtime s[94:95]
    s_memrealtime s[96:97]
    s_add_u32 s84, s{wsreg}, {WS_STAMP + slot*16384}
    s_addc_u32 s85, s{wsreg+1}, 0
    s_mov_b32 s86, 16384
    s_mov_b32 s87, 0x20000
    s_waitcnt lgkmcnt(0)
    s_sub_u32 s94, s94, s90
    v_mov_b32 v4, s94
    v_mov_b32 v5, s92
    v_mov_b32 v6, s96
    v_mov_b32 v7, s2
    s_lshl_b32 s88, s2, 4
    v_mov_b32 v8, s88
    v_cmp_eq_u32 vcc, 0, v0
    s_and_saveexec_b64 s[98:99], vcc
    s_cbranch_execz L_stamp_skip_{slot}
    buffer_store_dwordx4 v[4:7], v8, s[84:87], 0 offen
    L_stamp_skip_{slot}:
    s_mov_b64 exec, s[98:99]
    """)

def stamp_mid(a, k):
    a(f"""
    s_memtime s[68:69]
    s_waitcnt lgkmcnt(0)
    s_sub_u32 s{70+k}, s68, s90
    """)
def stamp_end2(a, slot, wsreg):
    a(f"""
    s_waitcnt vmcnt(0) lgkmcnt(0)
    s_memtime s[94:95]
    s_memrealtime s[96:97]
    s_add_u32 s84, s{wsreg}, {WS_STAMP + slot*16384}
    s_addc_u32 s85, s{wsreg+1}, 0
    s_mov_b32 s86, 16384
    s_mov_b32 s87, 0x20000
    s_waitcnt lgkmcnt(0)
    s_sub_u32 s94, s94, s90
    v_mov_b32 v4, s94
    v_mov_b32 v5, s92
    v_mov_b32 v6, s96
    v_mov_b32 v7, s70
    v_mov_b32 v8, s71
    v_mov_b32 v9, s72
    v_mov_b32 v10, s73
    v_mov_b32 v11, s74
    s_lshl_b32 s88, s2, 5
    v_mov_b32 v12, s88
    v_cmp_eq_u32 vcc, 0, v0
    s_and_saveexec_b64 s[98:99], vcc
    s_cbranch_execz L_stamp_skip_{slot}
    buffer_store_dwordx4 v[4:7], v12, s[84:87], 0 offen
    buffer_store_dwordx4 v[8:11], v12, s[84:87], 0 offen offset:16
    L_stamp_skip_{slot}:
    s_mov_b64 exec, s[98:99]
    """)
```

```python
import sys, math
from asmlib import *
from gen_small import *
from gen_gemm import *
from gen_attn import *
QS = 128**-0.5 * math.log2(math.e)
def build(kernels, path):
    launches = [k[0] for k in kernels]
    seen = set(); bodies = []; descs = []
    for k in kernels:
        if k[0][0] in seen: continue
        seen.add(k[0][0]); bodies.append(k[1]); descs.append(k[2])
    open(path, "w").write(assemble_file(launches, bodies, descs))
if __name__ == "__main__":
    import hk
    K0 = gen_k0(); LN1 = gen_ln("ln1_kernel", 'x', WS_HF, 0, 1, QS)
    LN2 = gen_ln("ln2_kernel", ('F', WS_X1F), WS_H2F, 3, 4, 1.0)
    OP = gen_gemm("oproj_kernel", "oproj"); F1 = gen_gemm("ffn1_kernel", "ffn1"); F2 = gen_gemm("ffn2_kernel", "ffn2")
    AT = gen_attn("attn_kernel")
    build([K0, LN1], "stage1.s"); hk.build("stage1.s")
    build([K0, LN1, AT], "stage3.s"); hk.build("stage3.s")
    build([K0, LN1, AT, OP, LN2, F1, F2], "full.s"); hk.build("full.s")
    build([OP, LN2, F1, F2], "stage2.s"); hk.build("stage2.s")
```

```python
from asmlib import *
from gen_small import *
from gen_gemm import lane_common, tr_lane_terms

KRING = 65536
VRING = 65536+49152
BIAS = 30.0

def gen_attn(name="attn_kernel", stamp=None, fallback=True, dbg="", pfw=True, pfstride=64):
    a = Asm(); L = name
    kernel_begin(a, name)
    a(f"""
    s_cmp_ge_u32 s2, 256
    s_cbranch_scc1 L_{L}_done
    s_load_dwordx4 s[4:7], s[0:1], 8
    s_load_dwordx2 s[8:9], s[0:1], 24      ; wq
    s_load_dwordx2 s[10:11], s[0:1], 96    ; ws
    s_load_dwordx2 s[60:61], s[0:1], 32    ; wo
    s_load_dwordx4 s[64:67], s[0:1], 48    ; w1 s[64:65], w2 s[66:67]
    """)
    if stamp is not None: stamp_begin(a)
    lane_common(a)
    a("""
    s_and_b32 s21, s2, 7
    s_lshr_b32 s22, s2, 3
    s_and_b32 s23, s21, 3
    s_lshl_b32 s24, s23, 3
    s_and_b32 s25, s22, 7
    s_add_u32 s24, s24, s25                ; head
    s_lshr_b32 s25, s21, 2
    s_lshl_b32 s25, s25, 2
    s_lshr_b32 s26, s22, 3
    s_add_u32 s25, s25, s26
    s_lshl_b32 s25, s25, 3
    s_lshl_b32 s26, s20, 1
    s_add_u32 s25, s25, s26
    v_add_u32 v3, 0x10000, v2
    v_lshrrev_b32 v32, 4, v1               ; L>>4
    v_and_b32 v33, 15, v1                  ; p
    v_lshlrev_b32 v34, 2, v32
    v_xor_b32 v34, v33, v34                ; p ^ ((L>>4)<<2)
    v_lshlrev_b32 v34, 4, v34
    v_lshl_add_u32 v4, v32, 13, v34        ; W: row*8192 + c*16
    v_add_u32 v5, 31744, v4                ; + 4*8192 - 1024
    v_add_u32 v6, 63488, v4
    v_add_u32 v7, 95232, v4
    v_lshl_add_u32 v16, v32, 8, v34        ; V: row*256 + c*16
    """)
    for i in range(4):
        a(f"""
        v_add_u32 v35, {4*i}, v32
        v_xor_b32 v35, v33, v35
        v_lshlrev_b32 v35, 4, v35
        v_lshl_add_u32 v{12+i}, v32, 8, v35
        """)
    tr_lane_terms(a, 32, 33, 34, 35)
    a("""
    v_lshrrev_b32 v35, 1, v34              ; sw>>1
    v_lshl_add_u32 v35, v33, 1, v35        ; c0 = 2*(g&1) + (sw>>1)
    v_bfe_u32 v36, v1, 2, 2                ; i>>2
    v_lshlrev_b32 v37, 2, v36              ; swz = (i>>2)<<2
    v_and_b32 v34, 1, v34
    v_lshlrev_b32 v34, 3, v34              ; half8*8
    v_lshl_add_u32 v38, v32, 8, v34
    v_lshrrev_b32 v39, 5, v1               ; hh
    v_lshl_add_u32 v39, v39, 2, v36        ; 4hh + (i>>2)
    v_lshl_add_u32 v39, v39, 8, v34
    """)
    for db in range(4):
        a(f"""
        v_or_b32 v42, {4*db}, v35
        v_xor_b32 v42, v42, v37
        v_lshl_add_u32 v{8+db}, v42, 4, v38
        v_lshl_add_u32 v{28+db}, v42, 4, v39
        v_add_u32 v{28+db}, {VRING}, v{28+db}
        """)
    a("""
    v_and_b32 v32, 31, v1                  ; r
    v_lshrrev_b32 v33, 5, v1               ; hh
    v_and_b32 v34, 15, v1
    """)
    for ds in range(8):
        a(f"""
        v_or_b32 v35, {2*ds}, v33
        v_xor_b32 v35, v35, v34
        v_lshlrev_b32 v35, 4, v35
        v_lshl_add_u32 v{20+ds}, v32, 8, v35
        v_add_u32 v{20+ds}, {KRING}, v{20+ds}
        """)
    a("s_waitcnt lgkmcnt(0)")
    if stamp is not None: stamp_mid(a, 0)
    srd(a, 12, 8, 1024*4096*2)
    a(f"""
    s_lshl_b32 s26, s25, 16
    s_add_u32 s26, s26, {WS_HF}
    s_add_u32 s16, s10, s26
    s_addc_u32 s17, s11, 0
    s_mov_b32 s18, 131072
    s_mov_b32 s19, 0x20000
    """)
    srd(a, 32, 4, 4*2048*128*2)
    srd(a, 36, 6, 4*2048*128*2)
    srd(a, 40, 10, 2048*4096*2, WS_OF)
    a(f"""
    s_mul_i32 s28, s20, {16*8192}
    s_lshl_b32 s26, s24, 8
    s_add_u32 s28, s28, s26                ; W soffset
    s_mov_b32 s29, 0                       ; h soffset
    s_lshl_b32 s30, s20, 12
    s_lshl_b32 s44, s23, 19                ; g*524288
    s_add_u32 s44, s44, {1536*256}
    s_add_u32 s44, s44, s30
    """)
    span = 64*pfstride
    a(f"""
    s_lshl_b32 s26, s2, 2
    s_add_u32 s26, s26, s20
    s_mul_i32 s26, s26, 8192
    v_mul_u32_u24 v17, {pfstride}, v1
    v_add_u32 v17, s26, v17
    s_mov_b32 s62, 0
    s_mov_b32 s79, 0x20000
    s_mov_b32 s80, {4096*1024*2}
    s_mov_b32 s81, {3584*1024*2}
    """)
    def pf_weights():
        if not pfw: return
        nper = 8192//span
        sh = {1: 0, 2: 1}[nper]
        a(f"""
        s_lshr_b32 s63, s62, {sh}
        s_cmp_eq_u32 s63, 0
        s_cselect_b32 s76, s60, s64
        s_cselect_b32 s77, s61, s65
        s_cselect_b32 s78, s80, s81
        s_cmp_eq_u32 s63, 2
        s_cselect_b32 s76, s66, s76
        s_cselect_b32 s77, s67, s77
        s_cmp_ge_u32 s63, 3
        s_cselect_b32 s78, 0, s78
        s_and_b32 s63, s62, {nper-1}
        s_mul_i32 s63, s63, {span}
        s_add_u32 s62, s62, 1
        buffer_load_dword v18, v17, s[76:79], s63 offen
        """)
    QACC = 64
    def qacc(db, qb): r = QACC+(2*db+qb)*16; return r
    def hbuf(buf, qb, ks): r = 32*buf+16*qb+4*ks; return f"a[{r}:{r+3}]"
    def wfr(q, db): return 128+(q % 2)*16+4*db
    def w_dma(slot):
        a(f"s_add_u32 m0, s30, {slot*16384}")
        a("s_nop 0")
        for j in range(4): a(f"buffer_load_dwordx4 v{4+j}, s[12:15], s28 offen offset:{1024*j} lds")
        a(f"s_add_u32 s28, s28, {64*8192}")
    def h_load(buf, ks):
        a(f"buffer_load_dwordx4 {hbuf(buf,0,ks)}, v2, s[16:19], s29 offen offset:{1024*ks}")
        a(f"buffer_load_dwordx4 {hbuf(buf,1,ks)}, v3, s[16:19], s29 offen offset:{1024*ks}")
    def k_dma(ldsoff_expr, tile_soff):
        a(f"s_add_u32 m0, s30, {ldsoff_expr}")
        a("s_nop 0")
        for j in range(4): a(f"buffer_load_dwordx4 v{12+j}, s[32:35], {tile_soff} offen offset:{1024*j} lds")
    def v_dma(ldsoff_expr, tile_soff):
        a(f"s_add_u32 m0, s30, {ldsoff_expr}")
        a("s_nop 0")
        for j in range(4): a(f"buffer_load_dwordx4 v16, s[36:39], {tile_soff} offen offset:{1024*j} lds")
    def wreads(t, ks):
        q = 4*t+ks; slot = t % 4; out = []
        for db in range(4):
            r = wfr(q, db)
            for hf in range(2):
                out.append(f"ds_read_b64_tr_b16 a[{r+2*hf}:{r+2*hf+1}], v{8+db} offset:{slot*16384+(16*ks+4*hf)*256}")
        return out
    for i in range(128): a(f"v_mov_b32 v{QACC+i}, 0")
    for t in range(4):
        for ks in range(3): h_load(t, ks)
        w_dma(t)
        h_load(t, 3); a("s_add_u32 s29, s29, 4096")
    a(f"s_add_u32 s45, s44, {16384}")
    k_dma(KRING, "s44"); k_dma(KRING+16384, "s45"); v_dma(VRING, "s44")
    a(f"s_waitcnt vmcnt({36+12})")
    a("s_barrier")
    for s in wreads(0, 0): a(s)
    if stamp is not None: stamp_mid(a, 1); a("s_nop 0")
    def qbody(tail):
        for t in range(4):
            last = tail and t == 3
            for ks in range(4):
                if ks == 3 and not last:
                    n = 30 if not tail else (2-t)*12
                    a(f"s_waitcnt vmcnt({n}) lgkmcnt(0)")
                    a("s_barrier")
                if ks < 3: rl = wreads(t, ks+1)
                else: rl = [] if last else wreads(t+1, 0)
                q = 4*t+ks
                for db in range(4):
                    if not (ks == 3 and not last):
                        a(f"s_waitcnt lgkmcnt({6 if rl else 2*(3-db)})")
                    r = wfr(q, db)
                    for qb in range(2):
                        c = qacc(db, qb)
                        a(f"v_mfma_f32_32x32x16_bf16 v[{c}:{c+15}], a[{r}:{r+3}], {hbuf(t,qb,ks)}, v[{c}:{c+15}]")
                        if qb == 0:
                            for s in rl[2*db:2*db+2]: a(s)
                    if ks == 3 and db == 0 and not tail: w_dma(t)
                if not tail:
                    h_load(t, ks)
                    if ks == 3: a("s_add_u32 s29, s29, 4096")
    a("s_mov_b32 s31, 3")
    a(f"L_{L}_qloop:")
    qbody(False)
    a(f"""
    s_sub_u32 s31, s31, 1
    s_cmp_lg_u32 s31, 0
    s_cbranch_scc1 L_{L}_qloop
    """)
    qbody(True)
    if stamp is not None: stamp_mid(a, 2)
    QF = 192
    def qf(qb, ds): r = QF+32*qb+4*ds; return f"v[{r}:{r+3}]"
    a(f"s_add_u32 s45, s44, {2*16384}")
    k_dma(KRING+2*16384, "s45")
    a(f"s_add_u32 s45, s44, {16384}")
    v_dma(VRING+16384, "s45")
    pf_weights()
    a("s_nop 7")
    for qb in range(2):
        for ds in range(8):
            c = qacc(ds >> 1, qb)+8*(ds & 1)
            for j in range(4):
                a(f"v_cvt_pk_bf16_f32 v{QF+32*qb+4*ds+j}, v{c+2*j}, v{c+2*j+1}")
    def S(b, qb): return 64+32*b+16*qb
    def P(b, qb, ks): return 128+16*b+8*qb+4*ks
    def NM(qb): return 160+16*qb
    def O(db, qb): return (2*db+qb)*16
    RING = 128
    LREG = (40, 41)
    PDI = 4
    def item_reads(it, slot):
        r = RING+4*(slot % 8)
        if it[0] == 'K':
            _, half, ds = it[:3]
            return [f"ds_read_b128 a[{r}:{r+3}], v{20+ds} offset:{half*8192}"]
        _, half, ks, db = it[:4]
        return [f"ds_read_b64_tr_b16 a[{r+2*hf}:{r+2*hf+1}], v{28+db} offset:{(half*32+16*ks+8*hf)*256}" for hf in range(2)]
    def item_mfma(it, slot, qb):
        r = RING+4*(slot % 8)
        if it[0] == 'K':
            _, half, ds, sb, cmode = it
            d = S(sb, qb)
            if ds == 0: c = "0" if cmode == 'zero' else f"v[{NM(qb)}:{NM(qb)+15}]"
            else: c = f"v[{d}:{d+15}]"
            return f"v_mfma_f32_32x32x16_bf16 v[{d}:{d+15}], a[{r}:{r+3}], {qf(qb, ds)}, {c}"
        _, half, ks, db, pb = it
        o = O(db, qb); p = P(pb, qb, ks)
        return f"v_mfma_f32_32x32x16_bf16 a[{o}:{o+15}], a[{r}:{r+3}], v[{p}:{p+3}], a[{o}:{o+15}]"
    def nreads(it): return 1 if it[0] == 'K' else 2
    def softmax_ops(sb, pb):
        ops = []; prev = None
        for qb in range(2):
            for j in range(8):
                e0 = S(sb, qb)+2*j; e1 = e0+1
                ops.append(f"v_exp_f32 v{e0}, v{e0}")
                ops.append(f"v_exp_f32 v{e1}, v{e1}")
                if prev: ops += prev
                prev = [f"v_add_f32 v{LREG[qb]}, v{LREG[qb]}, v{e0}",
                        f"v_cvt_pk_bf16_f32 v{P(pb, qb, j >> 2)+(j & 3)}, v{e0}, v{e1}",
                        f"v_add_f32 v{LREG[qb]}, v{LREG[qb]}, v{e1}"]
        ops.append("s_nop 0"); ops += prev
        return ops
    def emit_items(items, future, valu, extra=None, slot0=0, pre_issued=True):
        seq = items+future
        n = len(items); gaps = 2*n
        vi = 0
        for i, it in enumerate(items):
            young = sum(nreads(x) for x in seq[i+1:i+PDI])
            a(f"s_waitcnt lgkmcnt({young})")
            a(item_mfma(it, slot0+i, 0))
            if extra and i in extra: extra[i]()
            if i+PDI < len(seq):
                for s in item_reads(seq[i+PDI], slot0+i+PDI): a(s)
            tgt = (len(valu)*(2*i+1))//gaps
            while vi < tgt: a(valu[vi]); vi += 1
            a(item_mfma(it, slot0+i, 1))
            tgt = (len(valu)*(2*i+2))//gaps
            while vi < tgt: a(valu[vi]); vi += 1
        assert vi == len(valu)
    def kitems(half, sb, cmode='nm'): return [('K', half, ds, sb, cmode) for ds in range(8)]
    def vitems(half, pb): return [('V', half, ks, db, pb) for ks in range(2) for db in range(4)]

    a(f"L_{L}_att:")
    a("v_mov_b32 v40, 0\nv_mov_b32 v41, 0")
    head1 = kitems(0, 0, 'zero'); head2 = kitems(1, 1)
    for i in range(PDI):
        for s in item_reads(head1[i], i): a(s)
    zinit = [f"v_accvgpr_write_b32 a{i}, 0" for i in range(128)]
    emit_items(head1, head2, zinit, slot0=0)
    a("s_nop 7\ns_nop 7")
    if fallback:
        a(f"s_cmp_eq_u32 s46, 1\ns_cbranch_scc1 L_{L}_havem")
    for qb in range(2):
        s = S(0, qb); m = 42+qb
        a(f"v_max3_f32 v{m}, v{s}, v{s+1}, v{s+2}")
        for j in range(3, 15, 2): a(f"v_max3_f32 v{m}, v{m}, v{s+j}, v{s+j+1}")
        a(f"v_max_f32 v{m}, v{m}, v{s+15}")
    a("v_mov_b32 v44, v42\nv_mov_b32 v45, v43\ns_nop 1")
    a("v_permlane32_swap_b32 v42, v44\nv_permlane32_swap_b32 v43, v45\ns_nop 1")
    a("v_max_f32 v42, v42, v44\nv_max_f32 v43, v43, v45")
    a(f"v_sub_f32 v42, {-BIAS}, v42\nv_sub_f32 v43, {-BIAS}, v43".replace("-30.0", "0xc1f00000"))
    if fallback: a(f"L_{L}_havem:")
    for qb in range(2):
        for j in range(16): a(f"v_mov_b32 v{NM(qb)+j}, v{42+qb}")
        for j in range(16): a(f"v_add_f32 v{S(0,qb)+j}, v{S(0,qb)+j}, v{42+qb}")
    body_a = kitems(0, 0)+vitems(0, 0)
    body_b = kitems(1, 1)+vitems(1, 1)
    def adv_k_first():
        for ds in range(8): a(f"v_add_u32 v{20+ds}, 16384, v{20+ds}")
    emit_items(head2, body_a[:PDI], softmax_ops(0, 0), extra={4: adv_k_first}, slot0=8)
    a(f"""
    s_mov_b32 s47, 16384
    s_mov_b32 s48, 1
    s_add_u32 s49, s44, 16384
    L_{L}_aloop:
    s_add_u32 s50, s47, 16384
    s_cmp_eq_u32 s50, 49152
    s_cselect_b32 s50, 0, s50
    s_add_u32 s51, s50, 16384
    s_cmp_eq_u32 s51, 49152
    s_cselect_b32 s51, 0, s51
    s_sub_u32 s52, s50, s47               ; delta K
    s_sub_u32 s53, s47, s51               ; delta V
    """)
    emit_items(body_a, body_b[:PDI], softmax_ops(1, 1), slot0=0)
    def adv_k():
        for ds in range(8): a(f"v_add_u32 v{20+ds}, s52, v{20+ds}")
    def sync_and_dma():
        a(f"s_waitcnt vmcnt({1 if pfw else 0})")
        a("s_barrier")
        a(f"""
        s_cmp_ge_u32 s48, 7
        s_cbranch_scc1 L_{L}_nov
        s_add_u32 s45, s49, 16384
        s_add_u32 s54, s50, {VRING}
        """)
        v_dma("s54", "s45")
        a(f"""
        s_cmp_ge_u32 s48, 6
        s_cbranch_scc1 L_{L}_nov
        s_add_u32 s45, s49, 32768
        s_add_u32 s54, s51, {KRING}
        """)
        k_dma("s54", "s45")
        a(f"L_{L}_nov:")
        pf_weights()
    def adv_v():
        for db in range(4): a(f"v_add_u32 v{28+db}, s53, v{28+db}")
    ex = {4: adv_k, 12: lambda: (sync_and_dma(), adv_v())}
    emit_items(body_b, body_a[:PDI], softmax_ops(0, 0), extra=ex, slot0=16)
    a(f"""
    s_mov_b32 s47, s50
    s_add_u32 s49, s49, 16384
    s_add_u32 s48, s48, 1
    s_cmp_lt_u32 s48, 8
    s_cbranch_scc1 L_{L}_aloop
    s_waitcnt lgkmcnt(0)
    """)
    t1 = vitems(0, 0); t2 = vitems(1, 1)
    for i in range(PDI):
        for s in item_reads(t1[i], i): a(s)
    emit_items(t1, t2[:PDI], softmax_ops(1, 1), slot0=0)
    a("s_nop 1")
    emit_items(t2, [], [], slot0=8)
    if stamp is not None: stamp_mid(a, 3)
    a("""
    v_mov_b32 v44, v40
    v_mov_b32 v45, v41
    s_nop 1
    v_permlane32_swap_b32 v40, v44
    v_permlane32_swap_b32 v41, v45
    s_nop 1
    v_add_f32 v40, v40, v44
    v_add_f32 v41, v41, v45
    """)
    if fallback:
        a(f"""
        s_cmp_eq_u32 s46, 1
        s_cbranch_scc1 L_{L}_fin
        v_mov_b32 v46, 0x6c800000          ; 2^90
        v_cmp_nle_f32 vcc, v40, v46
        v_cmp_nle_f32 s[56:57], v41, v46
        s_or_b64 vcc, vcc, s[56:57]
        s_cmp_lg_u64 vcc, 0
        s_cselect_b32 s58, 1, 0
        v_mov_b32 v46, s58
        v_mov_b32 v47, s30
        v_lshrrev_b32 v47, 10, v47         ; w*4
        s_barrier
        ds_write_b32 v47, v46
        s_waitcnt lgkmcnt(0)
        s_barrier
        v_mov_b32 v47, 0
        ds_read_b128 v[48:51], v47
        s_waitcnt lgkmcnt(0)
        v_or_b32 v48, v48, v49
        v_or_b32 v50, v50, v51
        v_or_b32 v48, v48, v50
        s_nop 0
        v_readfirstlane_b32 s58, v48
        s_cmp_eq_u32 s58, 0
        s_cbranch_scc1 L_{L}_fin
        """)
        a(f"""
        s_barrier
        v_mov_b32 v42, 0xff800000
        v_mov_b32 v43, 0xff800000
        s_mov_b32 s48, 0
        s_mov_b32 s49, s44
        ; K read addresses back to slot 0 : current slot offset is s47 (tile 8 % 3), registers point there
        L_{L}_fbsub:
        """)
        for ds in range(8): a(f"v_subrev_u32 v{20+ds}, s47, v{20+ds}")
        a(f"L_{L}_fbloop:")
        k_dma(KRING, "s49")
        a("s_waitcnt vmcnt(0)\ns_barrier")
        for half in range(2):
            for ds in range(8):
                a(f"ds_read_b128 a[{RING+4*ds}:{RING+4*ds+3}], v{20+ds} offset:{half*8192}")
            a("s_waitcnt lgkmcnt(0)")
            for ds in range(8):
                for qb in range(2):
                    d = S(0, qb); c = "0" if ds == 0 else f"v[{d}:{d+15}]"
                    a(f"v_mfma_f32_32x32x16_bf16 v[{d}:{d+15}], a[{RING+4*ds}:{RING+4*ds+3}], {qf(qb, ds)}, {c}")
            a("s_nop 7\ns_nop 7")
            for qb in range(2):
                s = S(0, qb); m = 42+qb
                for j in range(0, 16, 2): a(f"v_max3_f32 v{m}, v{m}, v{s+j}, v{s+j+1}")
        a(f"""
        s_barrier
        s_add_u32 s49, s49, 16384
        s_add_u32 s48, s48, 1
        s_cmp_lt_u32 s48, 8
        s_cbranch_scc1 L_{L}_fbloop
        v_mov_b32 v44, v42
        v_mov_b32 v45, v43
        s_nop 1
        v_permlane32_swap_b32 v42, v44
        v_permlane32_swap_b32 v43, v45
        s_nop 1
        v_max_f32 v42, v42, v44
        v_max_f32 v43, v43, v45
        v_sub_f32 v42, 0, v42
        v_sub_f32 v43, 0, v43
        s_mov_b32 s46, 1
        """)
        for db in range(4): a(f"v_subrev_u32 v{28+db}, 16384, v{28+db}")
        a(f"s_add_u32 s45, s44, 16384")
        k_dma(KRING, "s44"); k_dma(KRING+16384, "s45"); v_dma(VRING, "s44"); v_dma(VRING+16384, "s45")
        a(f"s_add_u32 s45, s44, 32768")
        k_dma(KRING+32768, "s45")
        a(f"""
        s_waitcnt vmcnt(0)
        s_barrier
        s_branch L_{L}_att
        L_{L}_fin:
        """)
    a("""
    v_rcp_f32 v40, v40
    v_rcp_f32 v41, v41
    s_nop 7
    s_nop 7
    """)
    for qb in range(2):
        a(f"""
        s_add_u32 s26, s25, {qb}
        s_mul_i32 s26, s26, {4096*64}
        s_lshl_b32 s27, s24, 13
        s_add_u32 s26, s26, s27
        """)
        for db in range(4):
            o = O(db, qb)
            for j in range(16): a(f"v_accvgpr_read_b32 v{64+j}, a{o+j}")
            for j in range(16): a(f"v_mul_f32 v{64+j}, v{64+j}, v{40+qb}")
            t = 80+8*(db & 1)
            for j in range(8): a(f"v_cvt_pk_bf16_f32 v{t+j}, v{64+2*j}, v{64+2*j+1}")
            if db == 2: a("s_add_u32 s26, s26, 4096")
            a(f"buffer_store_dwordx4 v[{t}:{t+3}], v2, s[40:43], s26 offen offset:{(db&1)*2048}")
            a(f"buffer_store_dwordx4 v[{t+4}:{t+7}], v2, s[40:43], s26 offen offset:{(db&1)*2048+1024}")
    if stamp is not None:
        stamp_mid(a, 4); stamp_end2(a, stamp, 10)
    a(f"""
    L_{L}_done:
    s_endpgm
    """)
    txt = a.text()
    txt = txt.replace(f"L_{L}_qloop:", f"s_mov_b32 s46, 0\nL_{L}_qloop:")
    return (name, (256,1,1), (256,1,1), 163840), txt, kernel_desc(name, 256+192, accum=256)
```

```python
from asmlib import *
from gen_small import *

def lane_common(a):
    a("""
    v_lshrrev_b32 v2, 6, v0
    v_and_b32 v1, 63, v0
    v_readfirstlane_b32 s20, v2
    v_lshlrev_b32 v2, 4, v1
    """)

def tr_lane_terms(a, vk, vg1, vsw, t0):
    a(f"""
    v_lshrrev_b32 v{t0}, 5, v1            ; g>>1
    v_bfe_u32 v{vk}, v1, 2, 2             ; i>>2
    v_lshl_add_u32 v{vk}, v{t0}, 3, v{vk}
    v_bfe_u32 v{vg1}, v1, 4, 1
    v_and_b32 v{t0}, 1, v1
    v_bfe_u32 v{vsw}, v1, 1, 1
    v_lshl_or_b32 v{vsw}, v{t0}, 1, v{vsw}
    """)

def gen_gemm(name, kind, dbg="", stamp=None):
    a0 = Asm(); L = name
    class A2:
        inloop = False
        def __call__(self, txt=""):
            if self.inloop:
                out = []
                for l in txt.split("\n"):
                    t = l.strip()
                    if "novmem" in dbg and t.startswith("buffer_load"): continue
                    if "noact" in dbg and t.startswith("buffer_load") and not t.endswith("lds"): continue
                    if "now" in dbg and t.startswith("buffer_load") and t.endswith("lds"): continue
                    if "nolds" in dbg and t.startswith("ds_read"): continue
                    if "nomfma" in dbg and t.startswith("v_mfma"): continue
                    if "nobar" in dbg and t.startswith("s_barrier"): continue
                    out.append(l)
                txt = "\n".join(out)
            a0(txt)
        def raw(self, s): a0.raw(s)
        def text(self): return a0.text()
    a = A2()
    if kind == "oproj":
        NB, KT, NSLOT, PD = 2, 64, 8, 4
        w_arg, w_stride, w_bytes = 32, 2048, 4096*1024*2
        act_off, actK = WS_OF, 4096
    elif kind == "ffn2":
        NB, KT, NSLOT, PD = 2, 56, 8, 4
        w_arg, w_stride, w_bytes = 56, 2048, 3584*1024*2
        act_off, actK = WS_HIDF, 3584
    elif kind == "ffn1":
        NB, KT, NSLOT, PD = 7, 16, 4, 1
        w_arg, w_stride, w_bytes = 48, 7168, 1024*3584*2
        act_off, actK = WS_H2F, 1024
    wlin = "wlin" in dbg
    if wlin:
        w_stride = NB*64
    PFS = 15
    ROWB = NB*64
    SLOT = 64*ROWB
    ND = SLOT//1024//4
    D = NSLOT-1 if PD == 4 else NSLOT
    NBUF = NSLOT
    ACC = 64
    def acc(nb): return f"v[{ACC+16*nb}:{ACC+16*nb+15}]"
    ACT = 0
    def act(buf, ks): r = ACT+16*buf+4*ks; return f"a[{r}:{r+3}]"
    FR = NBUF*16
    NRING = 8 if PD == 4 else 2
    def frag(q, nb): r = FR+(q % NRING)*NB*4+nb*4; return r
    NAG = FR+NRING*NB*4
    kernel_begin(a, name)
    a(f"""
    s_cmp_ge_u32 s2, 256
    s_cbranch_scc1 L_{L}_done
    s_load_dwordx2 s[4:5], s[0:1], {w_arg}
    s_load_dwordx2 s[6:7], s[0:1], 96
    s_load_dwordx2 s[8:9], s[0:1], 0
    s_load_dwordx2 s[10:11], s[0:1], 80
    """)
    if stamp is not None: stamp_begin(a)
    lane_common(a)
    a("s_and_b32 s21, s2, 7\ns_lshr_b32 s22, s2, 3")
    if NB == 2:
        a("""
        s_lshr_b32 s23, s21, 1
        s_lshl_b32 s23, s23, 2
        s_lshr_b32 s24, s22, 3
        s_add_u32 s23, s23, s24
        s_and_b32 s24, s21, 1
        s_lshl_b32 s24, s24, 3
        s_and_b32 s25, s22, 7
        s_add_u32 s24, s24, s25          ; n tile
        s_lshl_b32 s25, s24, 7
        """)
    else:
        a("""
        s_lshr_b32 s23, s21, 2
        s_lshl_b32 s23, s23, 3
        s_lshr_b32 s24, s22, 2
        s_add_u32 s23, s23, s24
        s_and_b32 s24, s21, 3
        s_lshl_b32 s24, s24, 2
        s_and_b32 s25, s22, 3
        s_add_u32 s24, s24, s25          ; n tile
        s_mul_i32 s25, s24, 448
        """)
    if "sameN" in dbg: a("s_mov_b32 s24, 0\ns_mov_b32 s25, 0")
    if "sameT" in dbg: a("s_mov_b32 s23, 0")
    a("""
    s_lshl_b32 s23, s23, 2
    s_add_u32 s23, s23, s20
    """)
    if NB == 2:
        a("""
        v_lshrrev_b32 v3, 3, v1          ; row_in
        v_and_b32 v4, 7, v1              ; p
        v_bfe_u32 v5, v1, 4, 1           ; (row_in>>1)&1
        v_lshlrev_b32 v5, 2, v5
        v_xor_b32 v4, v4, v5             ; c
        v_lshlrev_b32 v4, 4, v4
        v_lshl_add_u32 v8, v3, WSH, v4
        v_add_u32 v9, WADD, v8          ; +8 rows*stride - 1024
        """.replace("WSH", "7" if wlin else "11").replace("WADD", "0" if wlin else "15360"))
    else:
        a("s_mov_b32 s26, 0x924924a")
        a(f"s_mov_b32 s27, {w_stride}")
        for j in range(ND):
            a(f"""
            v_add_u32 v3, {64*j}, v1
            v_mul_hi_u32 v4, v3, s26     ; row
            v_mul_u32_u24 v5, 28, v4
            v_sub_u32 v5, v3, v5         ; chunk
            v_mul_lo_u32 v4, v4, s27
            v_lshl_add_u32 v4, v5, 4, v4
            v_subrev_u32 v{8+j}, {1024*(j%4)}, v4
            """)
    tr_lane_terms(a, 3, 4, 5, 6)
    if NB == 2:
        a("""
        v_lshrrev_b32 v6, 1, v5          ; sw>>1
        v_lshl_add_u32 v6, v4, 1, v6     ; 2*(g&1) + (sw>>1)
        v_bfe_u32 v7, v1, 3, 1
        v_lshlrev_b32 v7, 2, v7          ; swz
        v_and_b32 v5, 1, v5
        v_lshlrev_b32 v5, 3, v5          ; half8*8
        v_lshl_add_u32 v5, v3, 7, v5     ; k*128 + half8*8
        v_xor_b32 v16, v6, v7
        v_or_b32 v6, 4, v6
        v_xor_b32 v17, v6, v7
        v_lshl_add_u32 v16, v16, 4, v5
        v_lshl_add_u32 v17, v17, 4, v5
        """)
    else:
        a(f"""
        v_mul_u32_u24 v3, {ROWB}, v3
        v_lshlrev_b32 v4, 5, v4
        v_lshlrev_b32 v5, 3, v5
        v_add3_u32 v16, v3, v4, v5
        v_add_u32 v17, {2*SLOT}, v16
        """)
    a("s_waitcnt lgkmcnt(0)")
    if stamp is not None: stamp_mid(a, 0)
    if wlin:
        srd(a, 12, 6, w_bytes, WS_WLIN + (0 if kind == "oproj" else 0x800000))
        a(f"s_mul_i32 s45, s24, {actK*128}")
    else:
        srd(a, 12, 4, w_bytes)
    a(f"""
    s_mul_i32 s26, s23, {actK*64}
    s_add_u32 s26, s26, {act_off}
    s_add_u32 s16, s6, s26
    s_addc_u32 s17, s7, 0
    s_mov_b32 s18, {actK*64}
    s_mov_b32 s19, 0x20000
    s_mul_i32 s28, s20, {16*w_stride}
    s_add_u32 s28, s28, {"s45" if wlin else "s25"}
    s_mov_b32 s29, 0
    s_mul_i32 s30, s20, {SLOT//4}
    """)
    pf = "pf" in dbg.split("_")
    if pf:
        a(f"""
        s_lshr_b32 s46, s2, 3
        s_and_b32 s47, s46, 7
        s_lshr_b32 s46, s46, 3
        s_lshl_b32 s46, s46, 2
        s_add_u32 s46, s46, s20          ; q
        s_lshl_b32 s47, s47, 12
        v_lshlrev_b32 v18, 6, v1
        v_add_u32 v18, s47, v18
        v_lshrrev_b32 v19, 1, v1
        v_and_b32 v3, 1, v1
        v_mul_u32_u24 v19, {w_stride}, v19
        v_lshl_add_u32 v19, v3, 6, v19
        s_mul_i32 s46, s46, {32*w_stride}
        s_add_u32 s46, s46, {"s45" if wlin else "s25"}
        s_add_u32 s46, s46, {PFS*64*w_stride}
        s_mov_b32 s47, {PFS*4096}
        """)
    npre = 0
    if kind == "oproj":
        srd(a, 32, 8, 2048*1024*2)
        srd(a, 36, 6, 6144*4, WS_MOD)
        srd(a, 40, 6, 2048*1024*2, WS_X1F)
        a(f"""
        v_and_b32 v3, 31, v1
        v_lshrrev_b32 v4, 5, v1
        s_lshl_b32 s26, s23, 16          ; tb*32*2048
        s_add_u32 s26, s26, s25
        v_lshlrev_b32 v3, 11, v3
        v_lshl_add_u32 v3, v4, 4, v3
        v_lshlrev_b32 v4, 5, v4
        s_lshl_b32 s27, s25, 1
        s_add_u32 s27, s27, {2*4096}
        """)
        for nb in range(2):
            for s in range(2):
                j = nb*2+s
                a(f"buffer_load_dwordx4 v[{20+4*j}:{23+4*j}], v3, s[32:35], s26 offen offset:{nb*64+s*32}")
        for nb in range(2):
            for s in range(2):
                j = nb*2+s
                a(f"buffer_load_dwordx4 v[{192+8*j}:{195+8*j}], v4, s[36:39], s27 offen offset:{nb*128+s*64}")
                a(f"buffer_load_dwordx4 v[{196+8*j}:{199+8*j}], v4, s[36:39], s27 offen offset:{nb*128+s*64+16}")
        npre = 12
    elif kind == "ffn2":
        srd(a, 32, 6, 2048*1024*2, WS_X1F)
        srd(a, 36, 6, 6144*4, WS_MOD)
        srd(a, 40, 10, 2048*1024*2)
        a(f"""
        v_lshrrev_b32 v4, 5, v1
        s_lshl_b32 s26, s23, 16          ; tb*65536
        s_lshl_b32 s27, s24, 12
        s_add_u32 s26, s26, s27
        v_lshlrev_b32 v4, 5, v4
        s_lshl_b32 s27, s25, 1
        s_add_u32 s27, s27, {5*4096}
        """)
        for j in range(4):
            a(f"buffer_load_dwordx4 v[{20+4*j}:{23+4*j}], v2, s[32:35], s26 offen offset:{j*1024}")
        for nb in range(2):
            for s in range(2):
                j = nb*2+s
                a(f"buffer_load_dwordx4 v[{192+8*j}:{195+8*j}], v4, s[36:39], s27 offen offset:{nb*128+s*64}")
                a(f"buffer_load_dwordx4 v[{196+8*j}:{199+8*j}], v4, s[36:39], s27 offen offset:{nb*128+s*64+16}")
        npre = 12
    else:
        srd(a, 40, 6, 2048*3584*2, WS_HIDF)
    for i in range(NB*16): a(f"v_mov_b32 v{ACC+i}, 0")

    def w_dma(slot):
        a(f"s_add_u32 m0, s30, {slot*SLOT}")
        a("s_nop 0")
        for j in range(ND):
            if j == 4:
                a(f"s_add_u32 m0, s30, {slot*SLOT+4096}")
                a("s_nop 0")
            a(f"buffer_load_dwordx4 v{8+j}, s[12:15], s28 offen offset:{1024*(j%4)} lds")
        a(f"s_add_u32 s28, s28, {64*w_stride}")
    def act_load(buf, ks):
        a(f"buffer_load_dwordx4 {act(buf,ks)}, v2, s[16:19], s29 offen offset:{1024*ks}")
    def act_adv(): a("s_add_u32 s29, s29, 4096")
    def frag_read_list(t, ks):
        q = 4*t+ks; slot = t % NSLOT; out = []
        for nb in range(NB):
            r = frag(q, nb)
            for hf in range(2):
                if NB == 2:
                    out.append(f"ds_read_b64_tr_b16 a[{r+2*hf}:{r+2*hf+1}], v{16+nb} offset:{slot*SLOT+(16*ks+4*hf)*ROWB}")
                else:
                    base = 16 if slot < 2 else 17
                    out.append(f"ds_read_b64_tr_b16 a[{r+2*hf}:{r+2*hf+1}], v{base} offset:{(slot%2)*SLOT+(16*ks+4*hf)*ROWB+64*nb}")
        return out
    def mfma(t, ks, nb):
        q = 4*t+ks; r = frag(q, nb)
        a(f"v_mfma_f32_32x32x16_bf16 {acc(nb)}, a[{r}:{r+3}], {act(t % NBUF, ks)}, {acc(nb)}")

    if PD == 4:
        for t in range(D):
            w_dma(t % NSLOT)
            for ks in range(4): act_load(t % NBUF, ks)
            act_adv()
        a(f"s_waitcnt vmcnt({4+(D-1)*(ND+4)})")
        a("s_barrier")
        for ks in range(4):
            for s in frag_read_list(0, ks): a(s)
    else:
        for t in range(D):
            for ks in range(3): act_load(t, ks)
            w_dma(t)
            act_load(t, 3); act_adv()
        a(f"s_waitcnt vmcnt({(D-1)*(ND+4)})")
        a("s_barrier")
        for s in frag_read_list(0, 0): a(s)

    if stamp is not None: stamp_mid(a, 1)
    def body(t0, tail):
        for u in range(NSLOT):
            t = u
            if pf and u == 0 and not tail:
                a("buffer_load_dword v60, v18, s[16:19], s47 offen")
                a("buffer_load_dword v61, v19, s[12:15], s46 offen")
                a(f"s_add_u32 s47, s47, {8*4096}")
                a(f"s_add_u32 s46, s46, {8*64*w_stride}")
            tt = (KT-NSLOT+u) if tail else None
            has_load = (not tail) or (tt+D < KT)
            last = tail and u == NSLOT-1
            if PD == 4:
                if not last:
                    if not tail: n = 4+(D-2)*(ND+4)+(2 if (pf and u <= D-2+0 and u < 6) else 0)
                    else:
                        rem = KT-1-(tt+1)
                        rem = min(rem, D-2)
                        n = 4+rem*(ND+4)
                    a(f"s_waitcnt vmcnt({n})")
                    a("s_barrier")
                else:
                    a("s_waitcnt vmcnt(0)")
                reads = [] if last else [frag_read_list(t+1, ks) for ks in range(4)]
                for ks in range(4):
                    younger = 3*2*NB if not last else (3-ks)*2*NB
                    a(f"s_waitcnt lgkmcnt({min(15, younger)})")
                    rl = list(reads[ks]) if reads else []
                    mfma(t, ks, 0)
                    for s in rl[:2]: a(s)
                    if ks == 0 and has_load: w_dma((t+D) % NSLOT)
                    if ks >= 0 and has_load and ks > 0: act_load((t+D) % NBUF, ks-1)
                    mfma(t, ks, 1)
                    for s in rl[2:]: a(s)
                if has_load:
                    act_load((t+D) % NBUF, 3); act_adv()
            else:
                for ks in range(4):
                    if ks == 3 and not last:
                        if not tail: n = 2*(ND+4)+3
                        else:
                            n = min(KT-1-(tt+1), 2)*(ND+4)
                        a(f"s_waitcnt vmcnt({n}) lgkmcnt(0)")
                        a("s_barrier")
                    if ks < 3: rl = frag_read_list(t, ks+1)
                    else: rl = [] if last else frag_read_list(t+1, 0)
                    for nb in range(NB):
                        if not (ks == 3 and not last):
                            a(f"s_waitcnt lgkmcnt({2*(NB-1) if rl else 2*(NB-1-nb)})")
                        mfma(t, ks, nb)
                        for s in rl[2*nb:2*nb+2]: a(s)
                        if ks == 3 and nb == 0 and has_load: w_dma((t+D) % NSLOT)
                    if has_load:
                        act_load((t+D) % NBUF, ks)
                        if ks == 3: act_adv()
    nloop = KT//NSLOT-1
    a(f"s_mov_b32 s31, {nloop}")
    a(f"L_{L}_loop:")
    a.inloop = True
    body(0, False)
    a(f"""
    s_sub_u32 s31, s31, 1
    s_cmp_lg_u32 s31, 0
    s_cbranch_scc1 L_{L}_loop
    """)
    body(0, True)
    a.inloop = False
    if stamp is not None: stamp_mid(a, 2)
    a("s_nop 15")
    a("s_mov_b32 s44, 0xffff0000")
    if kind in ("oproj", "ffn2"):
        for j in range(4):
            nb, s = j >> 1, j & 1
            for d in range(4):
                a(f"v_lshlrev_b32 v40, 16, v{20+4*j+d}")
                a(f"v_and_b32 v41, s44, v{20+4*j+d}")
                a(f"v_fmac_f32 v40, v{192+8*j+2*d}, v{ACC+16*nb+8*s+2*d}")
                a(f"v_fmac_f32 v41, v{192+8*j+2*d+1}, v{ACC+16*nb+8*s+2*d+1}")
                a(f"v_cvt_pk_bf16_f32 v{44+4*j+d}, v40, v41")
        if kind == "oproj":
            a("""
            s_lshl_b32 s26, s23, 16
            s_lshl_b32 s27, s24, 12
            s_add_u32 s26, s26, s27
            """)
            for j in range(4):
                a(f"buffer_store_dwordx4 v[{44+4*j}:{47+4*j}], v2, s[40:43], s26 offen offset:{1024*j}")
        else:
            a("""
            v_and_b32 v3, 31, v1
            v_lshrrev_b32 v4, 5, v1
            v_lshlrev_b32 v3, 11, v3
            v_lshl_add_u32 v3, v4, 4, v3
            s_lshl_b32 s26, s23, 16
            s_add_u32 s26, s26, s25
            """)
            for j in range(4):
                a(f"buffer_store_dwordx4 v[{44+4*j}:{47+4*j}], v3, s[40:43], s26 offen offset:{(j>>1)*64+(j&1)*32}")
    else:
        a(f"""
        s_mul_i32 s26, s23, {3584*64}
        s_mul_i32 s27, s24, {28*512}
        s_add_u32 s26, s26, s27
        """)
        for nb in range(NB):
            for s in range(2):
                j = 2*nb+s
                o = 20+4*(j % 8)
                for d in range(4):
                    r = ACC+16*nb+8*s+2*d
                    a(f"v_max_f32 v{r}, 0, v{r}")
                    a(f"v_max_f32 v{r+1}, 0, v{r+1}")
                    a(f"v_cvt_pk_bf16_f32 v{o+d}, v{r}, v{r+1}")
                if j % 4 == 0 and j > 0: a("s_add_u32 s26, s26, 4096")
                a(f"buffer_store_dwordx4 v[{o}:{o+3}], v2, s[40:43], s26 offen offset:{1024*(j % 4)}")
    if stamp is not None: stamp_mid(a, 3)
    if stamp is not None: stamp_end2(a, stamp, 6)
    a(f"""
    L_{L}_done:
    s_endpgm
    """)
    nv = 256+NAG
    return (name, (256,1,1), (256,1,1), NSLOT*SLOT), a.text(), kernel_desc(name, nv, accum=256)
```

```python
from asmlib import *

WS_MOD  = 0x0000000
WS_HF   = 0x0100000
WS_OF   = 0x1000000
WS_X1F  = 0x2000000
WS_H2F  = 0x2400000
WS_HIDF = 0x3000000
WS_WLIN = 0x4000000

def srd(a, r, base, nbytes, off=0):
    if off:
        a(f"s_add_u32 s{r}, s{base}, {off}")
        a(f"s_addc_u32 s{r+1}, s{base+1}, 0")
    else:
        a(f"s_mov_b32 s{r}, s{base}")
        a(f"s_mov_b32 s{r+1}, s{base+1}")
    a(f"s_mov_b32 s{r+2}, {nbytes}")
    a(f"s_mov_b32 s{r+3}, 0x20000")

def gen_k0(name="k0_kernel", prefetch=None, stamp=None, pfwg=True, code_bytes=65536, stride=128):
    a = Asm()
    kernel_begin(a, name)
    a(f"""
    s_cmp_ge_u32 s2, 96
    s_cbranch_scc1 {"L_k0_pf" if pfwg else "L_k0_done"}
    s_load_dwordx4 s[4:7], s[0:1], 64
    s_load_dwordx2 s[8:9], s[0:1], 96
    """)
    if stamp is not None: stamp_begin(a)
    a(f"""
    v_lshrrev_b32 v1, 3, v0              ; 8w+g
    v_and_b32 v2, 7, v0                  ; cc
    v_lshlrev_b32 v3, 5, v1
    s_mov_b32 s24, 196608                ; 16*12288
    v_mul_lo_u32 v4, v1, s24
    v_lshlrev_b32 v2, 4, v2
    s_lshl_b32 s25, s2, 7
    v_add3_u32 v4, v4, v2, s25
    s_waitcnt lgkmcnt(0)
    """)
    srd(a, 12, 4, 2048)
    srd(a, 16, 6, 1024*6144*2)
    srd(a, 20, 8, 6144*4, WS_MOD)
    a("""
    buffer_load_dwordx4 v[8:11], v3, s[12:15], 0 offen
    buffer_load_dwordx4 v[12:15], v3, s[12:15], 0 offen offset:16
    s_mov_b32 s26, 0
    """)
    for i in range(16):
        a(f"buffer_load_dwordx4 v[{64+4*i}:{67+4*i}], v4, s[16:19], s26 offen")
        if i < 15: a(f"s_add_u32 s26, s26, 12288")
    if prefetch:
        prefetch(a)
        npf = prefetch.n
    else:
        npf = 0
    a(f"""
    s_mov_b32 s27, 0xffff0000
    s_mov_b32 s28, 0xbfb8aa3b            ; -log2(e)
    s_waitcnt vmcnt({16+npf})
    """)
    for j in range(8):
        a(f"v_lshlrev_b32 v{16+2*j}, 16, v{8+j}")
        a(f"v_and_b32 v{17+2*j}, s27, v{8+j}")
    for j in range(16): a(f"v_mul_f32 v{32+j}, s28, v{16+j}")
    for j in range(16): a(f"v_exp_f32 v{32+j}, v{32+j}")
    for j in range(16): a(f"v_add_f32 v{32+j}, 1.0, v{32+j}")
    for j in range(16): a(f"v_rcp_f32 v{32+j}, v{32+j}")
    for j in range(16): a(f"v_mul_f32 v{16+j}, v{16+j}, v{32+j}")
    for j in range(8): a(f"v_cvt_pk_bf16_f32 v{8+j}, v{16+2*j}, v{17+2*j}")
    for j in range(8):
        a(f"v_lshlrev_b32 v{16+2*j}, 16, v{8+j}")
        a(f"v_and_b32 v{17+2*j}, s27, v{8+j}")
    for e in range(8): a(f"v_mov_b32 v{32+e}, 0")
    for i in range(16):
        a(f"s_waitcnt vmcnt({15-i+npf})")
        for d in range(4):
            r = 64+4*i+d
            a(f"v_lshlrev_b32 v40, 16, v{r}")
            a(f"v_and_b32 v41, s27, v{r}")
            a(f"v_fmac_f32 v{32+2*d}, v{16+i}, v40")
            a(f"v_fmac_f32 v{33+2*d}, v{16+i}, v41")
    a("s_nop 1")
    for e in range(8): a(f"v_add_f32_dpp v{32+e}, v{32+e}, v{32+e} row_ror:8 row_mask:0xf bank_mask:0xf")
    for e in range(8): a(f"v_mov_b32 v{40+e}, v{32+e}")
    a("s_nop 1")
    for e in range(8): a(f"v_permlane16_swap_b32 v{32+e}, v{40+e}")
    a("s_nop 1")
    for e in range(8): a(f"v_add_f32 v{32+e}, v{32+e}, v{40+e}")
    for e in range(8): a(f"v_mov_b32 v{40+e}, v{32+e}")
    a("s_nop 1")
    for e in range(8): a(f"v_permlane32_swap_b32 v{32+e}, v{40+e}")
    a("s_nop 1")
    for e in range(8): a(f"v_add_f32 v{32+e}, v{32+e}, v{40+e}")
    a("""
    v_and_b32 v5, 63, v0
    v_lshrrev_b32 v6, 6, v0              ; wave
    v_lshlrev_b32 v7, 8, v6              ; w*256
    v_lshl_add_u32 v7, v5, 5, v7
    v_cmp_gt_u32 vcc, 8, v5
    s_and_saveexec_b64 s[30:31], vcc
    ds_write_b128 v7, v[32:35]
    ds_write_b128 v7, v[36:39] offset:16
    s_mov_b64 exec, s[30:31]
    s_waitcnt lgkmcnt(0)
    s_barrier
    v_cmp_gt_u32 vcc, 64, v0
    s_and_saveexec_b64 s[30:31], vcc
    s_cbranch_execz L_k0_end
    v_lshlrev_b32 v7, 2, v0
    """)
    for j in range(8): a(f"ds_read_b32 v{16+j}, v7 offset:{256*j}")
    a("""
    s_lshl_b32 s25, s2, 8
    v_add_u32 v6, s25, v7
    s_waitcnt lgkmcnt(0)
    v_add_f32 v16, v16, v17
    v_add_f32 v18, v18, v19
    v_add_f32 v20, v20, v21
    v_add_f32 v22, v22, v23
    v_add_f32 v16, v16, v18
    v_add_f32 v20, v20, v22
    v_add_f32 v16, v16, v20
    buffer_store_dword v16, v6, s[20:23], 0 offen
    L_k0_end:
    s_mov_b64 exec, s[30:31]
    """)
    if stamp is not None: stamp_end2(a, stamp, 8)
    a("""
    L_k0_done:
    s_endpgm
    """)
    if pfwg:
        a(f"""
        L_k0_pf:
        s_cmp_ge_u32 s2, 256
        s_cbranch_scc1 L_k0_done
        s_load_dwordx4 s[4:7], s[0:1], 0       ; x, k
        s_load_dwordx4 s[8:11], s[0:1], 16     ; v, wq
        s_getpc_b64 s[28:29]
        L_k0_pc:
        s_add_u32 s28, s28, L_code_begin-L_k0_pc
        s_addc_u32 s29, s29, 0
        v_lshrrev_b32 v2, 6, v0
        v_and_b32 v1, 63, v0
        v_readfirstlane_b32 s20, v2
        s_and_b32 s21, s2, 7                   ; xcd
        s_sub_u32 s22, s2, 96
        s_lshr_b32 s22, s22, 3
        s_lshl_b32 s22, s22, 3
        s_add_u32 s22, s22, s20                ; gid 0..159
        v_lshrrev_b32 v3, 4, v1                ; l>>4
        v_and_b32 v4, 15, v1
        v_lshlrev_b32 v4, 7, v4                ; line*128
        v_lshlrev_b32 v5, 7, v1                ; l*128
        s_waitcnt lgkmcnt(0)
        """)
        srd(a, 12, 4, 2048*1024*2)
        srd(a, 16, 10, 1024*4096*2)
        a(f"""
        s_cmp_ge_u32 s22, 64
        s_cbranch_scc1 L_k0_pf_kv
        s_lshr_b32 s23, s22, 1
        s_lshl_b32 s23, s23, 3
        s_add_u32 s23, s23, s21
        s_lshl_b32 s23, s23, 3
        s_and_b32 s24, s22, 1
        s_lshl_b32 s24, s24, 2
        s_add_u32 s23, s23, s24
        s_lshl_b32 s23, s23, 11
        v_lshl_add_u32 v6, v3, 11, v4
        buffer_load_dword v8, v6, s[12:15], s23 offen
        s_branch L_k0_pf_wq
        L_k0_pf_kv:
        s_cmp_ge_u32 s22, 96
        s_cbranch_scc1 L_k0_pf_code
        s_sub_u32 s23, s22, 64                 ; 0..31 : 0..15 K, 16..31 V
        s_cmp_ge_u32 s23, 16
        s_cselect_b32 s12, s8, s6
        s_cselect_b32 s13, s9, s7
        s_mov_b32 s14, {4*2048*128*2}
        s_and_b32 s23, s23, 15
        s_lshl_b32 s23, s23, 13
        s_and_b32 s24, s21, 3
        s_lshl_b32 s24, s24, 19
        s_add_u32 s23, s23, s24
        s_add_u32 s23, s23, {1536*256}
        buffer_load_dword v8, v5, s[12:15], s23 offen
        s_branch L_k0_pf_wq
        L_k0_pf_code:
        s_cmp_ge_u32 s22, {96+code_bytes//8192}
        s_cbranch_scc1 L_k0_pf_wq
        s_sub_u32 s23, s22, 96
        s_lshl_b32 s23, s23, 13
        v_add_u32 v6, s23, v5
        v_min_u32 v6, L_code_end-L_code_begin, v6
        global_load_dword v8, v6, s[28:29]
        L_k0_pf_wq:
        s_and_b32 s24, s21, 3
        s_lshl_b32 s24, s24, 11                ; g*2048
        v_lshl_add_u32 v6, v3, 13, v4
        s_lshl_b32 s23, s22, 15
        s_add_u32 s23, s23, s24
        buffer_load_dword v9, v6, s[16:19], s23 offen
        s_add_u32 s23, s23, {160*32768}
        buffer_load_dword v10, v6, s[16:19], s23 offen
        s_waitcnt vmcnt(0)
        s_endpgm
        L_code_begin:
        s_endpgm
        """)
    return (name, (256 if pfwg else 96,1,1), (512,1,1), 2048), a.text(), kernel_desc(name, 128, sgpr=102)

def gen_ln(name, src, dst_off, shift_idx, scale_idx, outscale, stamp=None):
    a = Asm()
    L = name
    kernel_begin(a, name)
    import struct
    osc = struct.unpack("<I", struct.pack("<f", outscale))[0]
    a(f"""
    s_cmp_ge_u32 s2, 256
    s_cbranch_scc1 L_{L}_done
    s_load_dwordx2 s[4:5], s[0:1], 0
    s_load_dwordx2 s[8:9], s[0:1], 96
    """)
    if stamp is not None: stamp_begin(a)
    a(f"""
    v_and_b32 v1, 7, v0
    v_lshrrev_b32 v2, 3, v0              ; 8w + cl
    v_and_b32 v3, 7, v2                  ; cl
    v_lshrrev_b32 v4, 6, v0              ; w
    v_lshl_add_u32 v5, v4, 4, v3
    s_lshr_b32 s10, s2, 2
    s_and_b32 s11, s2, 3
    s_lshl_b32 s10, s10, 16
    s_lshl_b32 s11, s11, 7
    s_add_u32 s10, s10, s11
    v_lshlrev_b32 v6, 9, v5
    v_lshl_add_u32 v6, v1, 4, v6
    v_add_u32 v6, s10, v6
    v_lshlrev_b32 v9, 5, v5
    """)
    if src == 'x':
        a("""
        s_lshl_b32 s12, s2, 14
        v_lshlrev_b32 v7, 11, v1
        v_lshl_add_u32 v7, v5, 4, v7
        v_add_u32 v7, s12, v7
        """)
    a("s_waitcnt lgkmcnt(0)")
    if src == 'x':
        srd(a, 12, 4, 2048*1024*2)
        a("buffer_load_dwordx4 v[12:15], v7, s[12:15], 0 offen")
        a("buffer_load_dwordx4 v[16:19], v7, s[12:15], 0 offen offset:128")
    else:
        srd(a, 12, 8, 2048*1024*2, src[1])
        a("v_add_u32 v7, 4096, v6")
        a("buffer_load_dwordx4 v[12:15], v6, s[12:15], 0 offen")
        a("buffer_load_dwordx4 v[16:19], v7, s[12:15], 0 offen")
    srd(a, 16, 8, 6144*4, WS_MOD)
    srd(a, 20, 8, 2048*1024*2, dst_off)
    a(f"s_mov_b32 s24, {scale_idx*4096}")
    a(f"s_mov_b32 s25, {shift_idx*4096}")
    a("buffer_load_dwordx4 v[52:55], v9, s[16:19], s24 offen")
    a("buffer_load_dwordx4 v[56:59], v9, s[16:19], s24 offen offset:16")
    a("buffer_load_dwordx4 v[60:63], v9, s[16:19], s24 offen offset:256")
    a("buffer_load_dwordx4 v[64:67], v9, s[16:19], s24 offen offset:272")
    a("buffer_load_dwordx4 v[68:71], v9, s[16:19], s25 offen")
    a("buffer_load_dwordx4 v[72:75], v9, s[16:19], s25 offen offset:16")
    a("buffer_load_dwordx4 v[76:79], v9, s[16:19], s25 offen offset:256")
    a("buffer_load_dwordx4 v[80:83], v9, s[16:19], s25 offen offset:272")
    a("s_mov_b32 s27, 0xffff0000")
    a("s_waitcnt vmcnt(8)")
    for j in range(8):
        a(f"v_lshlrev_b32 v{20+2*j}, 16, v{12+j}")
        a(f"v_and_b32 v{21+2*j}, s27, v{12+j}")
    def reduce_lanes(r, t):
        a("s_nop 1")
        a(f"v_add_f32_dpp v{r}, v{r}, v{r} row_ror:8 row_mask:0xf bank_mask:0xf")
        a(f"v_mov_b32 v{t}, v{r}")
        a("s_nop 1")
        a(f"v_permlane16_swap_b32 v{r}, v{t}")
        a("s_nop 1")
        a(f"v_add_f32 v{r}, v{r}, v{t}")
        a(f"v_mov_b32 v{t}, v{r}")
        a("s_nop 1")
        a(f"v_permlane32_swap_b32 v{r}, v{t}")
        a("s_nop 1")
        a(f"v_add_f32 v{r}, v{r}, v{t}")
    a("v_add_f32 v36, v20, v21")
    a("v_add_f32 v37, v22, v23")
    for j in range(2, 8):
        a(f"v_add_f32 v{36+(j&1)}, v{36+(j&1)}, v{20+2*j}")
        a(f"v_add_f32 v{36+(j&1)}, v{36+(j&1)}, v{21+2*j}")
    a("v_add_f32 v36, v36, v37")
    reduce_lanes(36, 38)
    a("v_mul_f32 v36, 0x3c000000, v36")
    for j in range(16): a(f"v_sub_f32 v{84+j}, v{20+j}, v36")
    a("v_mul_f32 v37, v84, v84")
    a("v_mul_f32 v39, v85, v85")
    for j in range(2, 16, 2):
        a(f"v_fmac_f32 v37, v{84+j}, v{84+j}")
        a(f"v_fmac_f32 v39, v{85+j}, v{85+j}")
    a("v_add_f32 v37, v37, v39")
    reduce_lanes(37, 38)
    a("""
    v_lshlrev_b32 v40, 6, v1
    v_lshl_add_u32 v41, v4, 3, v40
    v_and_b32 v42, 63, v0
    v_cmp_gt_u32 vcc, 8, v42
    s_and_saveexec_b64 s[30:31], vcc
    ds_write_b64 v41, v[36:37]
    s_mov_b64 exec, s[30:31]
    s_waitcnt lgkmcnt(0)
    s_barrier
    ds_read_b128 v[84:87], v40
    ds_read_b128 v[88:91], v40 offset:16
    ds_read_b128 v[92:95], v40 offset:32
    ds_read_b128 v[96:99], v40 offset:48
    s_waitcnt lgkmcnt(0)
    """)
    a("v_add_f32 v36, v84, v86")
    for j in range(2, 8): a(f"v_add_f32 v36, v36, v{84+2*j}")
    a("v_mul_f32 v36, 0x3e000000, v36")
    a("v_add_f32 v37, v85, v87")
    for j in range(2, 8): a(f"v_add_f32 v37, v37, v{85+2*j}")
    for j in range(8): a(f"v_sub_f32 v{84+2*j}, v{84+2*j}, v36")
    a("v_mul_f32 v38, v84, v84")
    for j in range(1, 8): a(f"v_fmac_f32 v38, v{84+2*j}, v{84+2*j}")
    a(f"""
    v_mov_b32 v39, 0x43000000
    v_fmac_f32 v37, v39, v38             ; M2 total
    v_mov_b32 v39, 0x3727c5ac            ; 1e-5
    v_fmac_f32 v39, 0x3a800000, v37
    v_rsq_f32 v39, v39
    s_waitcnt vmcnt(0)
    """)
    for j in range(16): a(f"v_sub_f32 v{20+j}, v{20+j}, v36")
    for j in range(16): a(f"v_add_f32 v{52+j}, 1.0, v{52+j}")
    for j in range(16): a(f"v_mul_f32 v{20+j}, v{20+j}, v39")
    for j in range(16): a(f"v_fmac_f32 v{68+j}, v{20+j}, v{52+j}")
    if outscale != 1.0:
        a(f"s_mov_b32 s28, {osc}")
        for j in range(16): a(f"v_mul_f32 v{68+j}, s28, v{68+j}")
    for j in range(8): a(f"v_cvt_pk_bf16_f32 v{12+j}, v{68+2*j}, v{69+2*j}")
    a(f"""
    v_add_u32 v7, 4096, v6
    buffer_store_dwordx4 v[12:15], v6, s[20:23], 0 offen
    buffer_store_dwordx4 v[16:19], v7, s[20:23], 0 offen
    """)
    if stamp is not None: stamp_end2(a, stamp, 8)
    a(f"""
    L_{L}_done:
    s_endpgm
    """)
    return (name, (256,1,1), (512,1,1), 512), a.text(), kernel_desc(name, 104, sgpr=102)


WS_STAMP = 0x8000000
def stamp_begin(a):
    a("""
    s_memtime s[90:91]
    s_memrealtime s[92:93]
    """)
def stamp_end(a, slot, wsreg):
    a(f"""
    s_waitcnt vmcnt(0) lgkmcnt(0)
    s_memtime s[94:95]
    s_memrealtime s[96:97]
    s_add_u32 s84, s{wsreg}, {WS_STAMP + slot*16384}
    s_addc_u32 s85, s{wsreg+1}, 0
    s_mov_b32 s86, 16384
    s_mov_b32 s87, 0x20000
    s_waitcnt lgkmcnt(0)
    s_sub_u32 s94, s94, s90
    v_mov_b32 v4, s94
    v_mov_b32 v5, s92
    v_mov_b32 v6, s96
    v_mov_b32 v7, s2
    s_lshl_b32 s88, s2, 4
    v_mov_b32 v8, s88
    v_cmp_eq_u32 vcc, 0, v0
    s_and_saveexec_b64 s[98:99], vcc
    s_cbranch_execz L_stamp_skip_{slot}
    buffer_store_dwordx4 v[4:7], v8, s[84:87], 0 offen
    L_stamp_skip_{slot}:
    s_mov_b64 exec, s[98:99]
    """)

def stamp_mid(a, k):
    a(f"""
    s_memtime s[68:69]
    s_waitcnt lgkmcnt(0)
    s_sub_u32 s{70+k}, s68, s90
    """)
def stamp_end2(a, slot, wsreg):
    a(f"""
    s_waitcnt vmcnt(0) lgkmcnt(0)
    s_memtime s[94:95]
    s_memrealtime s[96:97]
    s_add_u32 s84, s{wsreg}, {WS_STAMP + slot*16384}
    s_addc_u32 s85, s{wsreg+1}, 0
    s_mov_b32 s86, 16384
    s_mov_b32 s87, 0x20000
    s_waitcnt lgkmcnt(0)
    s_sub_u32 s94, s94, s90
    v_mov_b32 v4, s94
    v_mov_b32 v5, s92
    v_mov_b32 v6, s96
    v_mov_b32 v7, s70
    v_mov_b32 v8, s71
    v_mov_b32 v9, s72
    v_mov_b32 v10, s73
    v_mov_b32 v11, s74
    s_lshl_b32 s88, s2, 5
    v_mov_b32 v12, s88
    v_cmp_eq_u32 vcc, 0, v0
    s_and_saveexec_b64 s[98:99], vcc
    s_cbranch_execz L_stamp_skip_{slot}
    buffer_store_dwordx4 v[4:7], v12, s[84:87], 0 offen
    buffer_store_dwordx4 v[8:11], v12, s[84:87], 0 offen offset:16
    L_stamp_skip_{slot}:
    s_mov_b64 exec, s[98:99]
    """)
```

```python
import sys, math
from asmlib import *
from gen_small import *
from gen_gemm import *
from gen_attn import *
QS = 128**-0.5 * math.log2(math.e)
def build(kernels, path):
    launches = [k[0] for k in kernels]
    seen = set(); bodies = []; descs = []
    for k in kernels:
        if k[0][0] in seen: continue
        seen.add(k[0][0]); bodies.append(k[1]); descs.append(k[2])
    open(path, "w").write(assemble_file(launches, bodies, descs))
if __name__ == "__main__":
    import hk
    K0 = gen_k0(); LN1 = gen_ln("ln1_kernel", 'x', WS_HF, 0, 1, QS)
    LN2 = gen_ln("ln2_kernel", ('F', WS_X1F), WS_H2F, 3, 4, 1.0)
    OP = gen_gemm("oproj_kernel", "oproj"); F1 = gen_gemm("ffn1_kernel", "ffn1"); F2 = gen_gemm("ffn2_kernel", "ffn2")
    AT = gen_attn("attn_kernel")
    build([K0, LN1], "stage1.s"); hk.build("stage1.s")
    build([K0, LN1, AT], "stage3.s"); hk.build("stage3.s")
    build([K0, LN1, AT, OP, LN2, F1, F2], "full.s"); hk.build("full.s")
    build([OP, LN2, F1, F2], "stage2.s"); hk.build("stage2.s")

    ks = [gen_k0(stamp=0), gen_ln("ln1_kernel", 'x', WS_HF, 0, 1, QS, stamp=1), gen_attn("attn_kernel", stamp=2), gen_gemm("oproj_kernel", "oproj", stamp=3),
          gen_ln("ln2_kernel", ('F', WS_X1F), WS_H2F, 3, 4, 1.0, stamp=4), gen_gemm("ffn1_kernel", "ffn1", stamp=5), gen_gemm("ffn2_kernel", "ffn2", stamp=6)]
    build(ks, "full_st.s"); hk.build("full_st.s")
```

```python
from asmlib import *
from gen_small import *
from gen_gemm import lane_common, tr_lane_terms
from gen_g256 import G256
from stream import VmLog

KRING = 65536
VRING = 65536+49152
BIAS = 30.0

def gen_attn(name="attn_kernel", stamp=None, fallback=True, dbg="", pfw=True, pfstride=64, stflag=""):
    a = Asm(); L = name
    kernel_begin(a, name)
    a(f"""
    s_cmp_ge_u32 s2, 256
    s_cbranch_scc1 L_{L}_done
    s_load_dwordx4 s[4:7], s[0:1], 8
    s_load_dwordx2 s[8:9], s[0:1], 24      ; wq
    s_load_dwordx2 s[10:11], s[0:1], 96    ; ws
    s_load_dwordx2 s[60:61], s[0:1], 32    ; wo
    s_load_dwordx4 s[64:67], s[0:1], 48    ; w1 s[64:65], w2 s[66:67]
    """)
    if stamp is not None: stamp_begin(a)
    lane_common(a)
    a("""
    s_and_b32 s21, s2, 7
    s_lshr_b32 s22, s2, 3
    s_and_b32 s23, s21, 3
    s_lshl_b32 s24, s23, 3
    s_and_b32 s25, s22, 7
    s_add_u32 s24, s24, s25                ; head
    s_lshr_b32 s25, s21, 2
    s_lshl_b32 s25, s25, 2
    s_lshr_b32 s26, s22, 3
    s_add_u32 s25, s25, s26
    s_lshl_b32 s25, s25, 3
    s_lshl_b32 s26, s20, 1
    s_add_u32 s25, s25, s26
    v_add_u32 v3, 0x10000, v2
    v_lshrrev_b32 v32, 4, v1               ; L>>4
    v_and_b32 v33, 15, v1                  ; p
    v_lshlrev_b32 v34, 2, v32
    v_xor_b32 v34, v33, v34                ; p ^ ((L>>4)<<2)
    v_lshlrev_b32 v34, 4, v34
    v_lshl_add_u32 v4, v32, 13, v34        ; W: row*8192 + c*16
    v_add_u32 v5, 31744, v4                ; + 4*8192 - 1024
    v_add_u32 v6, 63488, v4
    v_add_u32 v7, 95232, v4
    v_lshl_add_u32 v16, v32, 8, v34        ; V: row*256 + c*16
    """)
    for i in range(4):
        a(f"""
        v_add_u32 v35, {4*i}, v32
        v_xor_b32 v35, v33, v35
        v_lshlrev_b32 v35, 4, v35
        v_lshl_add_u32 v{12+i}, v32, 8, v35
        """)
    tr_lane_terms(a, 32, 33, 34, 35)
    a("""
    v_lshrrev_b32 v35, 1, v34              ; sw>>1
    v_lshl_add_u32 v35, v33, 1, v35        ; c0 = 2*(g&1) + (sw>>1)
    v_bfe_u32 v36, v1, 2, 2                ; i>>2
    v_lshlrev_b32 v37, 2, v36              ; swz = (i>>2)<<2
    v_and_b32 v34, 1, v34
    v_lshlrev_b32 v34, 3, v34              ; half8*8
    v_lshl_add_u32 v38, v32, 8, v34
    v_lshrrev_b32 v39, 5, v1               ; hh
    v_lshl_add_u32 v39, v39, 2, v36        ; 4hh + (i>>2)
    v_lshl_add_u32 v39, v39, 8, v34
    """)
    for db in range(4):
        a(f"""
        v_or_b32 v42, {4*db}, v35
        v_xor_b32 v42, v42, v37
        v_lshl_add_u32 v{8+db}, v42, 4, v38
        v_lshl_add_u32 v{28+db}, v42, 4, v39
        v_add_u32 v{28+db}, {VRING}, v{28+db}
        """)
    a("""
    v_and_b32 v32, 31, v1                  ; r
    v_lshrrev_b32 v33, 5, v1               ; hh
    v_and_b32 v34, 15, v1
    """)
    for ds in range(8):
        a(f"""
        v_or_b32 v35, {2*ds}, v33
        v_xor_b32 v35, v35, v34
        v_lshlrev_b32 v35, 4, v35
        v_lshl_add_u32 v{20+ds}, v32, 8, v35
        v_add_u32 v{20+ds}, {KRING}, v{20+ds}
        """)
    a("s_waitcnt lgkmcnt(0)")
    if stamp is not None and "ls" not in dbg: stamp_mid(a, 0)
    srd(a, 12, 8, 1024*4096*2)
    a(f"""
    s_lshl_b32 s26, s25, 16
    s_add_u32 s26, s26, {WS_HF}
    s_add_u32 s16, s10, s26
    s_addc_u32 s17, s11, 0
    s_mov_b32 s18, 131072
    s_mov_b32 s19, 0x20000
    """)
    srd(a, 32, 4, 4*2048*128*2)
    srd(a, 36, 6, 4*2048*128*2)
    srd(a, 40, 10, 2048*4096*2, WS_OF)
    a(f"""
    s_mul_i32 s28, s20, {16*8192}
    s_lshl_b32 s26, s24, 8
    s_add_u32 s28, s28, s26                ; W soffset
    s_mov_b32 s29, 0                       ; h soffset
    s_lshl_b32 s30, s20, 12
    s_lshl_b32 s44, s23, 19                ; g*524288
    s_add_u32 s44, s44, {1536*256}
    s_add_u32 s44, s44, s30
    """)
    span = 64*pfstride
    a(f"""
    s_lshl_b32 s26, s2, 2
    s_add_u32 s26, s26, s20
    s_mul_i32 s26, s26, 8192
    v_mul_u32_u24 v17, {pfstride}, v1
    v_add_u32 v17, s26, v17
    s_mov_b32 s62, 0
    s_mov_b32 s79, 0x20000
    s_mov_b32 s80, {4096*1024*2}
    s_mov_b32 s81, {3584*1024*2}
    """)
    def pf_weights():
        if not pfw: return
        nper = 8192//span
        sh = {1: 0, 2: 1}[nper]
        a(f"""
        s_lshr_b32 s63, s62, {sh}
        s_cmp_eq_u32 s63, 0
        s_cselect_b32 s76, s60, s64
        s_cselect_b32 s77, s61, s65
        s_cselect_b32 s78, s80, s81
        s_cmp_eq_u32 s63, 2
        s_cselect_b32 s76, s66, s76
        s_cselect_b32 s77, s67, s77
        s_cmp_ge_u32 s63, 3
        s_cselect_b32 s78, 0, s78
        s_and_b32 s63, s62, {nper-1}
        s_mul_i32 s63, s63, {span}
        s_add_u32 s62, s62, 1
        buffer_load_dword v18, v17, s[76:79], s63 offen
        """)
    QACC = 64
    def qacc(db, qb): r = QACC+(2*db+qb)*16; return r
    def k_dma(ldsoff_expr, tile_soff):
        a(f"s_add_u32 m0, s30, {ldsoff_expr}")
        a("s_nop 0")
        for j in range(4): a(f"buffer_load_dwordx4 v{12+j}, s[32:35], {tile_soff} offen offset:{1024*j} lds")
    def v_dma(ldsoff_expr, tile_soff):
        a(f"s_add_u32 m0, s30, {ldsoff_expr}")
        a("s_nop 0")
        for j in range(4): a(f"buffer_load_dwordx4 v16, s[36:39], {tile_soff} offen offset:{1024*j} lds")
    g = G256(a, 16, 8192, 4, 4, ACC=QACC, vW=4, vT=8)
    g.issue_stage(0)
    g.issue_stage(1)
    for i in range(128): a(f"v_mov_b32 v{QACC+i}, 0")
    a("s_mov_b32 s46, 0")
    a(f"s_add_u32 s45, s44, 16384")
    extra = []
    def mk(kind, ldsoff, soff, j):
        def f():
            out = []
            if g.cur['m0'] != ('x', ldsoff):
                out += [f"s_add_u32 m0, s30, {ldsoff}", "s_nop 0"]; g.cur['m0'] = ('x', ldsoff)
            if kind == 'K': out.append(f"buffer_load_dwordx4 v{12+j}, s[32:35], {soff} offen offset:{1024*j} lds")
            else: out.append(f"buffer_load_dwordx4 v16, s[36:39], {soff} offen offset:{1024*j} lds")
            return out
        return f
    for (kind, ldsoff, soff) in [('K', KRING, "s44"), ('K', KRING+16384, "s45"), ('V', VRING, "s44")]:
        for j in range(4): extra.append((('X', kind, j), mk(kind, ldsoff, soff, j)))
    g.first_wait()
    if stamp is not None and "ls" not in dbg: stamp_mid(a, 1); a("s_nop 0")
    g.stream(2, gap=2, extra=extra, extra_after={9: [0,1,2,3], 11: [4,5,6,7], 13: [8,9,10,11]})
    a("s_waitcnt vmcnt(0)")
    a("s_barrier")
    if stamp is not None: stamp_mid(a, 2)
    QF = 192
    def qf(qb, ds): r = QF+32*qb+4*ds; return f"v[{r}:{r+3}]"
    a("s_nop 7\ns_nop 7")
    for qb in range(2):
        for ds in range(8):
            c = qacc(ds >> 1, qb)+8*(ds & 1)
            for j in range(4):
                a(f"v_cvt_pk_bf16_f32 v{QF+32*qb+4*ds+j}, v{c+2*j}, v{c+2*j+1}")
    def S(b, qb): return 64+32*b+16*qb
    def P(b, qb, ks): return 128+16*b+8*qb+4*ks
    def NM(qb): return 160+16*qb
    def O(db, qb): return (2*db+qb)*16
    RING = 128
    LREG = (40, 41)
    PDI = 4
    def item_reads(it, slot):
        r = RING+4*(slot % 8)
        if it[0] == 'K':
            _, half, ds = it[:3]
            return [f"ds_read_b128 a[{r}:{r+3}], v{20+ds} offset:{half*8192}"]
        _, half, ks, db = it[:4]
        return [f"ds_read_b64_tr_b16 a[{r+2*hf}:{r+2*hf+1}], v{28+db} offset:{(half*32+16*ks+8*hf)*256}" for hf in range(2)]
    def item_mfma(it, slot, qb):
        r = RING+4*(slot % 8)
        if it[0] == 'K':
            _, half, ds, sb, cmode = it
            d = S(sb, qb)
            if ds == 0: c = "0" if cmode == 'zero' else f"v[{NM(qb)}:{NM(qb)+15}]"
            else: c = f"v[{d}:{d+15}]"
            return f"v_mfma_f32_32x32x16_bf16 v[{d}:{d+15}], a[{r}:{r+3}], {qf(qb, ds)}, {c}"
        _, half, ks, db, pb = it
        o = O(db, qb); p = P(pb, qb, ks)
        return f"v_mfma_f32_32x32x16_bf16 a[{o}:{o+15}], a[{r}:{r+3}], v[{p}:{p+3}], a[{o}:{o+15}]"
    def nreads(it): return 1 if it[0] == 'K' else 2
    def softmax_ops(sb, pb):
        ops = []; prev = None
        for qb in range(2):
            for j in range(8):
                e0 = S(sb, qb)+2*j; e1 = e0+1
                ops.append(f"v_exp_f32 v{e0}, v{e0}")
                ops.append(f"v_exp_f32 v{e1}, v{e1}")
                if prev: ops += prev
                prev = [f"v_add_f32 v{LREG[qb]}, v{LREG[qb]}, v{e0}",
                        f"v_cvt_pk_bf16_f32 v{P(pb, qb, j >> 2)+(j & 3)}, v{e0}, v{e1}",
                        f"v_add_f32 v{LREG[qb]}, v{LREG[qb]}, v{e1}"]
        ops.append("s_nop 0"); ops += prev
        return ops
    def emit_items(items, future, valu, extra=None, slot0=0, pre_issued=True):
        seq = items+future
        n = len(items); gaps = 2*n
        vi = 0
        for i, it in enumerate(items):
            young = sum(nreads(x) for x in seq[i+1:i+PDI])
            a(f"s_waitcnt lgkmcnt({young})")
            a(item_mfma(it, slot0+i, 0))
            if extra and i in extra: extra[i]()
            if i+PDI < len(seq):
                for s in item_reads(seq[i+PDI], slot0+i+PDI): a(s)
            tgt = (len(valu)*(2*i+1))//gaps
            while vi < tgt: a(valu[vi]); vi += 1
            a(item_mfma(it, slot0+i, 1))
            tgt = (len(valu)*(2*i+2))//gaps
            while vi < tgt: a(valu[vi]); vi += 1
        assert vi == len(valu)
    def kitems(half, sb, cmode='nm'): return [('K', half, ds, sb, cmode) for ds in range(8)]
    def vitems(half, pb): return [('V', half, ks, db, pb) for ks in range(2) for db in range(4)]

    a(f"L_{L}_att:")
    a("v_mov_b32 v40, 0\nv_mov_b32 v41, 0")
    head1 = kitems(0, 0, 'zero'); head2 = kitems(1, 1)
    for i in range(PDI):
        for s in item_reads(head1[i], i): a(s)
    zinit = [f"v_accvgpr_write_b32 a{i}, 0" for i in range(128)]
    emit_items(head1, head2, zinit, slot0=0)
    a("s_nop 7\ns_nop 7")
    if fallback:
        a(f"s_cmp_eq_u32 s46, 1\ns_cbranch_scc1 L_{L}_havem")
    for qb in range(2):
        s = S(0, qb); m = 42+qb
        a(f"v_max3_f32 v{m}, v{s}, v{s+1}, v{s+2}")
        for j in range(3, 15, 2): a(f"v_max3_f32 v{m}, v{m}, v{s+j}, v{s+j+1}")
        a(f"v_max_f32 v{m}, v{m}, v{s+15}")
    a("v_mov_b32 v44, v42\nv_mov_b32 v45, v43\ns_nop 1")
    a("v_permlane32_swap_b32 v42, v44\nv_permlane32_swap_b32 v43, v45\ns_nop 1")
    a("v_max_f32 v42, v42, v44\nv_max_f32 v43, v43, v45")
    a(f"v_sub_f32 v42, {-BIAS}, v42\nv_sub_f32 v43, {-BIAS}, v43".replace("-30.0", "0xc1f00000"))
    if fallback: a(f"L_{L}_havem:")
    for qb in range(2):
        for j in range(16): a(f"v_mov_b32 v{NM(qb)+j}, v{42+qb}")
        for j in range(16): a(f"v_add_f32 v{S(0,qb)+j}, v{S(0,qb)+j}, v{42+qb}")
    body_a = kitems(0, 0)+vitems(0, 0)
    body_b = kitems(1, 1)+vitems(1, 1)
    def adv_k_first():
        for ds in range(8): a(f"v_add_u32 v{20+ds}, 16384, v{20+ds}")
    emit_items(head2, body_a[:PDI], softmax_ops(0, 0), extra={4: adv_k_first}, slot0=8)
    if stamp is not None and "ls" in dbg:
        a("s_memtime s[68:69]\ns_waitcnt lgkmcnt(0)\ns_sub_u32 s70, s68, s90")
    a(f"""
    s_mov_b32 s47, 16384
    s_mov_b32 s48, 1
    s_add_u32 s49, s44, 16384
    L_{L}_aloop:
    s_add_u32 s50, s47, 16384
    s_cmp_eq_u32 s50, 49152
    s_cselect_b32 s50, 0, s50
    s_add_u32 s51, s50, 16384
    s_cmp_eq_u32 s51, 49152
    s_cselect_b32 s51, 0, s51
    s_sub_u32 s52, s50, s47               ; delta K
    s_sub_u32 s53, s47, s51               ; delta V
    s_add_u32 s45, s49, 16384             ; K(i+1) source
    s_add_u32 s54, s50, {KRING}
    s_add_u32 s55, s47, {VRING}           ; V(i) -> slot i%3
    """)
    def kd(j):
        def f():
            if j == 0: a("s_add_u32 m0, s30, s54\ns_nop 0")
            a(f"buffer_load_dwordx4 v{12+j}, s[32:35], s45 offen offset:{1024*j} lds")
        return f
    def vd(j):
        def f():
            if j == 0: a("s_add_u32 m0, s30, s55\ns_nop 0")
            a(f"buffer_load_dwordx4 v16, s[36:39], s49 offen offset:{1024*j} lds")
        return f
    exa = {0: kd(0), 1: kd(1), 2: kd(2), 3: kd(3), 4: vd(0), 5: vd(1), 6: vd(2), 7: vd(3), 9: pf_weights}
    emit_items(body_a, body_b[:PDI], softmax_ops(1, 1), extra=exa, slot0=0)
    def adv_k():
        for ds in range(8): a(f"v_add_u32 v{20+ds}, s52, v{20+ds}")
    def sync_only():
        a(f"s_waitcnt vmcnt({1 if pfw else 0})")
        a("s_barrier")
    def adv_v():
        for db in range(4): a(f"v_add_u32 v{28+db}, s53, v{28+db}")
    ex = {4: adv_k, 12: lambda: (sync_only(), adv_v())}
    emit_items(body_b, body_a[:PDI], softmax_ops(0, 0), extra=ex, slot0=16)
    a(f"""
    s_mov_b32 s47, s50
    s_add_u32 s49, s49, 16384
    s_add_u32 s48, s48, 1
    s_cmp_lt_u32 s48, 8
    s_cbranch_scc1 L_{L}_aloop
    s_waitcnt lgkmcnt(0)
    """)
    if stamp is not None and "ls" in dbg: stamp_mid(a, 1)
    t1 = vitems(0, 0); t2 = vitems(1, 1)
    for i in range(PDI):
        for s in item_reads(t1[i], i): a(s)
    emit_items(t1, t2[:PDI], softmax_ops(1, 1), slot0=0)
    a("s_nop 1")
    emit_items(t2, [], [], slot0=8)
    if stamp is not None: stamp_mid(a, 3)
    a("""
    v_mov_b32 v44, v40
    v_mov_b32 v45, v41
    s_nop 1
    v_permlane32_swap_b32 v40, v44
    v_permlane32_swap_b32 v41, v45
    s_nop 1
    v_add_f32 v40, v40, v44
    v_add_f32 v41, v41, v45
    """)
    if fallback:
        a(f"""
        s_cmp_eq_u32 s46, 1
        s_cbranch_scc1 L_{L}_fin
        v_mov_b32 v46, 0x6c800000          ; 2^90
        v_cmp_nle_f32 vcc, v40, v46
        v_cmp_nle_f32 s[56:57], v41, v46
        s_or_b64 vcc, vcc, s[56:57]
        s_cmp_lg_u64 vcc, 0
        s_cselect_b32 s58, 1, 0
        v_mov_b32 v46, s58
        v_mov_b32 v47, s30
        v_lshrrev_b32 v47, 10, v47         ; w*4
        s_barrier
        ds_write_b32 v47, v46
        s_waitcnt lgkmcnt(0)
        s_barrier
        v_mov_b32 v47, 0
        ds_read_b128 v[48:51], v47
        s_waitcnt lgkmcnt(0)
        v_or_b32 v48, v48, v49
        v_or_b32 v50, v50, v51
        v_or_b32 v48, v48, v50
        s_nop 0
        v_readfirstlane_b32 s58, v48
        s_cmp_eq_u32 s58, 0
        s_cbranch_scc1 L_{L}_fin
        """)
        a(f"""
        s_barrier
        v_mov_b32 v42, 0xff800000
        v_mov_b32 v43, 0xff800000
        s_mov_b32 s48, 0
        s_mov_b32 s49, s44
        ; K read addresses back to slot 0 : current slot offset is s47 (tile 8 % 3), registers point there
        L_{L}_fbsub:
        """)
        for ds in range(8): a(f"v_subrev_u32 v{20+ds}, s47, v{20+ds}")
        a(f"L_{L}_fbloop:")
        k_dma(KRING, "s49")
        a("s_waitcnt vmcnt(0)\ns_barrier")
        for half in range(2):
            for ds in range(8):
                a(f"ds_read_b128 a[{RING+4*ds}:{RING+4*ds+3}], v{20+ds} offset:{half*8192}")
            a("s_waitcnt lgkmcnt(0)")
            for ds in range(8):
                for qb in range(2):
                    d = S(0, qb); c = "0" if ds == 0 else f"v[{d}:{d+15}]"
                    a(f"v_mfma_f32_32x32x16_bf16 v[{d}:{d+15}], a[{RING+4*ds}:{RING+4*ds+3}], {qf(qb, ds)}, {c}")
            a("s_nop 7\ns_nop 7")
            for qb in range(2):
                s = S(0, qb); m = 42+qb
                for j in range(0, 16, 2): a(f"v_max3_f32 v{m}, v{m}, v{s+j}, v{s+j+1}")
        a(f"""
        s_barrier
        s_add_u32 s49, s49, 16384
        s_add_u32 s48, s48, 1
        s_cmp_lt_u32 s48, 8
        s_cbranch_scc1 L_{L}_fbloop
        v_mov_b32 v44, v42
        v_mov_b32 v45, v43
        s_nop 1
        v_permlane32_swap_b32 v42, v44
        v_permlane32_swap_b32 v43, v45
        s_nop 1
        v_max_f32 v42, v42, v44
        v_max_f32 v43, v43, v45
        v_sub_f32 v42, 0, v42
        v_sub_f32 v43, 0, v43
        s_mov_b32 s46, 1
        """)
        for db in range(4): a(f"v_subrev_u32 v{28+db}, 16384, v{28+db}")
        a(f"s_add_u32 s45, s44, 16384")
        k_dma(KRING, "s44"); k_dma(KRING+16384, "s45"); v_dma(VRING, "s44")
        a(f"""
        s_waitcnt vmcnt(0)
        s_barrier
        s_branch L_{L}_att
        L_{L}_fin:
        """)
    a("""
    v_rcp_f32 v40, v40
    v_rcp_f32 v41, v41
    s_nop 7
    s_nop 7
    """)
    for qb in range(2):
        a(f"""
        s_add_u32 s26, s25, {qb}
        s_mul_i32 s26, s26, {4096*64}
        s_lshl_b32 s27, s24, 13
        s_add_u32 s26, s26, s27
        """)
        for db in range(4):
            o = O(db, qb)
            for j in range(16): a(f"v_accvgpr_read_b32 v{64+j}, a{o+j}")
            for j in range(16): a(f"v_mul_f32 v{64+j}, v{64+j}, v{40+qb}")
            t = 80+8*(db & 1)
            for j in range(8): a(f"v_cvt_pk_bf16_f32 v{t+j}, v{64+2*j}, v{64+2*j+1}")
            if db == 2: a("s_add_u32 s26, s26, 4096")
            a(f"buffer_store_dwordx4 v[{t}:{t+3}], v2, s[40:43], s26 offen offset:{(db&1)*2048}{stflag}")
            a(f"buffer_store_dwordx4 v[{t+4}:{t+7}], v2, s[40:43], s26 offen offset:{(db&1)*2048+1024}{stflag}")
    if stamp is not None:
        stamp_mid(a, 4); stamp_end2(a, stamp, 10)
    a(f"""
    L_{L}_done:
    s_endpgm
    """)
    txt = a.text()
    return (name, (256,1,1), (256,1,1), 163840), txt, kernel_desc(name, 256+192, accum=256)
```

```python
from asmlib import *
from gen_small import *
from gen_gemm import lane_common, tr_lane_terms, Filt
from stream import *

WS_P1 = 0x5000000
WS_P2 = 0x6000000

def g256_setup_w(a, w_stride, vW=4, vT=8, nbase=1):
    a(f"""
    v_lshrrev_b32 v32, 4, v1               ; L>>4
    v_and_b32 v33, 15, v1                  ; p
    v_lshlrev_b32 v34, 2, v32
    v_xor_b32 v34, v33, v34
    v_lshlrev_b32 v34, 4, v34
    v_mul_u32_u24 v35, {w_stride}, v32
    v_add_u32 v{vW}, v35, v34
    v_add_u32 v{vW+1}, {4*w_stride-1024}, v{vW}
    v_add_u32 v{vW+2}, {8*w_stride-2048}, v{vW}
    v_add_u32 v{vW+3}, {12*w_stride-3072}, v{vW}
    """)
def g256_setup_tr(a, vT=8, nbase=1):
    tr_lane_terms(a, 32, 33, 34, 35)
    a("""
    v_lshrrev_b32 v35, 1, v34              ; sw>>1
    v_lshl_add_u32 v35, v33, 1, v35        ; c0
    v_bfe_u32 v36, v1, 2, 2                ; i>>2
    v_lshlrev_b32 v37, 2, v36              ; swz
    v_and_b32 v34, 1, v34
    v_lshlrev_b32 v34, 3, v34              ; half8*8
    v_lshl_add_u32 v38, v32, 8, v34
    """)
    for db in range(4):
        a(f"""
        v_or_b32 v42, {4*db}, v35
        v_xor_b32 v42, v42, v37
        v_lshl_add_u32 v{vT+db}, v42, 4, v38
        """)
        for b in range(1, nbase): a(f"v_add_u32 v{vT+4*b+db}, {65536*b}, v{vT+db}")

class G256:
    def __init__(self, a, KT, w_stride, NSLOT, NBUF, ACC=64, vW=4, vT=8):
        self.a = a; self.KT = KT; self.ws = w_stride; self.NSLOT = NSLOT; self.NBUF = NBUF; self.ACC = ACC
        self.vW = vW; self.vT = vT; self.FR = 32*NBUF
        self.log = VmLog(); self.cur = dict(m0=None, ws=0, as_=0)
        g = self
        def wdma(s, j):
            out = []
            if g.cur['ws'] != s:
                out.append(f"s_add_u32 s28, s28, {(s-g.cur['ws'])*64*g.ws}"); g.cur['ws'] = s
            want = (s % NSLOT)*16384
            if g.cur['m0'] != want:
                out.append(f"s_add_u32 m0, s30, {want}"); out.append("s_nop 0"); g.cur['m0'] = want
            out.append(f"buffer_load_dwordx4 v{g.vW+j}, s[12:15], s28 offen offset:{1024*j} lds")
            return out
        wdma.n = 4
        self.wdma = wdma
    def hbuf(self, buf, qb, ks): r = 32*buf+16*qb+4*ks; return f"a[{r}:{r+3}]"
    def actload(self, s, ks, tb):
        pre = ""
        if self.cur['as_'] != s:
            pre = f"s_mov_b32 s29, {s*4096}\n"; self.cur['as_'] = s
        return pre+f"buffer_load_dwordx4 {self.hbuf(s % self.NBUF, tb, ks)}, v{2+tb}, s[16:19], s29 offen offset:{1024*ks}"
    def qacc(self, db, qb): return self.ACC+(2*db+qb)*16
    def wfr(self, q, db): return self.FR+(q % 2)*16+4*db
    def wreads(self, t, ks):
        q = 4*t+ks; slot = t % self.NSLOT; out = []
        for db in range(4):
            r = self.wfr(q, db)
            for hf in range(2):
                out.append(f"ds_read_b64_tr_b16 a[{r+2*hf}:{r+2*hf+1}], v{self.vT+4*(slot//4)+db} offset:{(slot%4)*16384+(16*ks+4*hf)*256}")
        return out
    def mfma(self, t, ks, db, qb):
        r = self.wfr(4*t+ks, db); c = self.qacc(db, qb)
        return f"v_mfma_f32_32x32x16_bf16 v[{c}:{c+15}], a[{r}:{r+3}], {self.hbuf(t % self.NBUF, qb, ks)}, v[{c}:{c+15}]"
    def issue_stage(self, s):
        a = self.a
        for j in range(4):
            for l in self.wdma(s, j): a(l)
            self.log.issue(('W', s, j))
            for tb in range(2):
                a(self.actload(s, j, tb)); self.log.issue(('A', s, j, tb))
    def first_wait(self):
        a = self.a
        a(f"s_waitcnt vmcnt({self.log.wait_for(lambda x: x[0] in 'WA' and x[1] == 0)})")
        a("s_barrier")
        for s in self.wreads(0, 0): a(s)
    def stream(self, pre, gap=2, extra=None, extra_after=None):
        emit_stream(self.a, self.KT, 4, 2, self.NSLOT, self.NBUF, self.wreads, self.mfma, self.wdma, self.actload, self.log, pre, gap=gap, extra=extra, extra_after=extra_after)

def gen_g256(name, kind, stamp=None, NSLOT=6, NBUF=5, pre=2, gap=2, dbg="", stflag=" sc0 sc1"):
    a = Filt(dbg); L = name
    cfg = {
      "oproj": dict(KT=16, w_arg=32, ws=2048, wbytes=4096*1024*2, act=WS_OF, atb=4096*64, nwg=256),
      "ffn1":  dict(KT=16, w_arg=48, ws=7168, wbytes=1024*3584*2, act=WS_H2F, atb=1024*64, nwg=224),
      "ffn2":  dict(KT=14, w_arg=56, ws=2048, wbytes=3584*1024*2, act=WS_HIDF, atb=3584*64, nwg=256),
    }[kind]
    KT, ws, atb = cfg["KT"], cfg["ws"], cfg["atb"]
    kernel_begin(a, name)
    a(f"""
    s_cmp_ge_u32 s2, {cfg["nwg"]}
    s_cbranch_scc1 L_{L}_done
    s_load_dwordx2 s[4:5], s[0:1], {cfg["w_arg"]}
    s_load_dwordx2 s[6:7], s[0:1], 96
    """)
    if stamp is not None: stamp_begin(a)
    lane_common(a)
    a("""
    s_and_b32 s21, s2, 7
    s_lshr_b32 s22, s2, 3
    s_and_b32 s23, s21, 3                  ; q
    s_lshr_b32 s24, s21, 2
    s_lshl_b32 s24, s24, 2                 ; 4*th
    """)
    if kind == "ffn1":
        a("""
        s_mul_i32 s25, s22, 37
        s_lshr_b32 s25, s25, 8
        s_add_u32 s24, s24, s25
        s_mul_i32 s25, s25, 7
        s_sub_u32 s25, s22, s25            ; idx % 7
        s_mul_i32 s26, s23, 7
        s_add_u32 s25, s25, s26
        s_mov_b32 s26, 0                   ; k offset rows
        s_mov_b32 s27, 0
        """)
    else:
        kq = KT*64
        a(f"""
        s_lshr_b32 s25, s22, 3
        s_add_u32 s24, s24, s25
        s_and_b32 s25, s22, 7              ; n tile
        s_mul_i32 s26, s23, {kq}           ; k offset rows
        s_mul_i32 s27, s23, {kq*64}
        """)
    a(f"""
    s_lshl_b32 s24, s24, 3
    s_lshl_b32 s31, s20, 1
    s_add_u32 s24, s24, s31
    v_add_u32 v3, {atb}, v2
    """)
    g256_setup_w(a, ws)
    a("s_waitcnt lgkmcnt(0)")
    if stamp is not None: stamp_mid(a, 0)
    srd(a, 12, 4, cfg["wbytes"])
    a(f"""
    s_mul_i32 s31, s24, {atb}
    s_add_u32 s31, s31, s27
    s_add_u32 s31, s31, {cfg["act"]}
    s_add_u32 s16, s6, s31
    s_addc_u32 s17, s7, 0
    s_mov_b32 s18, {atb+KT*4096}
    s_mov_b32 s19, 0x20000
    s_lshl_b32 s31, s20, 4
    s_add_u32 s31, s31, s26
    s_mul_i32 s28, s31, {ws}
    s_lshl_b32 s31, s25, 8
    s_add_u32 s28, s28, s31                ; W soffset
    s_mov_b32 s29, 0
    s_lshl_b32 s30, s20, 12
    """)
    g = G256(a, KT, ws, NSLOT, NBUF)
    g.issue_stage(0)
    g256_setup_tr(a, 8, (NSLOT+3)//4)
    for s in range(1, pre): g.issue_stage(s)
    for i in range(128): a(f"v_mov_b32 v{64+i}, 0")
    if kind == "ffn1":
        srd(a, 40, 6, 2048*3584*2, WS_HIDF); otb = 3584*64
        a(f"s_mul_i32 s26, s24, {otb}\ns_lshl_b32 s27, s25, 13\ns_add_u32 s26, s26, s27")
    else:
        otb = 65536
        a(f"""
        s_lshl_b32 s31, s23, 22
        s_add_u32 s31, s31, {WS_P1 if kind == "oproj" else WS_P2}
        s_add_u32 s40, s6, s31
        s_addc_u32 s41, s7, 0
        s_mov_b32 s42, {2048*1024*2}
        s_mov_b32 s43, 0x20000
        s_lshl_b32 s26, s24, 16
        s_lshl_b32 s27, s25, 13
        s_add_u32 s26, s26, s27
        """)
    g.first_wait()
    if stamp is not None: stamp_mid(a, 1)
    a.inloop = True
    g.stream(pre, gap)
    a.inloop = False
    if stamp is not None: stamp_mid(a, 2)
    a("s_nop 15")
    for qb in range(2):
        if qb == 1: a(f"s_add_u32 s26, s26, {otb-4096}")
        for db in range(4):
            c = g.qacc(db, qb); t = 20+8*(db & 1)
            for j in range(8):
                a(f"v_cvt_pk_bf16_f32 v{t+j}, v{c+2*j}, v{c+2*j+1}")
                if kind == "ffn1": a(f"v_pk_max_i16 v{t+j}, v{t+j}, 0")
            if db == 2: a("s_add_u32 s26, s26, 4096")
            a(f"buffer_store_dwordx4 v[{t}:{t+3}], v2, s[40:43], s26 offen offset:{(db&1)*2048}{stflag}")
            a(f"buffer_store_dwordx4 v[{t+4}:{t+7}], v2, s[40:43], s26 offen offset:{(db&1)*2048+1024}{stflag}")
    if stamp is not None: stamp_mid(a, 3); stamp_end2(a, stamp, 6)
    a(f"""
    L_{L}_done:
    s_endpgm
    """)
    return (name, (cfg["nwg"],1,1), (256,1,1), NSLOT*16384), a.text(), kernel_desc(name, 256+32*NBUF+32, accum=256)
```

```python
from asmlib import *
from gen_small import *

def lane_common(a):
    a("""
    v_lshrrev_b32 v2, 6, v0
    v_and_b32 v1, 63, v0
    v_readfirstlane_b32 s20, v2
    v_lshlrev_b32 v2, 4, v1
    """)

def tr_lane_terms(a, vk, vg1, vsw, t0):
    a(f"""
    v_lshrrev_b32 v{t0}, 5, v1            ; g>>1
    v_bfe_u32 v{vk}, v1, 2, 2             ; i>>2
    v_lshl_add_u32 v{vk}, v{t0}, 3, v{vk}
    v_bfe_u32 v{vg1}, v1, 4, 1
    v_and_b32 v{t0}, 1, v1
    v_bfe_u32 v{vsw}, v1, 1, 1
    v_lshl_or_b32 v{vsw}, v{t0}, 1, v{vsw}
    """)

def gen_gemm(name, kind, dbg="", stamp=None):
    a0 = Asm(); L = name
    class A2:
        inloop = False
        def __call__(self, txt=""):
            if self.inloop:
                out = []
                for l in txt.split("\n"):
                    t = l.strip()
                    if "novmem" in dbg and t.startswith("buffer_load"): continue
                    if "noact" in dbg and t.startswith("buffer_load") and not t.endswith("lds"): continue
                    if "now" in dbg and t.startswith("buffer_load") and t.endswith("lds"): continue
                    if "nolds" in dbg and t.startswith("ds_read"): continue
                    if "nomfma" in dbg and t.startswith("v_mfma"): continue
                    if "nobar" in dbg and t.startswith("s_barrier"): continue
                    out.append(l)
                txt = "\n".join(out)
            a0(txt)
        def raw(self, s): a0.raw(s)
        def text(self): return a0.text()
    a = A2()
    if kind == "oproj":
        NB, KT, NSLOT, PD = 2, 64, 8, 4
        w_arg, w_stride, w_bytes = 32, 2048, 4096*1024*2
        act_off, actK = WS_OF, 4096
    elif kind == "ffn2":
        NB, KT, NSLOT, PD = 2, 56, 8, 4
        w_arg, w_stride, w_bytes = 56, 2048, 3584*1024*2
        act_off, actK = WS_HIDF, 3584
    elif kind == "ffn1":
        NB, KT, NSLOT, PD = 7, 16, 4, 1
        w_arg, w_stride, w_bytes = 48, 7168, 1024*3584*2
        act_off, actK = WS_H2F, 1024
    wlin = "wlin" in dbg
    if wlin:
        w_stride = NB*64
    PFS = 15
    ROWB = NB*64
    SLOT = 64*ROWB
    ND = SLOT//1024//4
    D = NSLOT-1 if PD == 4 else NSLOT
    NBUF = NSLOT
    ACC = 64
    def acc(nb): return f"v[{ACC+16*nb}:{ACC+16*nb+15}]"
    ACT = 0
    def act(buf, ks): r = ACT+16*buf+4*ks; return f"a[{r}:{r+3}]"
    FR = NBUF*16
    NRING = 8 if PD == 4 else 2
    def frag(q, nb): r = FR+(q % NRING)*NB*4+nb*4; return r
    NAG = FR+NRING*NB*4
    kernel_begin(a, name)
    a(f"""
    s_cmp_ge_u32 s2, 256
    s_cbranch_scc1 L_{L}_done
    s_load_dwordx2 s[4:5], s[0:1], {w_arg}
    s_load_dwordx2 s[6:7], s[0:1], 96
    s_load_dwordx2 s[8:9], s[0:1], 0
    s_load_dwordx2 s[10:11], s[0:1], 80
    """)
    if stamp is not None: stamp_begin(a)
    lane_common(a)
    a("s_and_b32 s21, s2, 7\ns_lshr_b32 s22, s2, 3")
    if NB == 2:
        a("""
        s_lshr_b32 s23, s21, 1
        s_lshl_b32 s23, s23, 2
        s_lshr_b32 s24, s22, 3
        s_add_u32 s23, s23, s24
        s_and_b32 s24, s21, 1
        s_lshl_b32 s24, s24, 3
        s_and_b32 s25, s22, 7
        s_add_u32 s24, s24, s25          ; n tile
        s_lshl_b32 s25, s24, 7
        """)
    else:
        a("""
        s_lshr_b32 s23, s21, 2
        s_lshl_b32 s23, s23, 3
        s_lshr_b32 s24, s22, 2
        s_add_u32 s23, s23, s24
        s_and_b32 s24, s21, 3
        s_lshl_b32 s24, s24, 2
        s_and_b32 s25, s22, 3
        s_add_u32 s24, s24, s25          ; n tile
        s_mul_i32 s25, s24, 448
        """)
    if "sameN" in dbg: a("s_mov_b32 s24, 0\ns_mov_b32 s25, 0")
    if "sameT" in dbg: a("s_mov_b32 s23, 0")
    a("""
    s_lshl_b32 s23, s23, 2
    s_add_u32 s23, s23, s20
    """)
    if NB == 2:
        a("""
        v_lshrrev_b32 v3, 3, v1          ; row_in
        v_and_b32 v4, 7, v1              ; p
        v_bfe_u32 v5, v1, 4, 1           ; (row_in>>1)&1
        v_lshlrev_b32 v5, 2, v5
        v_xor_b32 v4, v4, v5             ; c
        v_lshlrev_b32 v4, 4, v4
        v_lshl_add_u32 v8, v3, WSH, v4
        v_add_u32 v9, WADD, v8          ; +8 rows*stride - 1024
        """.replace("WSH", "7" if wlin else "11").replace("WADD", "0" if wlin else "15360"))
    else:
        a("s_mov_b32 s26, 0x924924a")
        a(f"s_mov_b32 s27, {w_stride}")
        for j in range(ND):
            a(f"""
            v_add_u32 v3, {64*j}, v1
            v_mul_hi_u32 v4, v3, s26     ; row
            v_mul_u32_u24 v5, 28, v4
            v_sub_u32 v5, v3, v5         ; chunk
            v_mul_lo_u32 v4, v4, s27
            v_lshl_add_u32 v4, v5, 4, v4
            v_subrev_u32 v{8+j}, {1024*(j%4)}, v4
            """)
    tr_lane_terms(a, 3, 4, 5, 6)
    if NB == 2:
        a("""
        v_lshrrev_b32 v6, 1, v5          ; sw>>1
        v_lshl_add_u32 v6, v4, 1, v6     ; 2*(g&1) + (sw>>1)
        v_bfe_u32 v7, v1, 3, 1
        v_lshlrev_b32 v7, 2, v7          ; swz
        v_and_b32 v5, 1, v5
        v_lshlrev_b32 v5, 3, v5          ; half8*8
        v_lshl_add_u32 v5, v3, 7, v5     ; k*128 + half8*8
        v_xor_b32 v16, v6, v7
        v_or_b32 v6, 4, v6
        v_xor_b32 v17, v6, v7
        v_lshl_add_u32 v16, v16, 4, v5
        v_lshl_add_u32 v17, v17, 4, v5
        """)
    else:
        a(f"""
        v_mul_u32_u24 v3, {ROWB}, v3
        v_lshlrev_b32 v4, 5, v4
        v_lshlrev_b32 v5, 3, v5
        v_add3_u32 v16, v3, v4, v5
        v_add_u32 v17, {2*SLOT}, v16
        """)
    a("s_waitcnt lgkmcnt(0)")
    if stamp is not None: stamp_mid(a, 0)
    if wlin:
        srd(a, 12, 6, w_bytes, WS_WLIN + (0 if kind == "oproj" else 0x800000))
        a(f"s_mul_i32 s45, s24, {actK*128}")
    else:
        srd(a, 12, 4, w_bytes)
    a(f"""
    s_mul_i32 s26, s23, {actK*64}
    s_add_u32 s26, s26, {act_off}
    s_add_u32 s16, s6, s26
    s_addc_u32 s17, s7, 0
    s_mov_b32 s18, {actK*64}
    s_mov_b32 s19, 0x20000
    s_mul_i32 s28, s20, {16*w_stride}
    s_add_u32 s28, s28, {"s45" if wlin else "s25"}
    s_mov_b32 s29, 0
    s_mul_i32 s30, s20, {SLOT//4}
    """)
    pf = "pf" in dbg.split("_")
    if pf:
        a(f"""
        s_lshr_b32 s46, s2, 3
        s_and_b32 s47, s46, 7            ; nt local
        s_lshr_b32 s46, s46, 3
        s_lshl_b32 s46, s46, 2
        s_add_u32 s46, s46, s20          ; q
        s_lshl_b32 s47, s47, 12
        v_lshlrev_b32 v18, 6, v1
        v_add_u32 v18, s47, v18
        v_lshrrev_b32 v19, 1, v1
        v_and_b32 v3, 1, v1
        v_mul_u32_u24 v19, {w_stride}, v19
        v_lshl_add_u32 v19, v3, 6, v19
        s_mul_i32 s46, s46, {32*w_stride}
        s_add_u32 s46, s46, {"s45" if wlin else "s25"}
        s_add_u32 s46, s46, {PFS*64*w_stride}
        s_mov_b32 s47, {PFS*4096}
        """)
    npre = 0
    if kind == "oproj":
        srd(a, 32, 8, 2048*1024*2)
        srd(a, 36, 6, 6144*4, WS_MOD)
        srd(a, 40, 6, 2048*1024*2, WS_X1F)
        a(f"""
        v_and_b32 v3, 31, v1
        v_lshrrev_b32 v4, 5, v1
        s_lshl_b32 s26, s23, 16          ; tb*32*2048
        s_add_u32 s26, s26, s25
        v_lshlrev_b32 v3, 11, v3
        v_lshl_add_u32 v3, v4, 4, v3
        v_lshlrev_b32 v4, 5, v4
        s_lshl_b32 s27, s25, 1
        s_add_u32 s27, s27, {2*4096}
        """)
        for nb in range(2):
            for s in range(2):
                j = nb*2+s
                a(f"buffer_load_dwordx4 v[{20+4*j}:{23+4*j}], v3, s[32:35], s26 offen offset:{nb*64+s*32}")
        for nb in range(2):
            for s in range(2):
                j = nb*2+s
                a(f"buffer_load_dwordx4 v[{192+8*j}:{195+8*j}], v4, s[36:39], s27 offen offset:{nb*128+s*64}")
                a(f"buffer_load_dwordx4 v[{196+8*j}:{199+8*j}], v4, s[36:39], s27 offen offset:{nb*128+s*64+16}")
        npre = 12
    elif kind == "ffn2":
        srd(a, 32, 6, 2048*1024*2, WS_X1F)
        srd(a, 36, 6, 6144*4, WS_MOD)
        srd(a, 40, 10, 2048*1024*2)
        a(f"""
        v_lshrrev_b32 v4, 5, v1
        s_lshl_b32 s26, s23, 16          ; tb*65536
        s_lshl_b32 s27, s24, 12          ; ntile*8 chunks*512
        s_add_u32 s26, s26, s27
        v_lshlrev_b32 v4, 5, v4
        s_lshl_b32 s27, s25, 1
        s_add_u32 s27, s27, {5*4096}
        """)
        for j in range(4):
            a(f"buffer_load_dwordx4 v[{20+4*j}:{23+4*j}], v2, s[32:35], s26 offen offset:{j*1024}")
        for nb in range(2):
            for s in range(2):
                j = nb*2+s
                a(f"buffer_load_dwordx4 v[{192+8*j}:{195+8*j}], v4, s[36:39], s27 offen offset:{nb*128+s*64}")
                a(f"buffer_load_dwordx4 v[{196+8*j}:{199+8*j}], v4, s[36:39], s27 offen offset:{nb*128+s*64+16}")
        npre = 12
    else:
        srd(a, 40, 6, 2048*3584*2, WS_HIDF)
    for i in range(NB*16): a(f"v_mov_b32 v{ACC+i}, 0")

    def w_dma(slot):
        a(f"s_add_u32 m0, s30, {slot*SLOT}")
        a("s_nop 0")
        for j in range(ND):
            if j == 4:
                a(f"s_add_u32 m0, s30, {slot*SLOT+4096}")
                a("s_nop 0")
            a(f"buffer_load_dwordx4 v{8+j}, s[12:15], s28 offen offset:{1024*(j%4)} lds")
        a(f"s_add_u32 s28, s28, {64*w_stride}")
    def act_load(buf, ks):
        a(f"buffer_load_dwordx4 {act(buf,ks)}, v2, s[16:19], s29 offen offset:{1024*ks}")
    def act_adv(): a("s_add_u32 s29, s29, 4096")
    def frag_read_list(t, ks):
        q = 4*t+ks; slot = t % NSLOT; out = []
        for nb in range(NB):
            r = frag(q, nb)
            for hf in range(2):
                if NB == 2:
                    out.append(f"ds_read_b64_tr_b16 a[{r+2*hf}:{r+2*hf+1}], v{16+nb} offset:{slot*SLOT+(16*ks+4*hf)*ROWB}")
                else:
                    base = 16 if slot < 2 else 17
                    out.append(f"ds_read_b64_tr_b16 a[{r+2*hf}:{r+2*hf+1}], v{base} offset:{(slot%2)*SLOT+(16*ks+4*hf)*ROWB+64*nb}")
        return out
    def mfma(t, ks, nb):
        q = 4*t+ks; r = frag(q, nb)
        a(f"v_mfma_f32_32x32x16_bf16 {acc(nb)}, a[{r}:{r+3}], {act(t % NBUF, ks)}, {acc(nb)}")

    if PD == 4:
        for t in range(D):
            w_dma(t % NSLOT)
            for ks in range(4): act_load(t % NBUF, ks)
            act_adv()
        a(f"s_waitcnt vmcnt({4+(D-1)*(ND+4)})")
        a("s_barrier")
        for ks in range(4):
            for s in frag_read_list(0, ks): a(s)
    else:
        for t in range(D):
            for ks in range(3): act_load(t, ks)
            w_dma(t)
            act_load(t, 3); act_adv()
        a(f"s_waitcnt vmcnt({(D-1)*(ND+4)})")
        a("s_barrier")
        for s in frag_read_list(0, 0): a(s)

    if stamp is not None: stamp_mid(a, 1)
    def body(t0, tail):
        for u in range(NSLOT):
            t = u
            if pf and u == 0 and not tail:
                a("buffer_load_dword v60, v18, s[16:19], s47 offen")
                a("buffer_load_dword v61, v19, s[12:15], s46 offen")
                a(f"s_add_u32 s47, s47, {8*4096}")
                a(f"s_add_u32 s46, s46, {8*64*w_stride}")
            tt = (KT-NSLOT+u) if tail else None
            has_load = (not tail) or (tt+D < KT)
            last = tail and u == NSLOT-1
            if PD == 4:
                if not last:
                    if not tail: n = 4+(D-2)*(ND+4)+(2 if (pf and u <= D-2+0 and u < 6) else 0)
                    else:
                        rem = KT-1-(tt+1)
                        rem = min(rem, D-2)
                        n = 4+rem*(ND+4)
                    a(f"s_waitcnt vmcnt({n})")
                    a("s_barrier")
                else:
                    a("s_waitcnt vmcnt(0)")
                reads = [] if last else [frag_read_list(t+1, ks) for ks in range(4)]
                for ks in range(4):
                    younger = 3*2*NB if not last else (3-ks)*2*NB
                    a(f"s_waitcnt lgkmcnt({min(15, younger)})")
                    rl = list(reads[ks]) if reads else []
                    mfma(t, ks, 0)
                    for s in rl[:2]: a(s)
                    if ks == 0 and has_load: w_dma((t+D) % NSLOT)
                    if ks >= 0 and has_load and ks > 0: act_load((t+D) % NBUF, ks-1)
                    mfma(t, ks, 1)
                    for s in rl[2:]: a(s)
                if has_load:
                    act_load((t+D) % NBUF, 3); act_adv()
            else:
                for ks in range(4):
                    if ks == 3 and not last:
                        if not tail: n = 2*(ND+4)+3
                        else:
                            n = min(KT-1-(tt+1), 2)*(ND+4)
                        a(f"s_waitcnt vmcnt({n}) lgkmcnt(0)")
                        a("s_barrier")
                    if ks < 3: rl = frag_read_list(t, ks+1)
                    else: rl = [] if last else frag_read_list(t+1, 0)
                    for nb in range(NB):
                        if not (ks == 3 and not last):
                            a(f"s_waitcnt lgkmcnt({2*(NB-1) if rl else 2*(NB-1-nb)})")
                        mfma(t, ks, nb)
                        for s in rl[2*nb:2*nb+2]: a(s)
                        if ks == 3 and nb == 0 and has_load: w_dma((t+D) % NSLOT)
                    if has_load:
                        act_load((t+D) % NBUF, ks)
                        if ks == 3: act_adv()
    nloop = KT//NSLOT-1
    a(f"s_mov_b32 s31, {nloop}")
    a(f"L_{L}_loop:")
    a.inloop = True
    body(0, False)
    a(f"""
    s_sub_u32 s31, s31, 1
    s_cmp_lg_u32 s31, 0
    s_cbranch_scc1 L_{L}_loop
    """)
    body(0, True)
    a.inloop = False
    if stamp is not None: stamp_mid(a, 2)
    a("s_nop 15")
    a("s_mov_b32 s44, 0xffff0000")
    if kind in ("oproj", "ffn2"):
        for j in range(4):
            nb, s = j >> 1, j & 1
            for d in range(4):
                a(f"v_lshlrev_b32 v40, 16, v{20+4*j+d}")
                a(f"v_and_b32 v41, s44, v{20+4*j+d}")
                a(f"v_fmac_f32 v40, v{192+8*j+2*d}, v{ACC+16*nb+8*s+2*d}")
                a(f"v_fmac_f32 v41, v{192+8*j+2*d+1}, v{ACC+16*nb+8*s+2*d+1}")
                a(f"v_cvt_pk_bf16_f32 v{44+4*j+d}, v40, v41")
        if kind == "oproj":
            a("""
            s_lshl_b32 s26, s23, 16
            s_lshl_b32 s27, s24, 12
            s_add_u32 s26, s26, s27
            """)
            for j in range(4):
                a(f"buffer_store_dwordx4 v[{44+4*j}:{47+4*j}], v2, s[40:43], s26 offen offset:{1024*j}")
        else:
            a("""
            v_and_b32 v3, 31, v1
            v_lshrrev_b32 v4, 5, v1
            v_lshlrev_b32 v3, 11, v3
            v_lshl_add_u32 v3, v4, 4, v3
            s_lshl_b32 s26, s23, 16
            s_add_u32 s26, s26, s25
            """)
            for j in range(4):
                a(f"buffer_store_dwordx4 v[{44+4*j}:{47+4*j}], v3, s[40:43], s26 offen offset:{(j>>1)*64+(j&1)*32}")
    else:
        a(f"""
        s_mul_i32 s26, s23, {3584*64}
        s_mul_i32 s27, s24, {28*512}
        s_add_u32 s26, s26, s27
        """)
        for nb in range(NB):
            for s in range(2):
                j = 2*nb+s
                o = 20+4*(j % 8)
                for d in range(4):
                    r = ACC+16*nb+8*s+2*d
                    a(f"v_max_f32 v{r}, 0, v{r}")
                    a(f"v_max_f32 v{r+1}, 0, v{r+1}")
                    a(f"v_cvt_pk_bf16_f32 v{o+d}, v{r}, v{r+1}")
                if j % 4 == 0 and j > 0: a("s_add_u32 s26, s26, 4096")
                a(f"buffer_store_dwordx4 v[{o}:{o+3}], v2, s[40:43], s26 offen offset:{1024*(j % 4)}")
    if stamp is not None: stamp_mid(a, 3)
    if stamp is not None: stamp_end2(a, stamp, 6)
    a(f"""
    L_{L}_done:
    s_endpgm
    """)
    nv = 256+NAG
    return (name, (256,1,1), (256,1,1), NSLOT*SLOT), a.text(), kernel_desc(name, nv, accum=256)

from stream import *
class Filt:
    def __init__(self, dbg): self.a0 = Asm(); self.dbg = dbg; self.inloop = False
    def __call__(self, txt=""):
        if self.inloop:
            out = []; dbg = self.dbg
            for l in txt.split("\n"):
                t = l.strip()
                if "novmem" in dbg and t.startswith("buffer_load"): continue
                if "noact" in dbg and t.startswith("buffer_load") and not t.endswith("lds"): continue
                if "now" in dbg and t.startswith("buffer_load") and t.endswith("lds"): continue
                if "nolds" in dbg and t.startswith("ds_read"): continue
                if "nomfma" in dbg and t.startswith("v_mfma"): continue
                if "nobar" in dbg and t.startswith("s_barrier"): continue
                if "nowait" in dbg and t.startswith("s_waitcnt lgkmcnt"): continue
                out.append(l)
            txt = "\n".join(out)
        self.a0(txt)
    def raw(self, s): self.a0.raw(s)
    def text(self): return self.a0.text()

def gen_ffn1(name="ffn1_kernel", stamp=None, NSLOT=5, NBUF=5, pre=2, gap=2, dbg=""):
    a = Filt(dbg); L = name
    NB, KT = 7, 16
    w_stride, w_bytes, actK = 7168, 1024*3584*2, 1024
    ROWB = 448; SLOT = 64*ROWB; ND = 7
    ACC = 64
    def acc(nb): return f"v[{ACC+16*nb}:{ACC+16*nb+15}]"
    def act(buf, ks): r = 16*buf+4*ks; return f"a[{r}:{r+3}]"
    FR = NBUF*16
    def frag(q, nb): return FR+(q % 2)*NB*4+nb*4
    NAG = FR+2*NB*4
    kernel_begin(a, name)
    a(f"""
    s_cmp_ge_u32 s2, 256
    s_cbranch_scc1 L_{L}_done
    s_load_dwordx2 s[4:5], s[0:1], 48
    s_load_dwordx2 s[6:7], s[0:1], 96
    """)
    if stamp is not None: stamp_begin(a)
    lane_common(a)
    a("""
    s_and_b32 s21, s2, 7
    s_lshr_b32 s22, s2, 3
    s_lshr_b32 s23, s21, 2
    s_lshl_b32 s23, s23, 3
    s_lshr_b32 s24, s22, 2
    s_add_u32 s23, s23, s24
    s_and_b32 s24, s21, 3
    s_lshl_b32 s24, s24, 2
    s_and_b32 s25, s22, 3
    s_add_u32 s24, s24, s25          ; n tile
    s_mul_i32 s25, s24, 448
    s_lshl_b32 s23, s23, 2
    s_add_u32 s23, s23, s20
    s_mov_b32 s26, 0x924924a
    """)
    wlin = "wlin" in dbg
    if wlin:
        w_stride = 448
        a("v_mov_b32 v8, v2\nv_add_u32 v12, 4096, v2")
        a(f"s_mul_i32 s25, s24, {1024*448}")
    else:
        a(f"s_mov_b32 s27, {w_stride}")
        for j in range(ND):
            a(f"""
            v_add_u32 v3, {64*j}, v1
            v_mul_hi_u32 v4, v3, s26
            v_mul_u32_u24 v5, 28, v4
            v_sub_u32 v5, v3, v5
            v_mul_lo_u32 v4, v4, s27
            v_lshl_add_u32 v4, v5, 4, v4
            v_subrev_u32 v{8+j}, {1024*(j%4)}, v4
            """)
    a("s_waitcnt lgkmcnt(0)")
    if stamp is not None: stamp_mid(a, 0)
    if wlin: srd(a, 12, 6, w_bytes, WS_WLIN+0x1000000)
    else: srd(a, 12, 4, w_bytes)
    a(f"""
    s_mul_i32 s26, s23, {actK*64}
    s_add_u32 s26, s26, {WS_H2F}
    s_add_u32 s16, s6, s26
    s_addc_u32 s17, s7, 0
    s_mov_b32 s18, {actK*64}
    s_mov_b32 s19, 0x20000
    s_mul_i32 s28, s20, {16*w_stride}
    s_add_u32 s28, s28, s25
    s_mul_i32 s30, s20, {SLOT//4}
    """)
    log = VmLog()
    cur = dict(m0=None, ws=0, as_=0)
    def wdma(s, j):
        out = []
        if cur['ws'] != s:
            out.append(f"s_add_u32 s28, s28, {(s-cur['ws'])*64*w_stride}"); cur['ws'] = s
        want = (s % NSLOT)*SLOT+(4096 if j >= 4 else 0)
        if cur['m0'] != want:
            out.append(f"s_add_u32 m0, s30, {want}"); out.append("s_nop 0"); cur['m0'] = want
        vr = (8+j) if not wlin else (8 if j < 4 else 12)
        out.append(f"buffer_load_dwordx4 v{vr}, s[12:15], s28 offen offset:{1024*(j%4)} lds")
        return out
    wdma.n = ND
    def actload(s, ks, tb):
        pre_ = ""
        if cur['as_'] != s:
            pre_ = f"s_mov_b32 s29, {s*4096}\n"; cur['as_'] = s
        return pre_+f"buffer_load_dwordx4 {act(s % NBUF, ks)}, v2, s[16:19], s29 offen offset:{1024*ks}"
    a("s_mov_b32 s29, 0")
    def issue_stage(s):
        for j in range(ND):
            for l in wdma(s, j): a(l)
            log.issue(('W', s, j))
            if j < 4: a(actload(s, j, 0)); log.issue(('A', s, j, 0))
    issue_stage(0)
    tr_lane_terms(a, 3, 4, 5, 6)
    a(f"""
    v_mul_u32_u24 v3, {ROWB}, v3
    v_lshlrev_b32 v4, 5, v4
    v_lshlrev_b32 v5, 3, v5
    v_add3_u32 v16, v3, v4, v5
    v_add_u32 v17, {2*SLOT}, v16
    v_add_u32 v18, {4*SLOT}, v16
    """)
    for s in range(1, pre): issue_stage(s)
    for i in range(NB*16): a(f"v_mov_b32 v{ACC+i}, 0")
    srd(a, 40, 6, 2048*3584*2, WS_HIDF)
    def wreads(t, ks):
        q = 4*t+ks; slot = t % NSLOT; out = []
        for nb in range(NB):
            r = frag(q, nb)
            for hf in range(2):
                out.append(f"ds_read_b64_tr_b16 a[{r+2*hf}:{r+2*hf+1}], v{16+slot//2} offset:{(slot%2)*SLOT+(16*ks+4*hf)*ROWB+64*nb}")
        return out
    def mfma(t, ks, nb, tb):
        r = frag(4*t+ks, nb)
        return f"v_mfma_f32_32x32x16_bf16 {acc(nb)}, a[{r}:{r+3}], {act(t % NBUF, ks)}, {acc(nb)}"
    a(f"s_waitcnt vmcnt({log.wait_for(lambda x: x[1] == 0)})")
    a("s_barrier")
    for s in wreads(0, 0): a(s)
    if stamp is not None: stamp_mid(a, 1)
    a.inloop = True
    emit_stream(a, KT, NB, 1, NSLOT, NBUF, wreads, mfma, wdma, actload, log, pre, gap=gap)
    a.inloop = False
    if stamp is not None: stamp_mid(a, 2)
    a("s_nop 15")
    a(f"""
    s_mul_i32 s26, s23, {3584*64}
    s_mul_i32 s27, s24, {28*512}
    s_add_u32 s26, s26, s27
    """)
    st = "" if "plain" in dbg else (" sc0 sc1" if "wt" in dbg else (" nt" if "nt" in dbg else ""))
    for nb in range(NB):
        for s in range(2):
            j = 2*nb+s
            o = 20+4*(j % 8)
            for d in range(4):
                r = ACC+16*nb+8*s+2*d
                a(f"v_max_f32 v{r}, 0, v{r}")
                a(f"v_max_f32 v{r+1}, 0, v{r+1}")
                a(f"v_cvt_pk_bf16_f32 v{o+d}, v{r}, v{r+1}")
            if j % 4 == 0 and j > 0: a("s_add_u32 s26, s26, 4096")
            a(f"buffer_store_dwordx4 v[{o}:{o+3}], v2, s[40:43], s26 offen offset:{1024*(j % 4)}{st}")
    if stamp is not None: stamp_mid(a, 3)
    if stamp is not None: stamp_end2(a, stamp, 6)
    a(f"""
    L_{L}_done:
    s_endpgm
    """)
    return (name, (256,1,1), (256,1,1), NSLOT*SLOT), a.text(), kernel_desc(name, 256+NAG, accum=256)
```

```python
from asmlib import *
from gen_small import *
from gen_g256 import WS_P1, WS_P2

def common_head(a, L, stamp):
    a(f"""
    s_cmp_ge_u32 s2, 256
    s_cbranch_scc1 L_{L}_done
    s_load_dwordx2 s[4:5], s[0:1], 0
    s_load_dwordx2 s[6:7], s[0:1], 80
    s_load_dwordx2 s[8:9], s[0:1], 96
    """)
    if stamp is not None: stamp_begin(a)
    a(f"""
    v_and_b32 v1, 7, v0
    v_lshrrev_b32 v2, 3, v0              ; 8w + cl
    v_and_b32 v3, 7, v2                  ; cl
    v_lshrrev_b32 v4, 6, v0              ; w
    v_lshl_add_u32 v5, v4, 4, v3
    s_lshr_b32 s10, s2, 2
    s_and_b32 s11, s2, 3
    s_lshl_b32 s10, s10, 16
    s_lshl_b32 s11, s11, 7
    s_add_u32 s10, s10, s11
    v_lshlrev_b32 v6, 9, v5
    v_lshl_add_u32 v6, v1, 4, v6
    v_add_u32 v6, s10, v6
    v_add_u32 v8, 4096, v6
    v_lshlrev_b32 v9, 5, v5
    """)

def load_partials(a, off):
    srd(a, 24, 8, 4*2048*1024*2, off)
    a("s_mov_b32 s28, 0x400000\ns_mov_b32 s29, 0x800000\ns_mov_b32 s30, 0xc00000")
    for q, so in enumerate(["0", "s28", "s29", "s30"]):
        a(f"buffer_load_dwordx4 v[{100+8*q}:{103+8*q}], v6, s[24:27], {so} offen")
        a(f"buffer_load_dwordx4 v[{104+8*q}:{107+8*q}], v8, s[24:27], {so} offen")

def load_vec(a, dst, idx, sreg):
    a(f"s_mov_b32 s{sreg}, {idx*4096}")
    a(f"buffer_load_dwordx4 v[{dst}:{dst+3}], v9, s[16:19], s{sreg} offen")
    a(f"buffer_load_dwordx4 v[{dst+4}:{dst+7}], v9, s[16:19], s{sreg} offen offset:16")
    a(f"buffer_load_dwordx4 v[{dst+8}:{dst+11}], v9, s[16:19], s{sreg} offen offset:256")
    a(f"buffer_load_dwordx4 v[{dst+12}:{dst+15}], v9, s[16:19], s{sreg} offen offset:272")

def sum_partials_and_residual(a, res, gate, out):
    for j in range(8):
        a(f"v_lshlrev_b32 v{84+2*j}, 16, v{100+j}")
        a(f"v_and_b32 v{85+2*j}, s27_, v{100+j}".replace("s27_", "s33"))
    for q in range(1, 4):
        for j in range(8):
            a(f"v_lshlrev_b32 v40, 16, v{100+8*q+j}")
            a(f"v_and_b32 v41, s33, v{100+8*q+j}")
            a(f"v_add_f32 v{84+2*j}, v{84+2*j}, v40")
            a(f"v_add_f32 v{85+2*j}, v{85+2*j}, v41")
    for j in range(8):
        a(f"v_lshlrev_b32 v{out+2*j}, 16, v{res+j}")
        a(f"v_and_b32 v{out+2*j+1}, s33, v{res+j}")
    for j in range(16): a(f"v_fmac_f32 v{out+j}, v{gate+j}, v{84+j}")

def gen_ln2p(name="ln2_kernel", stamp=None, stflag=""):
    a = Asm(); L = name
    kernel_begin(a, name); common_head(a, L, stamp)
    a("""
    s_lshl_b32 s12, s2, 14
    v_lshlrev_b32 v7, 11, v1
    v_lshl_add_u32 v7, v5, 4, v7
    v_add_u32 v7, s12, v7
    s_waitcnt lgkmcnt(0)
    """)
    load_partials(a, WS_P1)
    srd(a, 12, 4, 2048*1024*2)
    a("buffer_load_dwordx4 v[12:15], v7, s[12:15], 0 offen")
    a("buffer_load_dwordx4 v[16:19], v7, s[12:15], 0 offen offset:128")
    srd(a, 16, 8, 6144*4, WS_MOD)
    load_vec(a, 132, 2, 34)
    load_vec(a, 52, 4, 35)
    load_vec(a, 68, 3, 36)
    srd(a, 20, 8, 2048*1024*2, WS_H2F)
    srd(a, 44, 8, 2048*1024*2, WS_X1F)
    a("s_mov_b32 s33, 0xffff0000")
    a("s_waitcnt vmcnt(8)")
    sum_partials_and_residual(a, 12, 132, 20)
    for j in range(8): a(f"v_cvt_pk_bf16_f32 v{12+j}, v{20+2*j}, v{21+2*j}")
    a(f"buffer_store_dwordx4 v[12:15], v6, s[44:47], 0 offen{stflag}")
    a(f"buffer_store_dwordx4 v[16:19], v8, s[44:47], 0 offen{stflag}")
    def reduce_lanes(r, t):
        a("s_nop 1")
        a(f"v_add_f32_dpp v{r}, v{r}, v{r} row_ror:8 row_mask:0xf bank_mask:0xf")
        a(f"v_mov_b32 v{t}, v{r}")
        a("s_nop 1")
        a(f"v_permlane16_swap_b32 v{r}, v{t}")
        a("s_nop 1")
        a(f"v_add_f32 v{r}, v{r}, v{t}")
        a(f"v_mov_b32 v{t}, v{r}")
        a("s_nop 1")
        a(f"v_permlane32_swap_b32 v{r}, v{t}")
        a("s_nop 1")
        a(f"v_add_f32 v{r}, v{r}, v{t}")
    a("v_add_f32 v36, v20, v21")
    a("v_add_f32 v37, v22, v23")
    for j in range(2, 8):
        a(f"v_add_f32 v{36+(j&1)}, v{36+(j&1)}, v{20+2*j}")
        a(f"v_add_f32 v{36+(j&1)}, v{36+(j&1)}, v{21+2*j}")
    a("v_add_f32 v36, v36, v37")
    reduce_lanes(36, 38)
    a("v_mul_f32 v36, 0x3c000000, v36")
    for j in range(16): a(f"v_sub_f32 v{84+j}, v{20+j}, v36")
    a("v_mul_f32 v37, v84, v84")
    a("v_mul_f32 v39, v85, v85")
    for j in range(2, 16, 2):
        a(f"v_fmac_f32 v37, v{84+j}, v{84+j}")
        a(f"v_fmac_f32 v39, v{85+j}, v{85+j}")
    a("v_add_f32 v37, v37, v39")
    reduce_lanes(37, 38)
    a("""
    v_lshlrev_b32 v40, 6, v1
    v_lshl_add_u32 v41, v4, 3, v40
    v_and_b32 v42, 63, v0
    v_cmp_gt_u32 vcc, 8, v42
    s_and_saveexec_b64 s[30:31], vcc
    ds_write_b64 v41, v[36:37]
    s_mov_b64 exec, s[30:31]
    s_waitcnt lgkmcnt(0)
    s_barrier
    ds_read_b128 v[84:87], v40
    ds_read_b128 v[88:91], v40 offset:16
    ds_read_b128 v[92:95], v40 offset:32
    ds_read_b128 v[96:99], v40 offset:48
    s_waitcnt lgkmcnt(0)
    """)
    a("v_add_f32 v36, v84, v86")
    for j in range(2, 8): a(f"v_add_f32 v36, v36, v{84+2*j}")
    a("v_mul_f32 v36, 0x3e000000, v36")
    a("v_add_f32 v37, v85, v87")
    for j in range(2, 8): a(f"v_add_f32 v37, v37, v{85+2*j}")
    for j in range(8): a(f"v_sub_f32 v{84+2*j}, v{84+2*j}, v36")
    a("v_mul_f32 v38, v84, v84")
    for j in range(1, 8): a(f"v_fmac_f32 v38, v{84+2*j}, v{84+2*j}")
    a(f"""
    v_mov_b32 v39, 0x43000000
    v_fmac_f32 v37, v39, v38
    v_mov_b32 v39, 0x3727c5ac
    v_fmac_f32 v39, 0x3a800000, v37
    v_rsq_f32 v39, v39
    s_waitcnt vmcnt(2)
    """)
    for j in range(16): a(f"v_sub_f32 v{20+j}, v{20+j}, v36")
    for j in range(16): a(f"v_add_f32 v{52+j}, 1.0, v{52+j}")
    for j in range(16): a(f"v_mul_f32 v{20+j}, v{20+j}, v39")
    for j in range(16): a(f"v_fmac_f32 v{68+j}, v{20+j}, v{52+j}")
    for j in range(8): a(f"v_cvt_pk_bf16_f32 v{12+j}, v{68+2*j}, v{69+2*j}")
    a(f"""
    buffer_store_dwordx4 v[12:15], v6, s[20:23], 0 offen{stflag}
    buffer_store_dwordx4 v[16:19], v8, s[20:23], 0 offen{stflag}
    """)
    if stamp is not None:
        a("s_mov_b32 s70, 0\ns_mov_b32 s71, 0\ns_mov_b32 s72, 0\ns_mov_b32 s73, 0\ns_mov_b32 s74, 0")
        stamp_end2(a, stamp, 8)
    a(f"L_{L}_done:\ns_endpgm")
    return (name, (256,1,1), (512,1,1), 512), a.text(), kernel_desc(name, 152, sgpr=102)

def gen_redk(name="red_kernel", stamp=None):
    a = Asm(); L = name
    kernel_begin(a, name); common_head(a, L, stamp)
    a("s_waitcnt lgkmcnt(0)")
    load_partials(a, WS_P2)
    srd(a, 12, 8, 2048*1024*2, WS_X1F)
    a("buffer_load_dwordx4 v[12:15], v6, s[12:15], 0 offen")
    a("buffer_load_dwordx4 v[16:19], v8, s[12:15], 0 offen")
    srd(a, 16, 8, 6144*4, WS_MOD)
    load_vec(a, 132, 5, 34)
    srd(a, 20, 6, 2048*1024*2)
    a("""
    v_xor_b32 v42, v3, v1                ; cl ^ tk
    v_lshlrev_b32 v42, 4, v42
    v_lshl_add_u32 v42, v1, 8, v42
    v_lshl_add_u32 v42, v4, 11, v42      ; write addr (+128 for chunk1)
    v_and_b32 v43, 63, v0
    v_lshrrev_b32 v44, 3, v43            ; tk'
    v_and_b32 v45, 7, v43                ; c'
    v_xor_b32 v46, v45, v44
    v_lshlrev_b32 v46, 4, v46
    v_lshl_add_u32 v46, v44, 8, v46
    v_lshl_add_u32 v46, v4, 11, v46      ; read addr
    s_lshl_b32 s12_, s2, 14
    v_lshlrev_b32 v47, 11, v44
    v_lshl_add_u32 v47, v45, 4, v47
    v_lshl_add_u32 v47, v4, 8, v47       ; + 16w chunks*16
    v_add_u32 v47, s12_, v47             ; out offset
    s_mov_b32 s33, 0xffff0000
    s_waitcnt vmcnt(0)
    """.replace("s12_", "s37"))
    sum_partials_and_residual(a, 12, 132, 20)
    for j in range(8): a(f"v_cvt_pk_bf16_f32 v{12+j}, v{20+2*j}, v{21+2*j}")
    a("""
    ds_write_b128 v42, v[12:15]
    ds_write_b128 v42, v[16:19] offset:128
    s_waitcnt lgkmcnt(0)
    ds_read_b128 v[20:23], v46
    ds_read_b128 v[24:27], v46 offset:128
    s_waitcnt lgkmcnt(1)
    buffer_store_dwordx4 v[20:23], v47, s[20:23], 0 offen
    s_waitcnt lgkmcnt(0)
    buffer_store_dwordx4 v[24:27], v47, s[20:23], 0 offen offset:128
    """)
    if stamp is not None:
        a("s_mov_b32 s70, 0\ns_mov_b32 s71, 0\ns_mov_b32 s72, 0\ns_mov_b32 s73, 0\ns_mov_b32 s74, 0")
        stamp_end2(a, stamp, 8)
    a(f"L_{L}_done:\ns_endpgm")
    return (name, (256,1,1), (512,1,1), 16384), a.text(), kernel_desc(name, 152, sgpr=102)
```

```python
from asmlib import *

WS_MOD  = 0x0000000
WS_HF   = 0x0100000
WS_OF   = 0x1000000
WS_X1F  = 0x2000000
WS_H2F  = 0x2400000
WS_HIDF = 0x3000000
WS_WLIN = 0x4000000

def srd(a, r, base, nbytes, off=0):
    if off:
        a(f"s_add_u32 s{r}, s{base}, {off}")
        a(f"s_addc_u32 s{r+1}, s{base+1}, 0")
    else:
        a(f"s_mov_b32 s{r}, s{base}")
        a(f"s_mov_b32 s{r+1}, s{base+1}")
    a(f"s_mov_b32 s{r+2}, {nbytes}")
    a(f"s_mov_b32 s{r+3}, 0x20000")

def gen_k0(name="k0_kernel", prefetch=None, stamp=None, pfwg=True, code_bytes=131072, stride=128, pf_wq=False):
    a = Asm()
    kernel_begin(a, name)
    a(f"""
    s_cmp_ge_u32 s2, 96
    s_cbranch_scc1 {"L_k0_pf" if pfwg else "L_k0_done"}
    s_load_dwordx4 s[4:7], s[0:1], 64
    s_load_dwordx2 s[8:9], s[0:1], 96
    """)
    if stamp is not None: stamp_begin(a)
    a(f"""
    v_lshrrev_b32 v1, 3, v0              ; 8w+g
    v_and_b32 v2, 7, v0                  ; cc
    v_lshlrev_b32 v3, 5, v1
    s_mov_b32 s24, 196608                ; 16*12288
    v_mul_lo_u32 v4, v1, s24
    v_lshlrev_b32 v2, 4, v2
    s_lshl_b32 s25, s2, 7
    v_add3_u32 v4, v4, v2, s25
    s_waitcnt lgkmcnt(0)
    """)
    srd(a, 12, 4, 2048)
    srd(a, 16, 6, 1024*6144*2)
    srd(a, 20, 8, 6144*4, WS_MOD)
    a("""
    buffer_load_dwordx4 v[8:11], v3, s[12:15], 0 offen
    buffer_load_dwordx4 v[12:15], v3, s[12:15], 0 offen offset:16
    s_mov_b32 s26, 0
    """)
    for i in range(16):
        a(f"buffer_load_dwordx4 v[{64+4*i}:{67+4*i}], v4, s[16:19], s26 offen")
        if i < 15: a(f"s_add_u32 s26, s26, 12288")
    if prefetch:
        prefetch(a)
        npf = prefetch.n
    else:
        npf = 0
    a(f"""
    s_mov_b32 s27, 0xffff0000
    s_mov_b32 s28, 0xbfb8aa3b            ; -log2(e)
    s_waitcnt vmcnt({16+npf})
    """)
    for j in range(8):
        a(f"v_lshlrev_b32 v{16+2*j}, 16, v{8+j}")
        a(f"v_and_b32 v{17+2*j}, s27, v{8+j}")
    for j in range(16): a(f"v_mul_f32 v{32+j}, s28, v{16+j}")
    for j in range(16): a(f"v_exp_f32 v{32+j}, v{32+j}")
    for j in range(16): a(f"v_add_f32 v{32+j}, 1.0, v{32+j}")
    for j in range(16): a(f"v_rcp_f32 v{32+j}, v{32+j}")
    for j in range(16): a(f"v_mul_f32 v{16+j}, v{16+j}, v{32+j}")
    for j in range(8): a(f"v_cvt_pk_bf16_f32 v{8+j}, v{16+2*j}, v{17+2*j}")
    for j in range(8):
        a(f"v_lshlrev_b32 v{16+2*j}, 16, v{8+j}")
        a(f"v_and_b32 v{17+2*j}, s27, v{8+j}")
    for e in range(8): a(f"v_mov_b32 v{32+e}, 0")
    for i in range(16):
        a(f"s_waitcnt vmcnt({15-i+npf})")
        for d in range(4):
            r = 64+4*i+d
            a(f"v_lshlrev_b32 v40, 16, v{r}")
            a(f"v_and_b32 v41, s27, v{r}")
            a(f"v_fmac_f32 v{32+2*d}, v{16+i}, v40")
            a(f"v_fmac_f32 v{33+2*d}, v{16+i}, v41")
    a("s_nop 1")
    for e in range(8): a(f"v_add_f32_dpp v{32+e}, v{32+e}, v{32+e} row_ror:8 row_mask:0xf bank_mask:0xf")
    for e in range(8): a(f"v_mov_b32 v{40+e}, v{32+e}")
    a("s_nop 1")
    for e in range(8): a(f"v_permlane16_swap_b32 v{32+e}, v{40+e}")
    a("s_nop 1")
    for e in range(8): a(f"v_add_f32 v{32+e}, v{32+e}, v{40+e}")
    for e in range(8): a(f"v_mov_b32 v{40+e}, v{32+e}")
    a("s_nop 1")
    for e in range(8): a(f"v_permlane32_swap_b32 v{32+e}, v{40+e}")
    a("s_nop 1")
    for e in range(8): a(f"v_add_f32 v{32+e}, v{32+e}, v{40+e}")
    a("""
    v_and_b32 v5, 63, v0
    v_lshrrev_b32 v6, 6, v0              ; wave
    v_lshlrev_b32 v7, 8, v6              ; w*256
    v_lshl_add_u32 v7, v5, 5, v7
    v_cmp_gt_u32 vcc, 8, v5
    s_and_saveexec_b64 s[30:31], vcc
    ds_write_b128 v7, v[32:35]
    ds_write_b128 v7, v[36:39] offset:16
    s_mov_b64 exec, s[30:31]
    s_waitcnt lgkmcnt(0)
    s_barrier
    v_cmp_gt_u32 vcc, 64, v0
    s_and_saveexec_b64 s[30:31], vcc
    s_cbranch_execz L_k0_end
    v_lshlrev_b32 v7, 2, v0
    """)
    for j in range(8): a(f"ds_read_b32 v{16+j}, v7 offset:{256*j}")
    a("""
    s_lshl_b32 s25, s2, 8
    v_add_u32 v6, s25, v7
    s_waitcnt lgkmcnt(0)
    v_add_f32 v16, v16, v17
    v_add_f32 v18, v18, v19
    v_add_f32 v20, v20, v21
    v_add_f32 v22, v22, v23
    v_add_f32 v16, v16, v18
    v_add_f32 v20, v20, v22
    v_add_f32 v16, v16, v20
    buffer_store_dword v16, v6, s[20:23], 0 offen
    L_k0_end:
    s_mov_b64 exec, s[30:31]
    """)
    if stamp is not None: stamp_end2(a, stamp, 8)
    a("""
    L_k0_done:
    s_endpgm
    """)
    if pfwg:
        a(f"""
        L_k0_pf:
        s_cmp_ge_u32 s2, 256
        s_cbranch_scc1 L_k0_done
        s_load_dwordx4 s[4:7], s[0:1], 0       ; x, k
        s_load_dwordx4 s[8:11], s[0:1], 16     ; v, wq
        s_getpc_b64 s[28:29]
        L_k0_pc:
        s_add_u32 s28, s28, L_code_begin-L_k0_pc
        s_addc_u32 s29, s29, 0
        v_lshrrev_b32 v2, 6, v0
        v_and_b32 v1, 63, v0
        v_readfirstlane_b32 s20, v2
        s_and_b32 s21, s2, 7                   ; xcd
        s_sub_u32 s22, s2, 96
        s_lshr_b32 s22, s22, 3
        s_lshl_b32 s22, s22, 3
        s_add_u32 s22, s22, s20                ; gid 0..159
        v_lshrrev_b32 v3, 4, v1                ; l>>4
        v_and_b32 v4, 15, v1
        v_lshlrev_b32 v4, 7, v4                ; line*128
        v_lshlrev_b32 v5, 7, v1                ; l*128
        s_waitcnt lgkmcnt(0)
        """)
        srd(a, 12, 4, 2048*1024*2)
        srd(a, 16, 10, 1024*4096*2)
        a(f"""
        s_cmp_ge_u32 s22, 64
        s_cbranch_scc1 L_k0_pf_kv
        s_lshr_b32 s23, s22, 1
        s_lshl_b32 s23, s23, 3
        s_add_u32 s23, s23, s21
        s_lshl_b32 s23, s23, 3
        s_and_b32 s24, s22, 1
        s_lshl_b32 s24, s24, 2
        s_add_u32 s23, s23, s24
        s_lshl_b32 s23, s23, 11
        v_lshl_add_u32 v6, v3, 11, v4
        buffer_load_dword v8, v6, s[12:15], s23 offen
        s_branch L_k0_pf_wq
        L_k0_pf_kv:
        s_cmp_ge_u32 s22, 96
        s_cbranch_scc1 L_k0_pf_code
        s_sub_u32 s23, s22, 64                 ; 0..31 : 0..15 K, 16..31 V
        s_cmp_ge_u32 s23, 16
        s_cselect_b32 s12, s8, s6
        s_cselect_b32 s13, s9, s7
        s_mov_b32 s14, {4*2048*128*2}
        s_and_b32 s23, s23, 15
        s_lshl_b32 s23, s23, 13
        s_and_b32 s24, s21, 3
        s_lshl_b32 s24, s24, 19
        s_add_u32 s23, s23, s24
        s_add_u32 s23, s23, {1536*256}
        buffer_load_dword v8, v5, s[12:15], s23 offen
        s_branch L_k0_pf_wq
        L_k0_pf_code:
        s_cmp_ge_u32 s22, {96+code_bytes//8192}
        s_cbranch_scc1 L_k0_pf_wq
        s_sub_u32 s23, s22, 96
        s_lshl_b32 s23, s23, 13
        v_add_u32 v6, s23, v5
        v_min_u32 v6, L_code_end-L_code_begin, v6
        global_load_dword v8, v6, s[28:29]
        L_k0_pf_wq:
        s_and_b32 s24, s21, 3
        s_lshl_b32 s24, s24, 11                ; g*2048
        v_lshl_add_u32 v6, v3, 13, v4
        s_lshl_b32 s23, s22, 15
        s_add_u32 s23, s23, s24
        """)
        if pf_wq:
            a(f"""
            buffer_load_dword v9, v6, s[16:19], s23 offen
            s_add_u32 s23, s23, {160*32768}
            buffer_load_dword v10, v6, s[16:19], s23 offen
            """)
        a(f"""
        s_waitcnt vmcnt(0)
        s_endpgm
        L_code_begin:
        s_endpgm
        """)
    return (name, (256 if pfwg else 96,1,1), (512,1,1), 2048), a.text(), kernel_desc(name, 128, sgpr=102)

def gen_ln(name, src, dst_off, shift_idx, scale_idx, outscale, stamp=None, pf_wq=False):
    a = Asm()
    L = name
    kernel_begin(a, name)
    import struct
    osc = struct.unpack("<I", struct.pack("<f", outscale))[0]
    a(f"""
    s_cmp_ge_u32 s2, 256
    s_cbranch_scc1 L_{L}_done
    s_load_dwordx2 s[4:5], s[0:1], 0
    s_load_dwordx2 s[8:9], s[0:1], 96
    """)
    if stamp is not None: stamp_begin(a)
    a(f"""
    v_and_b32 v1, 7, v0
    v_lshrrev_b32 v2, 3, v0              ; 8w + cl
    v_and_b32 v3, 7, v2                  ; cl
    v_lshrrev_b32 v4, 6, v0              ; w
    v_lshl_add_u32 v5, v4, 4, v3
    s_lshr_b32 s10, s2, 2
    s_and_b32 s11, s2, 3
    s_lshl_b32 s10, s10, 16
    s_lshl_b32 s11, s11, 7
    s_add_u32 s10, s10, s11
    v_lshlrev_b32 v6, 9, v5
    v_lshl_add_u32 v6, v1, 4, v6
    v_add_u32 v6, s10, v6
    v_lshlrev_b32 v9, 5, v5
    """)
    if src == 'x':
        a("""
        s_lshl_b32 s12, s2, 14
        v_lshlrev_b32 v7, 11, v1
        v_lshl_add_u32 v7, v5, 4, v7
        v_add_u32 v7, s12, v7
        """)
    a("s_waitcnt lgkmcnt(0)")
    if src == 'x':
        srd(a, 12, 4, 2048*1024*2)
        a("buffer_load_dwordx4 v[12:15], v7, s[12:15], 0 offen")
        a("buffer_load_dwordx4 v[16:19], v7, s[12:15], 0 offen offset:128")
    else:
        srd(a, 12, 8, 2048*1024*2, src[1])
        a("v_add_u32 v7, 4096, v6")
        a("buffer_load_dwordx4 v[12:15], v6, s[12:15], 0 offen")
        a("buffer_load_dwordx4 v[16:19], v7, s[12:15], 0 offen")
    if pf_wq:
        a(f"""
        s_load_dwordx2 s[34:35], s[0:1], 24
        v_and_b32 v44, 63, v0
        v_lshrrev_b32 v45, 4, v44
        v_and_b32 v44, 15, v44
        v_lshlrev_b32 v44, 7, v44
        v_lshl_add_u32 v44, v45, 13, v44
        v_readfirstlane_b32 s36, v4
        s_lshr_b32 s37, s2, 3
        s_lshl_b32 s37, s37, 3
        s_add_u32 s37, s37, s36
        s_lshl_b32 s37, s37, 15
        s_and_b32 s38, s2, 3
        s_lshl_b32 s38, s38, 11
        s_add_u32 s37, s37, s38
        s_waitcnt lgkmcnt(0)
        """)
        srd(a, 40, 34, 1024*4096*2)
    srd(a, 16, 8, 6144*4, WS_MOD)
    srd(a, 20, 8, 2048*1024*2, dst_off)
    a(f"s_mov_b32 s24, {scale_idx*4096}")
    a(f"s_mov_b32 s25, {shift_idx*4096}")
    a("buffer_load_dwordx4 v[52:55], v9, s[16:19], s24 offen")
    a("buffer_load_dwordx4 v[56:59], v9, s[16:19], s24 offen offset:16")
    a("buffer_load_dwordx4 v[60:63], v9, s[16:19], s24 offen offset:256")
    a("buffer_load_dwordx4 v[64:67], v9, s[16:19], s24 offen offset:272")
    a("buffer_load_dwordx4 v[68:71], v9, s[16:19], s25 offen")
    a("buffer_load_dwordx4 v[72:75], v9, s[16:19], s25 offen offset:16")
    a("buffer_load_dwordx4 v[76:79], v9, s[16:19], s25 offen offset:256")
    a("buffer_load_dwordx4 v[80:83], v9, s[16:19], s25 offen offset:272")
    if pf_wq: a("buffer_load_dword v46, v44, s[40:43], s37 offen")
    a("s_mov_b32 s27, 0xffff0000")
    a(f"s_waitcnt vmcnt({9 if pf_wq else 8})")
    for j in range(8):
        a(f"v_lshlrev_b32 v{20+2*j}, 16, v{12+j}")
        a(f"v_and_b32 v{21+2*j}, s27, v{12+j}")
    def reduce_lanes(r, t):
        a("s_nop 1")
        a(f"v_add_f32_dpp v{r}, v{r}, v{r} row_ror:8 row_mask:0xf bank_mask:0xf")
        a(f"v_mov_b32 v{t}, v{r}")
        a("s_nop 1")
        a(f"v_permlane16_swap_b32 v{r}, v{t}")
        a("s_nop 1")
        a(f"v_add_f32 v{r}, v{r}, v{t}")
        a(f"v_mov_b32 v{t}, v{r}")
        a("s_nop 1")
        a(f"v_permlane32_swap_b32 v{r}, v{t}")
        a("s_nop 1")
        a(f"v_add_f32 v{r}, v{r}, v{t}")
    a("v_add_f32 v36, v20, v21")
    a("v_add_f32 v37, v22, v23")
    for j in range(2, 8):
        a(f"v_add_f32 v{36+(j&1)}, v{36+(j&1)}, v{20+2*j}")
        a(f"v_add_f32 v{36+(j&1)}, v{36+(j&1)}, v{21+2*j}")
    a("v_add_f32 v36, v36, v37")
    reduce_lanes(36, 38)
    a("v_mul_f32 v36, 0x3c000000, v36")
    for j in range(16): a(f"v_sub_f32 v{84+j}, v{20+j}, v36")
    a("v_mul_f32 v37, v84, v84")
    a("v_mul_f32 v39, v85, v85")
    for j in range(2, 16, 2):
        a(f"v_fmac_f32 v37, v{84+j}, v{84+j}")
        a(f"v_fmac_f32 v39, v{85+j}, v{85+j}")
    a("v_add_f32 v37, v37, v39")
    reduce_lanes(37, 38)
    a("""
    v_lshlrev_b32 v40, 6, v1
    v_lshl_add_u32 v41, v4, 3, v40
    v_and_b32 v42, 63, v0
    v_cmp_gt_u32 vcc, 8, v42
    s_and_saveexec_b64 s[30:31], vcc
    ds_write_b64 v41, v[36:37]
    s_mov_b64 exec, s[30:31]
    s_waitcnt lgkmcnt(0)
    s_barrier
    ds_read_b128 v[84:87], v40
    ds_read_b128 v[88:91], v40 offset:16
    ds_read_b128 v[92:95], v40 offset:32
    ds_read_b128 v[96:99], v40 offset:48
    s_waitcnt lgkmcnt(0)
    """)
    a("v_add_f32 v36, v84, v86")
    for j in range(2, 8): a(f"v_add_f32 v36, v36, v{84+2*j}")
    a("v_mul_f32 v36, 0x3e000000, v36")
    a("v_add_f32 v37, v85, v87")
    for j in range(2, 8): a(f"v_add_f32 v37, v37, v{85+2*j}")
    for j in range(8): a(f"v_sub_f32 v{84+2*j}, v{84+2*j}, v36")
    a("v_mul_f32 v38, v84, v84")
    for j in range(1, 8): a(f"v_fmac_f32 v38, v{84+2*j}, v{84+2*j}")
    a(f"""
    v_mov_b32 v39, 0x43000000
    v_fmac_f32 v37, v39, v38             ; M2 total
    v_mov_b32 v39, 0x3727c5ac            ; 1e-5
    v_fmac_f32 v39, 0x3a800000, v37
    v_rsq_f32 v39, v39
    s_waitcnt vmcnt({1 if pf_wq else 0})
    """)
    for j in range(16): a(f"v_sub_f32 v{20+j}, v{20+j}, v36")
    for j in range(16): a(f"v_add_f32 v{52+j}, 1.0, v{52+j}")
    for j in range(16): a(f"v_mul_f32 v{20+j}, v{20+j}, v39")
    for j in range(16): a(f"v_fmac_f32 v{68+j}, v{20+j}, v{52+j}")
    if outscale != 1.0:
        a(f"s_mov_b32 s28, {osc}")
        for j in range(16): a(f"v_mul_f32 v{68+j}, s28, v{68+j}")
    for j in range(8): a(f"v_cvt_pk_bf16_f32 v{12+j}, v{68+2*j}, v{69+2*j}")
    a(f"""
    v_add_u32 v7, 4096, v6
    buffer_store_dwordx4 v[12:15], v6, s[20:23], 0 offen
    buffer_store_dwordx4 v[16:19], v7, s[20:23], 0 offen
    """)
    if stamp is not None: stamp_end2(a, stamp, 8)
    a(f"""
    L_{L}_done:
    s_endpgm
    """)
    return (name, (256,1,1), (512,1,1), 512), a.text(), kernel_desc(name, 104, sgpr=102)


WS_STAMP = 0x8000000
def stamp_begin(a):
    a("""
    s_memtime s[90:91]
    s_memrealtime s[92:93]
    """)
def stamp_end(a, slot, wsreg):
    a(f"""
    s_waitcnt vmcnt(0) lgkmcnt(0)
    s_memtime s[94:95]
    s_memrealtime s[96:97]
    s_add_u32 s84, s{wsreg}, {WS_STAMP + slot*16384}
    s_addc_u32 s85, s{wsreg+1}, 0
    s_mov_b32 s86, 16384
    s_mov_b32 s87, 0x20000
    s_waitcnt lgkmcnt(0)
    s_sub_u32 s94, s94, s90
    v_mov_b32 v4, s94
    v_mov_b32 v5, s92
    v_mov_b32 v6, s96
    v_mov_b32 v7, s2
    s_lshl_b32 s88, s2, 4
    v_mov_b32 v8, s88
    v_cmp_eq_u32 vcc, 0, v0
    s_and_saveexec_b64 s[98:99], vcc
    s_cbranch_execz L_stamp_skip_{slot}
    buffer_store_dwordx4 v[4:7], v8, s[84:87], 0 offen
    L_stamp_skip_{slot}:
    s_mov_b64 exec, s[98:99]
    """)

def stamp_mid(a, k):
    a(f"""
    s_memtime s[68:69]
    s_waitcnt lgkmcnt(0)
    s_sub_u32 s{70+k}, s68, s90
    """)
def stamp_end2(a, slot, wsreg):
    a(f"""
    s_waitcnt vmcnt(0) lgkmcnt(0)
    s_memtime s[94:95]
    s_memrealtime s[96:97]
    s_add_u32 s84, s{wsreg}, {WS_STAMP + slot*16384}
    s_addc_u32 s85, s{wsreg+1}, 0
    s_mov_b32 s86, 16384
    s_mov_b32 s87, 0x20000
    s_waitcnt lgkmcnt(0)
    s_sub_u32 s94, s94, s90
    v_mov_b32 v4, s94
    v_mov_b32 v5, s92
    v_mov_b32 v6, s96
    v_mov_b32 v7, s70
    v_mov_b32 v8, s71
    v_mov_b32 v9, s72
    v_mov_b32 v10, s73
    v_mov_b32 v11, s74
    s_lshl_b32 s88, s2, 5
    v_mov_b32 v12, s88
    v_cmp_eq_u32 vcc, 0, v0
    s_and_saveexec_b64 s[98:99], vcc
    s_cbranch_execz L_stamp_skip_{slot}
    buffer_store_dwordx4 v[4:7], v12, s[84:87], 0 offen
    buffer_store_dwordx4 v[8:11], v12, s[84:87], 0 offen offset:16
    L_stamp_skip_{slot}:
    s_mov_b64 exec, s[98:99]
    """)
```

```python
class VmLog:
    def __init__(self): self.ops = []
    def issue(self, tag): self.ops.append(tag)
    def wait_for(self, pred):
        last = -1
        for i, t in enumerate(self.ops):
            if pred(t): last = i
        n = len(self.ops)-1-last
        assert n <= 63, n
        return n

def emit_stream(a, KT, NB, TB, NSLOT, NBUF, wreads, mfma, wdma, actload, log, pre_stages, gap=2, extra=None, extra_after=None, final_barrier=False):
    nW = wdma.n
    q = []
    for s in range(pre_stages, KT):
        order = []
        acts = [('A', s, ks, tb) for ks in range(4) for tb in range(TB)]
        ws = [('W', s, j) for j in range(nW)]
        i = j = 0
        while i < len(acts) or j < len(ws):
            if j < len(ws) and j*len(acts) <= i*len(ws): order.append(ws[j]); j += 1
            else: order.append(acts[i]); i += 1
        q += order
        if extra and s in extra_after: q += [('X', k) for k in extra_after[s]]
    state = dict(mf_done=set(), bar=0)
    def ready(op):
        if op[0] == 'X': return True
        if op[0] == 'W':
            s = op[1]
            return s-NSLOT+1 <= state['bar'] or s < NSLOT
        s, ks = op[1], op[2]
        return s < NBUF or (s-NBUF, ks) in state['mf_done']
    def issue_next():
        if q and ready(q[0]):
            op = q.pop(0)
            if op[0] == 'W': lines = wdma(op[1], op[2])
            elif op[0] == 'A': lines = [actload(op[1], op[2], op[3])]
            else: lines = extra[op[1]][1]()
            for l in lines: a(l)
            log.issue(op if op[0] != 'X' else extra[op[1]][0])
            return True
        return False
    m = 0
    for t in range(KT):
        last = t == KT-1
        for ks in range(4):
            bar_here = (ks == 3 and not last)
            if bar_here:
                while any(x[0] in 'WA' and x[1] <= t+1 for x in q):
                    assert issue_next(), q[0]
                n = log.wait_for(lambda x: x[0] in 'WA' and x[1] <= t+1)
                a(f"s_waitcnt vmcnt({n}) lgkmcnt(0)")
                a("s_barrier")
                state['bar'] = t+1
            if ks < 3: rl = wreads(t, ks+1)
            else: rl = [] if last else wreads(t+1, 0)
            for nb in range(NB):
                if not bar_here:
                    a(f"s_waitcnt lgkmcnt({2*(NB-1) if rl else 2*(NB-1-nb)})")
                for tb in range(TB):
                    a(mfma(t, ks, nb, tb))
                    m += 1
                    if tb == 0:
                        for s in rl[2*nb:2*nb+2]: a(s)
                    if nb == NB-1 and tb == TB-1: state['mf_done'].add((t, ks))
                    if m % gap == 0: issue_next()
    while q:
        assert issue_next(), q[0]
```

```python
import sys, math
from asmlib import *
from gen_small import *
from gen_gemm import *
from gen_attn import *
from gen_g256 import *
from gen_red import *
QS = 128**-0.5 * math.log2(math.e)
def build(kernels, path):
    launches = [k[0] for k in kernels]
    seen = set(); bodies = []; descs = []
    for k in kernels:
        if k[0][0] in seen: continue
        seen.add(k[0][0]); bodies.append(k[1]); descs.append(k[2])
    open(path, "w").write(assemble_file(launches, bodies, descs))
def pipeline(st=False, **kw):
    S = (lambda i: i) if st else (lambda i: None)
    wt = kw.get("wt", " sc0 sc1")
    return [gen_k0(stamp=S(0)), gen_ln("ln1_kernel", 'x', WS_HF, 0, 1, QS, stamp=S(1), pf_wq=True), gen_attn("attn_kernel", stamp=S(2), dbg=kw.get("adbg", "")),
            gen_g256("oproj_kernel", "oproj", stamp=S(3), NSLOT=4, NBUF=4, stflag=wt), gen_ln2p("ln2_kernel", stamp=S(4)),
            gen_g256("ffn1_kernel", "ffn1", stamp=S(5), NSLOT=4, NBUF=4, stflag=wt), gen_g256("ffn2_kernel", "ffn2", stamp=S(6), NSLOT=4, NBUF=4, stflag=wt),
            gen_redk("red_kernel", stamp=S(7))]
if __name__ == "__main__":
    import hk
    build(pipeline(False), "full.s"); hk.build("full.s")
    build(pipeline(True, adbg="ls"), "full_st.s"); hk.build("full_st.s")
```

```python
from asmlib import *
from gen_small import *
from gen_gemm import lane_common, tr_lane_terms, Filt
from stream import *

WS_P1 = 0x5000000
WS_P2 = WS_P1 if REUSE else 0x6000000

def g256_setup_w(a, w_stride, vW=4, vT=8, nbase=1):
    a(f"""
    v_lshrrev_b32 v32, 4, v1               ; L>>4
    v_and_b32 v33, 15, v1                  ; p
    v_lshlrev_b32 v34, 2, v32
    v_xor_b32 v34, v33, v34
    v_lshlrev_b32 v34, 4, v34
    v_mul_u32_u24 v35, {w_stride}, v32
    v_add_u32 v{vW}, v35, v34
    v_add_u32 v{vW+1}, {4*w_stride-1024}, v{vW}
    v_add_u32 v{vW+2}, {8*w_stride-2048}, v{vW}
    v_add_u32 v{vW+3}, {12*w_stride-3072}, v{vW}
    """)
def g256_setup_tr(a, vT=8, nbase=1):
    tr_lane_terms(a, 32, 33, 34, 35)
    a("""
    v_lshrrev_b32 v35, 1, v34              ; sw>>1
    v_lshl_add_u32 v35, v33, 1, v35        ; c0
    v_bfe_u32 v36, v1, 2, 2                ; i>>2
    v_lshlrev_b32 v37, 2, v36              ; swz
    v_and_b32 v34, 1, v34
    v_lshlrev_b32 v34, 3, v34              ; half8*8
    v_lshl_add_u32 v38, v32, 8, v34
    """)
    for db in range(4):
        a(f"""
        v_or_b32 v42, {4*db}, v35
        v_xor_b32 v42, v42, v37
        v_lshl_add_u32 v{vT+db}, v42, 4, v38
        """)
        for b in range(1, nbase): a(f"v_add_u32 v{vT+4*b+db}, {65536*b}, v{vT+db}")

class G256:
    def __init__(self, a, KT, w_stride, NSLOT, NBUF, ACC=64, vW=4, vT=8):
        self.a = a; self.KT = KT; self.ws = w_stride; self.NSLOT = NSLOT; self.NBUF = NBUF; self.ACC = ACC
        self.vW = vW; self.vT = vT; self.FR = 32*NBUF
        self.log = VmLog(); self.cur = dict(m0=None, ws=0, as_=0)
        g = self
        def wdma(s, j):
            out = []
            if g.cur['ws'] != s:
                out.append(f"s_add_u32 s28, s28, {(s-g.cur['ws'])*64*g.ws}"); g.cur['ws'] = s
            want = (s % NSLOT)*16384
            if g.cur['m0'] != want:
                out.append(f"s_add_u32 m0, s30, {want}"); out.append("s_nop 0"); g.cur['m0'] = want
            out.append(f"buffer_load_dwordx4 v{g.vW+j}, s[12:15], s28 offen offset:{1024*j} lds")
            return out
        wdma.n = 4
        self.wdma = wdma
    def hbuf(self, buf, qb, ks): r = 32*buf+16*qb+4*ks; return f"a[{r}:{r+3}]"
    def actload(self, s, ks, tb):
        pre = ""
        if self.cur['as_'] != s:
            pre = f"s_mov_b32 s29, {s*4096}\n"; self.cur['as_'] = s
        return pre+f"buffer_load_dwordx4 {self.hbuf(s % self.NBUF, tb, ks)}, v{2+tb}, s[16:19], s29 offen offset:{1024*ks}"
    def qacc(self, db, qb): return self.ACC+(2*db+qb)*16
    def wfr(self, q, db): return self.FR+(q % 2)*16+4*db
    def wreads(self, t, ks):
        q = 4*t+ks; slot = t % self.NSLOT; out = []
        for db in range(4):
            r = self.wfr(q, db)
            for hf in range(2):
                out.append(f"ds_read_b64_tr_b16 a[{r+2*hf}:{r+2*hf+1}], v{self.vT+4*(slot//4)+db} offset:{(slot%4)*16384+(16*ks+4*hf)*256}")
        return out
    def mfma(self, t, ks, db, qb):
        r = self.wfr(4*t+ks, db); c = self.qacc(db, qb)
        return f"v_mfma_f32_32x32x16_bf16 v[{c}:{c+15}], a[{r}:{r+3}], {self.hbuf(t % self.NBUF, qb, ks)}, v[{c}:{c+15}]"
    def issue_stage(self, s):
        a = self.a
        for j in range(4):
            for l in self.wdma(s, j): a(l)
            self.log.issue(('W', s, j))
            for tb in range(2):
                a(self.actload(s, j, tb)); self.log.issue(('A', s, j, tb))
    def first_wait(self):
        a = self.a
        a(f"s_waitcnt vmcnt({self.log.wait_for(lambda x: x[0] in 'WA' and x[1] == 0)})")
        a("s_barrier")
        for s in self.wreads(0, 0): a(s)
    def read_item(self, t, ks, db, ring):
        r = self.FR+4*ring; slot = t % self.NSLOT
        return [f"ds_read_b64_tr_b16 a[{r+2*hf}:{r+2*hf+1}], v{self.vT+4*(slot//4)+db} offset:{(slot%4)*16384+(16*ks+4*hf)*256}" for hf in range(2)]
    def mfma2(self, t, ks, db, qb, ring):
        r = self.FR+4*ring; c = self.qacc(db, qb)
        return f"v_mfma_f32_32x32x16_bf16 v[{c}:{c+15}], a[{r}:{r+3}], {self.hbuf(t % self.NBUF, qb, ks)}, v[{c}:{c+15}]"
    def first_wait2(self):
        a = self.a
        a(f"s_waitcnt vmcnt({self.log.wait_for(lambda x: x[0] in 'WA' and x[1] == 0)})")
        a("s_barrier")
        for db in range(4):
            for s in self.read_item(0, 0, db, db): a(s)
    def stream2(self, pre, gap=2, extra=None, extra_after=None, T=0, post=None):
        emit_stream2(self.a, self.KT, self.NSLOT, self.NBUF, self.read_item, self.mfma2, self.wdma, self.actload, self.log, pre, gap=gap, extra=extra, extra_after=extra_after, T=T, post=post)
    def stream(self, pre, gap=2, extra=None, extra_after=None):
        emit_stream(self.a, self.KT, 4, 2, self.NSLOT, self.NBUF, self.wreads, self.mfma, self.wdma, self.actload, self.log, pre, gap=gap, extra=extra, extra_after=extra_after)

def gen_g256(name, kind, stamp=None, NSLOT=6, NBUF=5, pre=2, gap=2, dbg="", stflag=" sc0 sc1", T=0):
    a = Filt(dbg); L = name
    cfg = {
      "oproj": dict(KT=16, w_arg=32, ws=2048, wbytes=4096*1024*2, act=WS_OF, atb=4096*64, nwg=256),
      "ffn1":  dict(KT=16, w_arg=48, ws=7168, wbytes=1024*3584*2, act=WS_H2F, atb=1024*64, nwg=224),
      "ffn2":  dict(KT=14, w_arg=56, ws=2048, wbytes=3584*1024*2, act=WS_HIDF, atb=3584*64, nwg=256),
    }[kind]
    KT, ws, atb = cfg["KT"], cfg["ws"], cfg["atb"]
    kernel_begin(a, name)
    a(f"""
    s_cmp_ge_u32 s2, {cfg["nwg"]}
    s_cbranch_scc1 L_{L}_done
    s_load_dwordx2 s[4:5], s[0:1], {cfg["w_arg"]}
    s_load_dwordx2 s[6:7], s[0:1], 96
    """)
    if stamp is not None: stamp_begin(a)
    lane_common(a)
    a("""
    s_and_b32 s21, s2, 7
    s_lshr_b32 s22, s2, 3
    s_and_b32 s23, s21, 3                  ; q
    s_lshr_b32 s24, s21, 2
    s_lshl_b32 s24, s24, 2                 ; 4*th
    """)
    if kind == "ffn1":
        a("""
        s_mul_i32 s25, s22, 37
        s_lshr_b32 s25, s25, 8
        s_add_u32 s24, s24, s25
        s_mul_i32 s25, s25, 7
        s_sub_u32 s25, s22, s25            ; idx % 7
        s_mul_i32 s26, s23, 7
        s_add_u32 s25, s25, s26
        s_mov_b32 s26, 0                   ; k offset rows
        s_mov_b32 s27, 0
        """)
    else:
        kq = KT*64
        a(f"""
        s_lshr_b32 s25, s22, 3
        s_add_u32 s24, s24, s25
        s_and_b32 s25, s22, 7              ; n tile
        s_mul_i32 s26, s23, {kq}           ; k offset rows
        s_mul_i32 s27, s23, {kq*64}
        """)
    a(f"""
    s_lshl_b32 s24, s24, 3
    s_lshl_b32 s31, s20, 1
    s_add_u32 s24, s24, s31
    v_add_u32 v3, {atb}, v2
    """)
    g256_setup_w(a, ws)
    a("s_waitcnt lgkmcnt(0)")
    if stamp is not None: stamp_mid(a, 0)
    srd(a, 12, 4, cfg["wbytes"])
    a(f"""
    s_mul_i32 s31, s24, {atb}
    s_add_u32 s31, s31, s27
    s_add_u32 s31, s31, {cfg["act"]}
    s_add_u32 s16, s6, s31
    s_addc_u32 s17, s7, 0
    s_mov_b32 s18, {atb+KT*4096}
    s_mov_b32 s19, 0x20000
    s_lshl_b32 s31, s20, 4
    s_add_u32 s31, s31, s26
    s_mul_i32 s28, s31, {ws}
    s_lshl_b32 s31, s25, 8
    s_add_u32 s28, s28, s31                ; W soffset
    s_mov_b32 s29, 0
    s_lshl_b32 s30, s20, 12
    """)
    g = G256(a, KT, ws, NSLOT, NBUF)
    g.issue_stage(0)
    g256_setup_tr(a, 8, (NSLOT+3)//4)
    for s in range(1, pre): g.issue_stage(s)
    for i in range(128): a(f"v_mov_b32 v{64+i}, 0")
    if kind == "ffn1":
        srd(a, 40, 6, 2048*3584*2, WS_HIDF); otb = 3584*64
        a(f"s_mul_i32 s26, s24, {otb}\ns_lshl_b32 s27, s25, 13\ns_add_u32 s26, s26, s27")
    else:
        otb = 65536
        a(f"""
        s_lshl_b32 s31, s23, 22
        s_add_u32 s31, s31, {WS_P1 if kind == "oproj" else WS_P2}
        s_add_u32 s40, s6, s31
        s_addc_u32 s41, s7, 0
        s_mov_b32 s42, {2048*1024*2}
        s_mov_b32 s43, 0x20000
        s_lshl_b32 s26, s24, 16
        s_lshl_b32 s27, s25, 13
        s_add_u32 s26, s26, s27
        """)
    a(f"s_add_u32 s27, s26, {otb}")
    a("s_add_u32 s34, s26, 4096\ns_add_u32 s35, s27, 4096")
    def post(db):
        dbs = range(4) if db is None else [db]
        ops = []
        for d_ in dbs:
            for qb in range(2):
                c = g.qacc(d_, qb); t = 20+8*qb
                for j in range(8):
                    ops.append(f"v_cvt_pk_bf16_f32 v{t+j}, v{c+2*j}, v{c+2*j+1}")
                    if kind == "ffn1": ops.append(f"v_pk_max_i16 v{t+j}, v{t+j}, 0")
                so = ["s26", "s27"][qb] if d_ < 2 else ["s34", "s35"][qb]
                ops.append(f"buffer_store_dwordx4 v[{t}:{t+3}], v2, s[40:43], {so} offen offset:{(d_&1)*2048}{stflag}")
                ops.append(f"buffer_store_dwordx4 v[{t+4}:{t+7}], v2, s[40:43], {so} offen offset:{(d_&1)*2048+1024}{stflag}")
        return ops
    g.first_wait2()
    if stamp is not None: stamp_mid(a, 1)
    a.inloop = True
    g.stream2(pre, gap, T=T, post=post)
    a.inloop = False
    if stamp is not None: stamp_mid(a, 2)
    if stamp is not None: stamp_mid(a, 3); stamp_end2(a, stamp, 6)
    a(f"""
    L_{L}_done:
    s_endpgm
    """)
    return (name, (cfg["nwg"],1,1), (256,1,1), NSLOT*16384), a.text(), kernel_desc(name, 256+32*NBUF+32, accum=256)
```

```python
from asmlib import *
from gen_small import *
from gen_g256 import WS_P1, WS_P2

def common_head(a, L, stamp):
    a(f"""
    s_cmp_ge_u32 s2, 256
    s_cbranch_scc1 L_{L}_done
    s_load_dwordx2 s[4:5], s[0:1], 0
    s_load_dwordx2 s[6:7], s[0:1], 80
    s_load_dwordx2 s[8:9], s[0:1], 96
    """)
    if stamp is not None: stamp_begin(a)
    a(f"""
    v_and_b32 v1, 7, v0
    v_lshrrev_b32 v2, 3, v0              ; 8w + cl
    v_and_b32 v3, 7, v2                  ; cl
    v_lshrrev_b32 v4, 6, v0              ; w
    v_lshl_add_u32 v5, v4, 4, v3
    s_lshr_b32 s10, s2, 2
    s_and_b32 s11, s2, 3
    s_lshl_b32 s10, s10, 16
    s_lshl_b32 s11, s11, 7
    s_add_u32 s10, s10, s11
    v_lshlrev_b32 v6, 9, v5
    v_lshl_add_u32 v6, v1, 4, v6
    v_add_u32 v6, s10, v6
    v_add_u32 v8, 4096, v6
    v_lshlrev_b32 v9, 5, v5
    """)

def load_partials(a, off):
    srd(a, 24, 8, 4*2048*1024*2, off)
    a("s_mov_b32 s28, 0x400000\ns_mov_b32 s29, 0x800000\ns_mov_b32 s30, 0xc00000")
    for q, so in enumerate(["0", "s28", "s29", "s30"]):
        a(f"buffer_load_dwordx4 v[{100+8*q}:{103+8*q}], v6, s[24:27], {so} offen")
        a(f"buffer_load_dwordx4 v[{104+8*q}:{107+8*q}], v8, s[24:27], {so} offen")

def load_vec(a, dst, idx, sreg):
    a(f"s_mov_b32 s{sreg}, {idx*4096}")
    a(f"buffer_load_dwordx4 v[{dst}:{dst+3}], v9, s[16:19], s{sreg} offen")
    a(f"buffer_load_dwordx4 v[{dst+4}:{dst+7}], v9, s[16:19], s{sreg} offen offset:16")
    a(f"buffer_load_dwordx4 v[{dst+8}:{dst+11}], v9, s[16:19], s{sreg} offen offset:256")
    a(f"buffer_load_dwordx4 v[{dst+12}:{dst+15}], v9, s[16:19], s{sreg} offen offset:272")

def sum_partials_and_residual(a, res, gate, out):
    for j in range(8):
        a(f"v_lshlrev_b32 v{84+2*j}, 16, v{100+j}")
        a(f"v_and_b32 v{85+2*j}, s27_, v{100+j}".replace("s27_", "s33"))
    for q in range(1, 4):
        for j in range(8):
            a(f"v_lshlrev_b32 v40, 16, v{100+8*q+j}")
            a(f"v_and_b32 v41, s33, v{100+8*q+j}")
            a(f"v_add_f32 v{84+2*j}, v{84+2*j}, v40")
            a(f"v_add_f32 v{85+2*j}, v{85+2*j}, v41")
    for j in range(8):
        a(f"v_lshlrev_b32 v{out+2*j}, 16, v{res+j}")
        a(f"v_and_b32 v{out+2*j+1}, s33, v{res+j}")
    for j in range(16): a(f"v_fmac_f32 v{out+j}, v{gate+j}, v{84+j}")

def gen_ln2p(name="ln2_kernel", stamp=None, stflag="", xf=False):
    a = Asm(); L = name
    kernel_begin(a, name); common_head(a, L, stamp)
    if not xf:
        a("""
        s_lshl_b32 s12, s2, 14
        v_lshlrev_b32 v7, 11, v1
        v_lshl_add_u32 v7, v5, 4, v7
        v_add_u32 v7, s12, v7
        """)
    a("s_waitcnt lgkmcnt(0)")
    srd(a, 16, 8, 6144*4, WS_MOD)
    modvec_issue(a, 148, 2, 3, 156)
    modvec_issue(a, 152, 4, 4, 156)
    load_partials(a, WS_P1)
    if xf:
        srd(a, 12, 8, 2048*1024*2, WS_XF)
        a("buffer_load_dwordx4 v[12:15], v6, s[12:15], 0 offen")
        a("buffer_load_dwordx4 v[16:19], v8, s[12:15], 0 offen")
    else:
        srd(a, 12, 4, 2048*1024*2)
        a("buffer_load_dwordx4 v[12:15], v7, s[12:15], 0 offen")
        a("buffer_load_dwordx4 v[16:19], v7, s[12:15], 0 offen offset:128")
    srd(a, 20, 8, 2048*1024*2, WS_H2F)
    srd(a, 44, 8, 2048*1024*2, WS_X1F)
    a("s_mov_b32 s33, 0xffff0000")
    if stamp is not None: stamp_mid(a, 0)
    a("s_waitcnt vmcnt(10)")
    modvec_stage(a, 148, 1024, 156)
    modvec_stage(a, 152, 1024+8192, 157)
    a("s_waitcnt lgkmcnt(0)")
    modvec_read(a, 132, 0, 1024, 156)
    modvec_read(a, 68, 1, 1024, 157)
    modvec_read(a, 52, 0, 1024+8192, 158)
    a("s_waitcnt vmcnt(0) lgkmcnt(0)")
    if stamp is not None: stamp_mid(a, 1)
    sum_partials_and_residual(a, 12, 132, 20)
    for j in range(8): a(f"v_cvt_pk_bf16_f32 v{12+j}, v{20+2*j}, v{21+2*j}")
    a(f"buffer_store_dwordx4 v[12:15], v6, s[44:47], 0 offen{stflag}")
    a(f"buffer_store_dwordx4 v[16:19], v8, s[44:47], 0 offen{stflag}")
    def reduce_lanes(r, t):
        a("s_nop 1")
        a(f"v_add_f32_dpp v{r}, v{r}, v{r} row_ror:8 row_mask:0xf bank_mask:0xf")
        a(f"v_mov_b32 v{t}, v{r}")
        a("s_nop 1")
        a(f"v_permlane16_swap_b32 v{r}, v{t}")
        a("s_nop 1")
        a(f"v_add_f32 v{r}, v{r}, v{t}")
        a(f"v_mov_b32 v{t}, v{r}")
        a("s_nop 1")
        a(f"v_permlane32_swap_b32 v{r}, v{t}")
        a("s_nop 1")
        a(f"v_add_f32 v{r}, v{r}, v{t}")
    a("v_add_f32 v36, v20, v21")
    a("v_add_f32 v37, v22, v23")
    for j in range(2, 8):
        a(f"v_add_f32 v{36+(j&1)}, v{36+(j&1)}, v{20+2*j}")
        a(f"v_add_f32 v{36+(j&1)}, v{36+(j&1)}, v{21+2*j}")
    a("v_add_f32 v36, v36, v37")
    reduce_lanes(36, 38)
    a("v_mul_f32 v36, 0x3c000000, v36")
    for j in range(16): a(f"v_sub_f32 v{84+j}, v{20+j}, v36")
    a("v_mul_f32 v37, v84, v84")
    a("v_mul_f32 v39, v85, v85")
    for j in range(2, 16, 2):
        a(f"v_fmac_f32 v37, v{84+j}, v{84+j}")
        a(f"v_fmac_f32 v39, v{85+j}, v{85+j}")
    a("v_add_f32 v37, v37, v39")
    reduce_lanes(37, 38)
    a("""
    v_lshlrev_b32 v40, 6, v1
    v_lshl_add_u32 v41, v4, 3, v40
    v_and_b32 v42, 63, v0
    v_cmp_gt_u32 vcc, 8, v42
    s_and_saveexec_b64 s[30:31], vcc
    ds_write_b64 v41, v[36:37]
    s_mov_b64 exec, s[30:31]
    s_waitcnt lgkmcnt(0)
    """)
    if stamp is not None: stamp_mid(a, 2)
    a("""
    s_barrier
    ds_read_b128 v[84:87], v40
    ds_read_b128 v[88:91], v40 offset:16
    ds_read_b128 v[92:95], v40 offset:32
    ds_read_b128 v[96:99], v40 offset:48
    s_waitcnt lgkmcnt(0)
    """)
    a("v_add_f32 v36, v84, v86")
    for j in range(2, 8): a(f"v_add_f32 v36, v36, v{84+2*j}")
    a("v_mul_f32 v36, 0x3e000000, v36")
    a("v_add_f32 v37, v85, v87")
    for j in range(2, 8): a(f"v_add_f32 v37, v37, v{85+2*j}")
    for j in range(8): a(f"v_sub_f32 v{84+2*j}, v{84+2*j}, v36")
    a("v_mul_f32 v38, v84, v84")
    for j in range(1, 8): a(f"v_fmac_f32 v38, v{84+2*j}, v{84+2*j}")
    a(f"""
    v_mov_b32 v39, 0x43000000
    v_fmac_f32 v37, v39, v38
    v_mov_b32 v39, 0x3727c5ac
    v_fmac_f32 v39, 0x3a800000, v37
    v_rsq_f32 v39, v39
    s_nop 0
    """)
    for j in range(16): a(f"v_sub_f32 v{20+j}, v{20+j}, v36")
    for j in range(16): a(f"v_add_f32 v{52+j}, 1.0, v{52+j}")
    for j in range(16): a(f"v_mul_f32 v{20+j}, v{20+j}, v39")
    for j in range(16): a(f"v_fmac_f32 v{68+j}, v{20+j}, v{52+j}")
    for j in range(8): a(f"v_cvt_pk_bf16_f32 v{12+j}, v{68+2*j}, v{69+2*j}")
    a(f"""
    buffer_store_dwordx4 v[12:15], v6, s[20:23], 0 offen{stflag}
    buffer_store_dwordx4 v[16:19], v8, s[20:23], 0 offen{stflag}
    """)
    if stamp is not None:
        stamp_mid(a, 3)
        a("s_mov_b32 s74, 0")
        stamp_end2(a, stamp, 8)
    a(f"L_{L}_done:\ns_endpgm")
    return (name, (256,1,1), (512,1,1), 1024+16384), a.text(), kernel_desc(name, 160, sgpr=102)

def gen_redk(name="red_kernel", stamp=None):
    a = Asm(); L = name
    kernel_begin(a, name); common_head(a, L, stamp)
    a("s_waitcnt lgkmcnt(0)")
    srd(a, 16, 8, 6144*4, WS_MOD)
    modvec_issue(a, 148, 5, 5, 156)
    load_partials(a, WS_P2)
    srd(a, 12, 8, 2048*1024*2, WS_X1F)
    a("buffer_load_dwordx4 v[12:15], v6, s[12:15], 0 offen")
    a("buffer_load_dwordx4 v[16:19], v8, s[12:15], 0 offen")
    srd(a, 20, 6, 2048*1024*2)
    a("""
    v_xor_b32 v42, v3, v1                ; cl ^ tk
    v_lshlrev_b32 v42, 4, v42
    v_lshl_add_u32 v42, v1, 8, v42
    v_lshl_add_u32 v42, v4, 11, v42      ; write addr (+128 for chunk1)
    v_and_b32 v43, 63, v0
    v_lshrrev_b32 v44, 3, v43            ; tk'
    v_and_b32 v45, 7, v43                ; c'
    v_xor_b32 v46, v45, v44
    v_lshlrev_b32 v46, 4, v46
    v_lshl_add_u32 v46, v44, 8, v46
    v_lshl_add_u32 v46, v4, 11, v46      ; read addr
    s_lshl_b32 s12_, s2, 14
    v_lshlrev_b32 v47, 11, v44
    v_lshl_add_u32 v47, v45, 4, v47
    v_lshl_add_u32 v47, v4, 8, v47       ; + 16w chunks*16
    v_add_u32 v47, s12_, v47             ; out offset
    s_mov_b32 s33, 0xffff0000
    """.replace("s12_", "s37"))
    if stamp is not None: stamp_mid(a, 0)
    a("s_waitcnt vmcnt(10)")
    modvec_stage(a, 148, 16384, 156)
    a("s_waitcnt lgkmcnt(0)")
    modvec_read(a, 132, 0, 16384, 156)
    a("s_waitcnt vmcnt(0) lgkmcnt(0)")
    if stamp is not None: stamp_mid(a, 1)
    sum_partials_and_residual(a, 12, 132, 20)
    for j in range(8): a(f"v_cvt_pk_bf16_f32 v{12+j}, v{20+2*j}, v{21+2*j}")
    a("""
    ds_write_b128 v42, v[12:15]
    ds_write_b128 v42, v[16:19] offset:128
    s_waitcnt lgkmcnt(0)
    ds_read_b128 v[20:23], v46
    ds_read_b128 v[24:27], v46 offset:128
    s_waitcnt lgkmcnt(1)
    buffer_store_dwordx4 v[20:23], v47, s[20:23], 0 offen
    s_waitcnt lgkmcnt(0)
    buffer_store_dwordx4 v[24:27], v47, s[20:23], 0 offen offset:128
    """)
    if stamp is not None:
        stamp_mid(a, 2)
        a("s_mov_b32 s73, 0\ns_mov_b32 s74, 0")
        stamp_end2(a, stamp, 8)
    a(f"L_{L}_done:\ns_endpgm")
    return (name, (256,1,1), (512,1,1), 16384+8192), a.text(), kernel_desc(name, 160, sgpr=102)
```

```python
from asmlib import *

WS_MOD  = 0x0000000
WS_HF   = 0x0100000
WS_OF   = 0x1000000
WS_X1F  = 0x2000000
import os
REUSE = os.environ.get('NOREUSE', '0') != '1'
WS_H2F  = WS_HF if REUSE else 0x2400000
WS_HIDF = WS_OF if REUSE else 0x3000000
WS_WLIN = 0x4000000

def srd(a, r, base, nbytes, off=0):
    if off:
        a(f"s_add_u32 s{r}, s{base}, {off}")
        a(f"s_addc_u32 s{r+1}, s{base+1}, 0")
    else:
        a(f"s_mov_b32 s{r}, s{base}")
        a(f"s_mov_b32 s{r+1}, s{base+1}")
    a(f"s_mov_b32 s{r+2}, {nbytes}")
    a(f"s_mov_b32 s{r+3}, 0x20000")

def gen_k0(name="k0_kernel", prefetch=None, stamp=None, pfwg=True, code_bytes=131072, stride=128, pf_wq=False):
    a = Asm()
    kernel_begin(a, name)
    a(f"""
    s_cmp_ge_u32 s2, 96
    s_cbranch_scc1 {"L_k0_pf" if pfwg else "L_k0_done"}
    s_load_dwordx4 s[4:7], s[0:1], 64
    s_load_dwordx2 s[8:9], s[0:1], 96
    """)
    if stamp is not None: stamp_begin(a)
    a(f"""
    v_lshrrev_b32 v1, 3, v0              ; 8w+g
    v_and_b32 v2, 7, v0                  ; cc
    v_lshlrev_b32 v3, 5, v1
    s_mov_b32 s24, 196608                ; 16*12288
    v_mul_lo_u32 v4, v1, s24
    v_lshlrev_b32 v2, 4, v2
    s_lshl_b32 s25, s2, 7
    v_add3_u32 v4, v4, v2, s25
    s_waitcnt lgkmcnt(0)
    """)
    srd(a, 12, 4, 2048)
    srd(a, 16, 6, 1024*6144*2)
    srd(a, 20, 8, 6144*4, WS_MOD)
    a("""
    buffer_load_dwordx4 v[8:11], v3, s[12:15], 0 offen
    buffer_load_dwordx4 v[12:15], v3, s[12:15], 0 offen offset:16
    s_mov_b32 s26, 0
    """)
    for i in range(16):
        a(f"buffer_load_dwordx4 v[{64+4*i}:{67+4*i}], v4, s[16:19], s26 offen")
        if i < 15: a(f"s_add_u32 s26, s26, 12288")
    if prefetch:
        prefetch(a)
        npf = prefetch.n
    else:
        npf = 0
    a(f"""
    s_mov_b32 s27, 0xffff0000
    s_mov_b32 s28, 0xbfb8aa3b            ; -log2(e)
    s_waitcnt vmcnt({16+npf})
    """)
    for j in range(8):
        a(f"v_lshlrev_b32 v{16+2*j}, 16, v{8+j}")
        a(f"v_and_b32 v{17+2*j}, s27, v{8+j}")
    for j in range(16): a(f"v_mul_f32 v{32+j}, s28, v{16+j}")
    for j in range(16): a(f"v_exp_f32 v{32+j}, v{32+j}")
    for j in range(16): a(f"v_add_f32 v{32+j}, 1.0, v{32+j}")
    for j in range(16): a(f"v_rcp_f32 v{32+j}, v{32+j}")
    for j in range(16): a(f"v_mul_f32 v{16+j}, v{16+j}, v{32+j}")
    for j in range(8): a(f"v_cvt_pk_bf16_f32 v{8+j}, v{16+2*j}, v{17+2*j}")
    for j in range(8):
        a(f"v_lshlrev_b32 v{16+2*j}, 16, v{8+j}")
        a(f"v_and_b32 v{17+2*j}, s27, v{8+j}")
    for e in range(8): a(f"v_mov_b32 v{32+e}, 0")
    for i in range(16):
        a(f"s_waitcnt vmcnt({15-i+npf})")
        for d in range(4):
            r = 64+4*i+d
            a(f"v_lshlrev_b32 v40, 16, v{r}")
            a(f"v_and_b32 v41, s27, v{r}")
            a(f"v_fmac_f32 v{32+2*d}, v{16+i}, v40")
            a(f"v_fmac_f32 v{33+2*d}, v{16+i}, v41")
    a("s_nop 1")
    for e in range(8): a(f"v_add_f32_dpp v{32+e}, v{32+e}, v{32+e} row_ror:8 row_mask:0xf bank_mask:0xf")
    for e in range(8): a(f"v_mov_b32 v{40+e}, v{32+e}")
    a("s_nop 1")
    for e in range(8): a(f"v_permlane16_swap_b32 v{32+e}, v{40+e}")
    a("s_nop 1")
    for e in range(8): a(f"v_add_f32 v{32+e}, v{32+e}, v{40+e}")
    for e in range(8): a(f"v_mov_b32 v{40+e}, v{32+e}")
    a("s_nop 1")
    for e in range(8): a(f"v_permlane32_swap_b32 v{32+e}, v{40+e}")
    a("s_nop 1")
    for e in range(8): a(f"v_add_f32 v{32+e}, v{32+e}, v{40+e}")
    a("""
    v_and_b32 v5, 63, v0
    v_lshrrev_b32 v6, 6, v0              ; wave
    v_lshlrev_b32 v7, 8, v6              ; w*256
    v_lshl_add_u32 v7, v5, 5, v7
    v_cmp_gt_u32 vcc, 8, v5
    s_and_saveexec_b64 s[30:31], vcc
    ds_write_b128 v7, v[32:35]
    ds_write_b128 v7, v[36:39] offset:16
    s_mov_b64 exec, s[30:31]
    s_waitcnt lgkmcnt(0)
    s_barrier
    v_cmp_gt_u32 vcc, 64, v0
    s_and_saveexec_b64 s[30:31], vcc
    s_cbranch_execz L_k0_end
    v_lshlrev_b32 v7, 2, v0
    """)
    for j in range(8): a(f"ds_read_b32 v{16+j}, v7 offset:{256*j}")
    a("""
    s_lshl_b32 s25, s2, 8
    v_add_u32 v6, s25, v7
    s_waitcnt lgkmcnt(0)
    v_add_f32 v16, v16, v17
    v_add_f32 v18, v18, v19
    v_add_f32 v20, v20, v21
    v_add_f32 v22, v22, v23
    v_add_f32 v16, v16, v18
    v_add_f32 v20, v20, v22
    v_add_f32 v16, v16, v20
    buffer_store_dword v16, v6, s[20:23], 0 offen
    L_k0_end:
    s_mov_b64 exec, s[30:31]
    """)
    if stamp is not None: stamp_end2(a, stamp, 8)
    a("""
    L_k0_done:
    s_endpgm
    """)
    if pfwg:
        a(f"""
        L_k0_pf:
        s_cmp_ge_u32 s2, 256
        s_cbranch_scc1 L_k0_done
        s_load_dwordx4 s[4:7], s[0:1], 0       ; x, k
        s_load_dwordx4 s[8:11], s[0:1], 16     ; v, wq
        s_getpc_b64 s[28:29]
        L_k0_pc:
        s_add_u32 s28, s28, L_code_begin-L_k0_pc
        s_addc_u32 s29, s29, 0
        v_lshrrev_b32 v2, 6, v0
        v_and_b32 v1, 63, v0
        v_readfirstlane_b32 s20, v2
        s_and_b32 s21, s2, 7                   ; xcd
        s_sub_u32 s22, s2, 96
        s_lshr_b32 s22, s22, 3
        s_lshl_b32 s22, s22, 3
        s_add_u32 s22, s22, s20                ; gid 0..159
        v_lshrrev_b32 v3, 4, v1                ; l>>4
        v_and_b32 v4, 15, v1
        v_lshlrev_b32 v4, 7, v4                ; line*128
        v_lshlrev_b32 v5, 7, v1                ; l*128
        s_waitcnt lgkmcnt(0)
        """)
        srd(a, 12, 4, 2048*1024*2)
        srd(a, 16, 10, 1024*4096*2)
        a(f"""
        s_cmp_ge_u32 s22, 64
        s_cbranch_scc1 L_k0_pf_kv
        s_lshr_b32 s23, s22, 1
        s_lshl_b32 s23, s23, 3
        s_add_u32 s23, s23, s21
        s_lshl_b32 s23, s23, 3
        s_and_b32 s24, s22, 1
        s_lshl_b32 s24, s24, 2
        s_add_u32 s23, s23, s24
        s_lshl_b32 s23, s23, 11
        v_lshl_add_u32 v6, v3, 11, v4
        buffer_load_dword v8, v6, s[12:15], s23 offen
        s_branch L_k0_pf_wq
        L_k0_pf_kv:
        s_cmp_ge_u32 s22, 96
        s_cbranch_scc1 L_k0_pf_code
        s_sub_u32 s23, s22, 64                 ; 0..31 : 0..15 K, 16..31 V
        s_cmp_ge_u32 s23, 16
        s_cselect_b32 s12, s8, s6
        s_cselect_b32 s13, s9, s7
        s_mov_b32 s14, {4*2048*128*2}
        s_and_b32 s23, s23, 15
        s_lshl_b32 s23, s23, 13
        s_and_b32 s24, s21, 3
        s_lshl_b32 s24, s24, 19
        s_add_u32 s23, s23, s24
        s_add_u32 s23, s23, {1536*256}
        buffer_load_dword v8, v5, s[12:15], s23 offen
        s_branch L_k0_pf_wq
        L_k0_pf_code:
        s_cmp_ge_u32 s22, {96+code_bytes//8192}
        s_cbranch_scc1 L_k0_pf_wq
        s_sub_u32 s23, s22, 96
        s_lshl_b32 s23, s23, 13
        v_add_u32 v6, s23, v5
        v_min_u32 v6, L_code_end-L_code_begin, v6
        global_load_dword v8, v6, s[28:29]
        L_k0_pf_wq:
        s_and_b32 s24, s21, 3
        s_lshl_b32 s24, s24, 11                ; g*2048
        v_lshl_add_u32 v6, v3, 13, v4
        s_lshl_b32 s23, s22, 15
        s_add_u32 s23, s23, s24
        """)
        if pf_wq:
            a(f"""
            buffer_load_dword v9, v6, s[16:19], s23 offen
            s_add_u32 s23, s23, {160*32768}
            buffer_load_dword v10, v6, s[16:19], s23 offen
            """)
        a(f"""
        s_waitcnt vmcnt(0)
        s_endpgm
        L_code_begin:
        s_endpgm
        """)
    return (name, (256 if pfwg else 96,1,1), (512,1,1), 2048), a.text(), kernel_desc(name, 128, sgpr=102)

def gen_ln(name, src, dst_off, shift_idx, scale_idx, outscale, stamp=None, pf_wq=False, xf=False, stflag=""):
    a = Asm()
    L = name
    kernel_begin(a, name)
    import struct
    osc = struct.unpack("<I", struct.pack("<f", outscale))[0]
    a(f"""
    s_cmp_ge_u32 s2, 256
    s_cbranch_scc1 L_{L}_done
    s_load_dwordx2 s[4:5], s[0:1], 0
    s_load_dwordx2 s[8:9], s[0:1], 96
    """)
    if stamp is not None: stamp_begin(a)
    a(f"""
    v_and_b32 v1, 7, v0
    v_lshrrev_b32 v2, 3, v0              ; 8w + cl
    v_and_b32 v3, 7, v2                  ; cl
    v_lshrrev_b32 v4, 6, v0              ; w
    v_lshl_add_u32 v5, v4, 4, v3
    s_lshr_b32 s10, s2, 2
    s_and_b32 s11, s2, 3
    s_lshl_b32 s10, s10, 16
    s_lshl_b32 s11, s11, 7
    s_add_u32 s10, s10, s11
    v_lshlrev_b32 v6, 9, v5
    v_lshl_add_u32 v6, v1, 4, v6
    v_add_u32 v6, s10, v6
    v_lshlrev_b32 v9, 5, v5
    """)
    if src == 'x':
        a("""
        s_lshl_b32 s12, s2, 14
        v_lshlrev_b32 v7, 11, v1
        v_lshl_add_u32 v7, v5, 4, v7
        v_add_u32 v7, s12, v7
        """)
    a("s_waitcnt lgkmcnt(0)")
    if src == 'x':
        srd(a, 12, 4, 2048*1024*2)
        a("buffer_load_dwordx4 v[12:15], v7, s[12:15], 0 offen")
        a("buffer_load_dwordx4 v[16:19], v7, s[12:15], 0 offen offset:128")
    else:
        srd(a, 12, 8, 2048*1024*2, src[1])
        a("v_add_u32 v7, 4096, v6")
        a("buffer_load_dwordx4 v[12:15], v6, s[12:15], 0 offen")
        a("buffer_load_dwordx4 v[16:19], v7, s[12:15], 0 offen")
    if pf_wq:
        a(f"""
        s_load_dwordx2 s[34:35], s[0:1], 24
        v_and_b32 v44, 63, v0
        v_lshrrev_b32 v45, 4, v44
        v_and_b32 v44, 15, v44
        v_lshlrev_b32 v44, 7, v44
        v_lshl_add_u32 v44, v45, 13, v44
        v_readfirstlane_b32 s36, v4
        s_lshr_b32 s37, s2, 3
        s_lshl_b32 s37, s37, 3
        s_add_u32 s37, s37, s36
        s_lshl_b32 s37, s37, 15
        s_and_b32 s38, s2, 3
        s_lshl_b32 s38, s38, 11
        s_add_u32 s37, s37, s38
        s_waitcnt lgkmcnt(0)
        """)
        srd(a, 40, 34, 1024*4096*2)
    srd(a, 16, 8, 6144*4, WS_MOD)
    srd(a, 20, 8, 2048*1024*2, dst_off)
    modvec_issue(a, 100, shift_idx, scale_idx, 104)
    if pf_wq: a("buffer_load_dword v46, v44, s[40:43], s37 offen")
    if xf:
        srd(a, 28, 8, 2048*1024*2, WS_XF)
    a("s_mov_b32 s27, 0xffff0000")
    a(f"s_waitcnt vmcnt({2 if pf_wq else 1})")
    if xf:
        a(f"v_add_u32 v47, 4096, v6")
        a(f"buffer_store_dwordx4 v[12:15], v6, s[28:31], 0 offen{stflag}")
        a(f"buffer_store_dwordx4 v[16:19], v47, s[28:31], 0 offen{stflag}")
    for j in range(8):
        a(f"v_lshlrev_b32 v{20+2*j}, 16, v{12+j}")
        a(f"v_and_b32 v{21+2*j}, s27, v{12+j}")
    def reduce_lanes(r, t):
        a("s_nop 1")
        a(f"v_add_f32_dpp v{r}, v{r}, v{r} row_ror:8 row_mask:0xf bank_mask:0xf")
        a(f"v_mov_b32 v{t}, v{r}")
        a("s_nop 1")
        a(f"v_permlane16_swap_b32 v{r}, v{t}")
        a("s_nop 1")
        a(f"v_add_f32 v{r}, v{r}, v{t}")
        a(f"v_mov_b32 v{t}, v{r}")
        a("s_nop 1")
        a(f"v_permlane32_swap_b32 v{r}, v{t}")
        a("s_nop 1")
        a(f"v_add_f32 v{r}, v{r}, v{t}")
    a("v_add_f32 v36, v20, v21")
    a("v_add_f32 v37, v22, v23")
    for j in range(2, 8):
        a(f"v_add_f32 v{36+(j&1)}, v{36+(j&1)}, v{20+2*j}")
        a(f"v_add_f32 v{36+(j&1)}, v{36+(j&1)}, v{21+2*j}")
    a("v_add_f32 v36, v36, v37")
    reduce_lanes(36, 38)
    a("v_mul_f32 v36, 0x3c000000, v36")
    for j in range(16): a(f"v_sub_f32 v{84+j}, v{20+j}, v36")
    a("v_mul_f32 v37, v84, v84")
    a("v_mul_f32 v39, v85, v85")
    for j in range(2, 16, 2):
        a(f"v_fmac_f32 v37, v{84+j}, v{84+j}")
        a(f"v_fmac_f32 v39, v{85+j}, v{85+j}")
    a("v_add_f32 v37, v37, v39")
    reduce_lanes(37, 38)
    nyoung = (1 if pf_wq else 0)+(2 if xf else 0)
    a(f"s_waitcnt vmcnt({nyoung})")
    modvec_stage(a, 100, 1024, 104)
    a("""
    v_lshlrev_b32 v40, 6, v1
    v_lshl_add_u32 v41, v4, 3, v40
    v_and_b32 v42, 63, v0
    v_cmp_gt_u32 vcc, 8, v42
    s_and_saveexec_b64 s[30:31], vcc
    ds_write_b64 v41, v[36:37]
    s_mov_b64 exec, s[30:31]
    s_waitcnt lgkmcnt(0)
    s_barrier
    ds_read_b128 v[84:87], v40
    ds_read_b128 v[88:91], v40 offset:16
    ds_read_b128 v[92:95], v40 offset:32
    ds_read_b128 v[96:99], v40 offset:48
    """)
    modvec_read(a, 68, 0, 1024, 104)
    modvec_read(a, 52, 1, 1024, 105)
    a("s_waitcnt lgkmcnt(8)")
    a("v_add_f32 v36, v84, v86")
    for j in range(2, 8): a(f"v_add_f32 v36, v36, v{84+2*j}")
    a("v_mul_f32 v36, 0x3e000000, v36")
    a("v_add_f32 v37, v85, v87")
    for j in range(2, 8): a(f"v_add_f32 v37, v37, v{85+2*j}")
    for j in range(8): a(f"v_sub_f32 v{84+2*j}, v{84+2*j}, v36")
    a("v_mul_f32 v38, v84, v84")
    for j in range(1, 8): a(f"v_fmac_f32 v38, v{84+2*j}, v{84+2*j}")
    a(f"""
    v_mov_b32 v39, 0x43000000
    v_fmac_f32 v37, v39, v38             ; M2 total
    v_mov_b32 v39, 0x3727c5ac            ; 1e-5
    v_fmac_f32 v39, 0x3a800000, v37
    v_rsq_f32 v39, v39
    s_waitcnt lgkmcnt(0)
    """)
    for j in range(16): a(f"v_sub_f32 v{20+j}, v{20+j}, v36")
    for j in range(16): a(f"v_add_f32 v{52+j}, 1.0, v{52+j}")
    for j in range(16): a(f"v_mul_f32 v{20+j}, v{20+j}, v39")
    for j in range(16): a(f"v_fmac_f32 v{68+j}, v{20+j}, v{52+j}")
    if outscale != 1.0:
        a(f"s_mov_b32 s28, {osc}")
        for j in range(16): a(f"v_mul_f32 v{68+j}, s28, v{68+j}")
    for j in range(8): a(f"v_cvt_pk_bf16_f32 v{12+j}, v{68+2*j}, v{69+2*j}")
    a(f"""
    v_add_u32 v7, 4096, v6
    buffer_store_dwordx4 v[12:15], v6, s[20:23], 0 offen{stflag}
    buffer_store_dwordx4 v[16:19], v7, s[20:23], 0 offen{stflag}
    """)
    if stamp is not None: stamp_end2(a, stamp, 8)
    a(f"""
    L_{L}_done:
    s_endpgm
    """)
    return (name, (256,1,1), (512,1,1), 1024+8192), a.text(), kernel_desc(name, 112, sgpr=102)


WS_XF = 0x2800000
def modvec_issue(a, dstv, idxA, idxB, vaddr, srd0=16):
    a(f"""
    v_and_b32 v{vaddr}, 31, v0
    v_lshlrev_b32 v{vaddr}, 4, v{vaddr}
    v_lshl_add_u32 v{vaddr}, v4, 9, v{vaddr}          ; w*512 + (l&31)*16
    v_bfe_u32 v{vaddr+1}, v0, 5, 1
    v_mul_u32_u24 v{vaddr+1}, {(idxB-idxA)*4096}, v{vaddr+1}
    v_add_u32 v{vaddr}, v{vaddr}, v{vaddr+1}
    v_add_u32 v{vaddr}, {idxA*4096}, v{vaddr}
    buffer_load_dwordx4 v[{dstv}:{dstv+3}], v{vaddr}, s[{srd0}:{srd0+3}], 0 offen
    """)
def modvec_stage(a, srcv, ldsbase, vtmp):
    a(f"""
    v_and_b32 v{vtmp}, 63, v0
    v_lshlrev_b32 v{vtmp}, 4, v{vtmp}
    v_lshl_add_u32 v{vtmp}, v4, 10, v{vtmp}
    ds_write_b128 v{vtmp}, v[{srcv}:{srcv+3}] offset:{ldsbase}
    """)
def modvec_read(a, dst, half, ldsbase, vtmp):
    a(f"""
    v_lshlrev_b32 v{vtmp}, 5, v3
    v_lshl_add_u32 v{vtmp}, v4, 10, v{vtmp}
    ds_read_b128 v[{dst}:{dst+3}], v{vtmp} offset:{ldsbase+half*512}
    ds_read_b128 v[{dst+4}:{dst+7}], v{vtmp} offset:{ldsbase+half*512+16}
    ds_read_b128 v[{dst+8}:{dst+11}], v{vtmp} offset:{ldsbase+half*512+256}
    ds_read_b128 v[{dst+12}:{dst+15}], v{vtmp} offset:{ldsbase+half*512+272}
    """)
WS_STAMP = 0x8000000
def stamp_begin(a):
    a("""
    s_memtime s[90:91]
    s_memrealtime s[92:93]
    """)
def stamp_end(a, slot, wsreg):
    a(f"""
    s_waitcnt vmcnt(0) lgkmcnt(0)
    s_memtime s[94:95]
    s_memrealtime s[96:97]
    s_add_u32 s84, s{wsreg}, {WS_STAMP + slot*16384}
    s_addc_u32 s85, s{wsreg+1}, 0
    s_mov_b32 s86, 16384
    s_mov_b32 s87, 0x20000
    s_waitcnt lgkmcnt(0)
    s_sub_u32 s94, s94, s90
    v_mov_b32 v4, s94
    v_mov_b32 v5, s92
    v_mov_b32 v6, s96
    v_mov_b32 v7, s2
    s_lshl_b32 s88, s2, 4
    v_mov_b32 v8, s88
    v_cmp_eq_u32 vcc, 0, v0
    s_and_saveexec_b64 s[98:99], vcc
    s_cbranch_execz L_stamp_skip_{slot}
    buffer_store_dwordx4 v[4:7], v8, s[84:87], 0 offen
    L_stamp_skip_{slot}:
    s_mov_b64 exec, s[98:99]
    """)

def stamp_mid(a, k):
    a(f"""
    s_memtime s[68:69]
    s_waitcnt lgkmcnt(0)
    s_sub_u32 s{70+k}, s68, s90
    """)
def stamp_end2(a, slot, wsreg):
    a(f"""
    s_waitcnt vmcnt(0) lgkmcnt(0)
    s_memtime s[94:95]
    s_memrealtime s[96:97]
    s_add_u32 s84, s{wsreg}, {WS_STAMP + slot*16384}
    s_addc_u32 s85, s{wsreg+1}, 0
    s_mov_b32 s86, 16384
    s_mov_b32 s87, 0x20000
    s_waitcnt lgkmcnt(0)
    s_sub_u32 s94, s94, s90
    v_mov_b32 v4, s94
    v_mov_b32 v5, s92
    v_mov_b32 v6, s96
    v_mov_b32 v7, s70
    v_mov_b32 v8, s71
    v_mov_b32 v9, s72
    v_mov_b32 v10, s73
    v_mov_b32 v11, s74
    s_lshl_b32 s88, s2, 5
    v_mov_b32 v12, s88
    v_cmp_eq_u32 vcc, 0, v0
    s_and_saveexec_b64 s[98:99], vcc
    s_cbranch_execz L_stamp_skip_{slot}
    buffer_store_dwordx4 v[4:7], v12, s[84:87], 0 offen
    buffer_store_dwordx4 v[8:11], v12, s[84:87], 0 offen offset:16
    L_stamp_skip_{slot}:
    s_mov_b64 exec, s[98:99]
    """)
```

```python
class VmLog:
    def __init__(self): self.ops = []
    def issue(self, tag): self.ops.append(tag)
    def wait_for(self, pred):
        last = -1
        for i, t in enumerate(self.ops):
            if pred(t): last = i
        n = len(self.ops)-1-last
        assert n <= 63, n
        return n

def emit_stream(a, KT, NB, TB, NSLOT, NBUF, wreads, mfma, wdma, actload, log, pre_stages, gap=2, extra=None, extra_after=None, final_barrier=False):
    nW = wdma.n
    q = []
    for s in range(pre_stages, KT):
        order = []
        acts = [('A', s, ks, tb) for ks in range(4) for tb in range(TB)]
        ws = [('W', s, j) for j in range(nW)]
        i = j = 0
        while i < len(acts) or j < len(ws):
            if j < len(ws) and j*len(acts) <= i*len(ws): order.append(ws[j]); j += 1
            else: order.append(acts[i]); i += 1
        q += order
        if extra and s in extra_after: q += [('X', k) for k in extra_after[s]]
    state = dict(mf_done=set(), bar=0)
    def ready(op):
        if op[0] == 'X': return True
        if op[0] == 'W':
            s = op[1]
            return s-NSLOT+1 <= state['bar'] or s < NSLOT
        s, ks = op[1], op[2]
        return s < NBUF or (s-NBUF, ks) in state['mf_done']
    def issue_next():
        if q and ready(q[0]):
            op = q.pop(0)
            if op[0] == 'W': lines = wdma(op[1], op[2])
            elif op[0] == 'A': lines = [actload(op[1], op[2], op[3])]
            else: lines = extra[op[1]][1]()
            for l in lines: a(l)
            log.issue(op if op[0] != 'X' else extra[op[1]][0])
            return True
        return False
    m = 0
    for t in range(KT):
        last = t == KT-1
        for ks in range(4):
            bar_here = (ks == 3 and not last)
            if bar_here:
                while any(x[0] in 'WA' and x[1] <= t+1 for x in q):
                    assert issue_next(), q[0]
                n = log.wait_for(lambda x: x[0] in 'WA' and x[1] <= t+1)
                a(f"s_waitcnt vmcnt({n}) lgkmcnt(0)")
                a("s_barrier")
                state['bar'] = t+1
            if ks < 3: rl = wreads(t, ks+1)
            else: rl = [] if last else wreads(t+1, 0)
            for nb in range(NB):
                if not bar_here:
                    a(f"s_waitcnt lgkmcnt({2*(NB-1) if rl else 2*(NB-1-nb)})")
                for tb in range(TB):
                    a(mfma(t, ks, nb, tb))
                    m += 1
                    if tb == 0:
                        for s in rl[2*nb:2*nb+2]: a(s)
                    if nb == NB-1 and tb == TB-1: state['mf_done'].add((t, ks))
                    if m % gap == 0: issue_next()
    while q:
        assert issue_next(), q[0]

def emit_stream2(a, KT, NSLOT, NBUF, read_item, mfma, wdma, actload, log, pre_stages, gap=2, extra=None, extra_after=None, T=0, post=None, TB=2, NB=4):
    PD = 4
    items = [(t, ks, db) for t in range(KT-T) for ks in range(4) for db in range(NB)]
    n_norm = len(items)
    items += [(t, ks, db) for db in range(NB) for t in range(KT-T, KT) for ks in range(4)]
    nW = wdma.n
    q = []
    for s in range(pre_stages, KT):
        acts = [('A', s, ks, tb) for ks in range(4) for tb in range(TB)]
        ws = [('W', s, j) for j in range(nW)]
        i = j = 0
        while i < len(acts) or j < len(ws):
            if j < len(ws) and j*len(acts) <= i*len(ws): q.append(ws[j]); j += 1
            else: q.append(acts[i]); i += 1
        if extra and s in extra_after: q += [('X', k) for k in extra_after[s]]
    state = dict(mf_done=set(), bar=0)
    def ready(op):
        if op[0] == 'X': return True
        if op[0] == 'W': return op[1] < NSLOT or op[1]-NSLOT+1 <= state['bar']
        return op[1] < NBUF or (op[1]-NBUF, op[2]) in state['mf_done']
    def issue_next():
        if q and ready(q[0]):
            op = q.pop(0)
            if op[0] == 'W': lines = wdma(op[1], op[2])
            elif op[0] == 'A': lines = [actload(op[1], op[2], op[3])]
            else: lines = extra[op[1]][1]()
            for l in lines: a(l)
            log.issue(op if op[0] != 'X' else extra[op[1]][0])
            return True
        return False
    landed = 0
    pending = []
    pend_rate = 0
    m = 0
    for i, (t, ks, db) in enumerate(items):
        barrier = False
        if i+PD < len(items):
            tn = items[i+PD][0]
            if tn > landed:
                while any(x[0] in 'WA' and x[1] <= tn for x in q):
                    assert issue_next(), q[0]
                n = log.wait_for(lambda x: x[0] in 'WA' and x[1] <= tn)
                a(f"s_waitcnt vmcnt({n}) lgkmcnt(0)")
                a("s_barrier")
                landed = tn; barrier = True
                done_items = set(items[:i+PD])
                st = state['bar']
                while all((st, k, d) in done_items for k in range(4) for d in range(NB)) and st < KT: st += 1
                state['bar'] = st
        if not barrier:
            young = 2*min(PD-1, len(items)-1-i)
            a(f"s_waitcnt lgkmcnt({young})")
        for qb in range(TB):
            a(mfma(t, ks, db, qb, i % 8)); m += 1
            if qb == 0 and i+PD < len(items):
                for s_ in read_item(*items[i+PD], (i+PD) % 8): a(s_)
            if m % gap == 0: issue_next()
            for _ in range(pend_rate):
                if pending: a(pending.pop(0))
        if i < n_norm and db == NB-1: state['mf_done'].add((t, ks))
        if i >= n_norm and post is not None and t == KT-1 and ks == 3 and db < NB-1:
            assert not pending
            pending = [None]*0
            ops = post(db)
            per = (len(ops)+ (2*(4*T)-8) -1)//(2*(4*T)-8)
            pending = []
            state['post_ops'] = (ops, i+3)
            pend_rate = 0
        if 'post_ops' in state and i >= state['post_ops'][1]:
            ops, _ = state.pop('post_ops')
            pending = list(ops); pend_rate = max(1, (len(ops)+(2*(4*T-4))-1)//(2*(4*T-4)))
    while q:
        assert issue_next(), q[0]
    assert not pending, len(pending)
    if post is not None:
        a("s_nop 15")
        for o in post(NB-1 if T else None): a(o)
```

```python
import sys, math
from asmlib import *
from gen_small import *
from gen_gemm import *
from gen_attn import *
from gen_g256 import *
from gen_red import *
QS = 128**-0.5 * math.log2(math.e)
def build(kernels, path):
    launches = [k[0] for k in kernels]
    seen = set(); bodies = []; descs = []
    for k in kernels:
        if k[0][0] in seen: continue
        seen.add(k[0][0]); bodies.append(k[1]); descs.append(k[2])
    open(path, "w").write(assemble_file(launches, bodies, descs))
def pipeline(st=False, **kw):
    S = (lambda i: i) if st else (lambda i: None)
    wt = kw.get("wt", " sc1")
    G = kw.get("G", dict(NSLOT=6, NBUF=6, T=4))
    return [gen_k0(stamp=S(0)), gen_ln("ln1_kernel", 'x', WS_HF, 0, 1, QS, stamp=S(1), pf_wq=True, xf=kw.get("xf", False), stflag=kw.get("l1wt", " sc1")), gen_attn("attn_kernel", stamp=S(2), dbg=kw.get("adbg", ""), stflag=kw.get("awt", " sc1")),
            gen_g256("oproj_kernel", "oproj", stamp=S(3), stflag=wt, **G), gen_ln2p("ln2_kernel", stamp=S(4), stflag=kw.get("lwt", " sc1"), xf=kw.get("xf", False)),
            gen_g256("ffn1_kernel", "ffn1", stamp=S(5), stflag=wt, **G), gen_g256("ffn2_kernel", "ffn2", stamp=S(6), stflag=wt, **G),
            gen_redk("red_kernel", stamp=S(7))]
def variants(d):
    import hk
    for nm, kw in d.items():
        build(pipeline(True, **kw), f"b_{nm}.s"); hk.build(f"b_{nm}.s")
if __name__ == "__main__":
    import hk
    build(pipeline(False), "full.s"); hk.build("full.s")
    build(pipeline(True, adbg="ls"), "full_st.s"); hk.build("full_st.s")
```

```python
import sys, math
from asmlib import *
from gen_small import *
from gen_gemm import *
from gen_attn import *
from gen_g256 import *
from gen_red import *
from gen_k01 import *
QS = 128**-0.5 * math.log2(math.e)
def build(kernels, path):
    launches = [k[0] for k in kernels]
    seen = set(); bodies = []; descs = []
    for k in kernels:
        if k[0][0] in seen: continue
        seen.add(k[0][0]); bodies.append(k[1]); descs.append(k[2])
    open(path, "w").write(assemble_file(launches, bodies, descs))
def pipeline(st=False, **kw):
    S = (lambda i: i) if st else (lambda i: None)
    wt = kw.get("wt", " sc1")
    G = kw.get("G", dict(NSLOT=6, NBUF=6, T=4, touch=False, m16=kw.get("m16", True)))
    pp = kw.get("parts", True)
    if kw.get("k01", False): head = [gen_k01("k01_kernel", QS, stamp=S(0))]
    else: head = [gen_k0b(stamp=S(0)) if pp else gen_k0(stamp=S(0)), gen_ln("ln1_kernel", 'x', WS_HF, 0, 1, QS, stamp=S(1), pf_wq=True, xf=kw.get("xf", False), stflag=kw.get("l1wt", " sc1"), parts=pp)]
    return head + [gen_attn("attn_kernel", stamp=S(2), dbg=kw.get("adbg", ""), stflag=kw.get("awt", " sc1"), side=pp),
            gen_g256("oproj_kernel", "oproj", stamp=S(3), stflag=wt, **G), gen_ln2p("ln2_kernel", stamp=S(4), stflag=kw.get("lwt", " sc1"), xf=kw.get("xf", False), parts=pp, touch_w2=kw.get("tw2", False)),
            gen_g256("ffn1_kernel", "ffn1", stamp=S(5), stflag=wt, **G), gen_g256("ffn2_kernel", "ffn2", stamp=S(6), stflag=wt, **G),
            gen_redk("red_kernel", stamp=S(7), parts=pp)]
def variants(d):
    import hk
    for nm, kw in d.items():
        build(pipeline(True, **kw), f"b_{nm}.s"); hk.build(f"b_{nm}.s")
if __name__ == "__main__":
    import hk
    build(pipeline(False), "full.s"); hk.build("full.s")
    build(pipeline(True, adbg="ls"), "full_st.s"); hk.build("full_st.s")
```

```python
from asmlib import *
from gen_small import *
from gen_gemm import lane_common, tr_lane_terms
from gen_g256 import G256
from stream import VmLog

KRING = 65536
VRING = 65536+49152
BIAS = 30.0

def gen_attn(name="attn_kernel", stamp=None, fallback=True, dbg="", pfw=True, pfstride=64, stflag="", side=False):
    a = Asm(); L = name
    kernel_begin(a, name)
    a(f"""
    s_cmp_ge_u32 s2, 256
    s_cbranch_scc1 L_{L}_done
    s_load_dwordx4 s[4:7], s[0:1], 8
    s_load_dwordx2 s[8:9], s[0:1], 24      ; wq
    s_load_dwordx2 s[10:11], s[0:1], 96    ; ws
    s_load_dwordx2 s[60:61], s[0:1], 32    ; wo
    s_load_dwordx4 s[64:67], s[0:1], 48    ; w1 s[64:65], w2 s[66:67]
    s_load_dwordx2 s[82:83], s[0:1], 72    ; w_mod
    s_load_dwordx2 s[100:101], s[0:1], 64  ; c
    """)
    if stamp is not None: stamp_begin(a)
    lane_common(a)
    a("""
    s_and_b32 s21, s2, 7
    s_lshr_b32 s22, s2, 3
    s_and_b32 s23, s21, 3
    s_lshl_b32 s24, s23, 3
    s_and_b32 s25, s22, 7
    s_add_u32 s24, s24, s25                ; head
    s_lshr_b32 s25, s21, 2
    s_lshl_b32 s25, s25, 2
    s_lshr_b32 s26, s22, 3
    s_add_u32 s25, s25, s26
    s_lshl_b32 s25, s25, 3
    s_lshl_b32 s26, s20, 1
    s_add_u32 s25, s25, s26
    v_add_u32 v3, 0x10000, v2
    v_lshrrev_b32 v32, 4, v1               ; L>>4
    v_and_b32 v33, 15, v1                  ; p
    v_lshlrev_b32 v34, 2, v32
    v_xor_b32 v34, v33, v34                ; p ^ ((L>>4)<<2)
    v_lshlrev_b32 v34, 4, v34
    v_lshl_add_u32 v4, v32, 13, v34        ; W: row*8192 + c*16
    v_add_u32 v5, 31744, v4                ; + 4*8192 - 1024
    v_add_u32 v6, 63488, v4
    v_add_u32 v7, 95232, v4
    v_lshl_add_u32 v16, v32, 8, v34        ; V: row*256 + c*16
    """)
    for i in range(4):
        a(f"""
        v_add_u32 v35, {4*i}, v32
        v_xor_b32 v35, v33, v35
        v_lshlrev_b32 v35, 4, v35
        v_lshl_add_u32 v{12+i}, v32, 8, v35
        """)
    tr_lane_terms(a, 32, 33, 34, 35)
    a("""
    v_lshrrev_b32 v35, 1, v34              ; sw>>1
    v_lshl_add_u32 v35, v33, 1, v35        ; c0 = 2*(g&1) + (sw>>1)
    v_bfe_u32 v36, v1, 2, 2                ; i>>2
    v_lshlrev_b32 v37, 2, v36              ; swz = (i>>2)<<2
    v_and_b32 v34, 1, v34
    v_lshlrev_b32 v34, 3, v34              ; half8*8
    v_lshl_add_u32 v38, v32, 8, v34
    v_lshrrev_b32 v39, 5, v1               ; hh
    v_lshl_add_u32 v39, v39, 2, v36        ; 4hh + (i>>2)
    v_lshl_add_u32 v39, v39, 8, v34
    """)
    for db in range(4):
        a(f"""
        v_or_b32 v42, {4*db}, v35
        v_xor_b32 v42, v42, v37
        v_lshl_add_u32 v{8+db}, v42, 4, v38
        v_lshl_add_u32 v{28+db}, v42, 4, v39
        v_add_u32 v{28+db}, {VRING}, v{28+db}
        """)
    a("""
    v_and_b32 v32, 31, v1                  ; r
    v_lshrrev_b32 v33, 5, v1               ; hh
    v_and_b32 v34, 15, v1
    """)
    for ds in range(8):
        a(f"""
        v_or_b32 v35, {2*ds}, v33
        v_xor_b32 v35, v35, v34
        v_lshlrev_b32 v35, 4, v35
        v_lshl_add_u32 v{20+ds}, v32, 8, v35
        v_add_u32 v{20+ds}, {KRING}, v{20+ds}
        """)
    a("s_waitcnt lgkmcnt(0)")
    if stamp is not None and "ls" not in dbg: stamp_mid(a, 0)
    srd(a, 12, 8, 1024*4096*2)
    a(f"""
    s_lshl_b32 s26, s25, 16
    s_add_u32 s26, s26, {WS_HF}
    s_add_u32 s16, s10, s26
    s_addc_u32 s17, s11, 0
    s_mov_b32 s18, 131072
    s_mov_b32 s19, 0x20000
    """)
    srd(a, 32, 4, 4*2048*128*2)
    srd(a, 36, 6, 4*2048*128*2)
    srd(a, 40, 10, 2048*4096*2, WS_OF)
    a(f"""
    s_mul_i32 s28, s20, {16*8192}
    s_lshl_b32 s26, s24, 8
    s_add_u32 s28, s28, s26                ; W soffset
    s_mov_b32 s29, 0                       ; h soffset
    s_lshl_b32 s30, s20, 12
    s_lshl_b32 s44, s23, 19                ; g*524288
    s_add_u32 s44, s44, {1536*256}
    s_add_u32 s44, s44, s30
    """)
    a(f"""
    s_lshl_b32 s26, s2, 2
    s_add_u32 s26, s26, s20
    s_mul_i32 s26, s26, 8192
    v_lshlrev_b32 v17, 7, v1
    v_add_u32 v17, s26, v17
    s_mul_i32 s26, s26, 3
    s_lshr_b32 s26, s26, 1                 ; gid*12288
    s_add_u32 s26, s26, 4096
    v_lshlrev_b32 v19, 7, v1
    v_add_u32 v19, s26, v19
    s_mov_b32 s62, {3584*1024*2}
    s_mov_b32 s79, 0x20000
    s_and_b32 s80, s2, 1
    s_mov_b32 s81, {4096*1024*2}
    """)
    def pf_static(idx):
        def f():
            m, ph = idx >> 2, idx & 3
            ptr = {0: 82, 1: 60, 2: 64, 3: 66}[m]; size = {0: 1024*6144*2, 1: 4096*1024*2, 2: 3584*1024*2, 3: 3584*1024*2}[m]
            return [f"s_mov_b32 s76, s{ptr}", f"s_mov_b32 s77, s{ptr+1}", f"s_mov_b32 s63, {size}", f"s_cmp_eq_u32 s80, {ph}",
                    "s_cselect_b32 s78, s63, 0", f"buffer_load_dword v18, v{19 if m == 0 else 17}, s[76:79], 0 offen"]
        return f
    SIDE = 8192
    if side:
        a(f"""
        s_and_b32 s6, s2, 3
        s_lshr_b32 s7, s2, 2
        s_lshl_b32 s8, s6, 8
        s_lshl_b32 s9, s20, 6
        s_add_u32 s8, s8, s9
        v_lshrrev_b32 v56, 3, v1
        v_lshl_add_u32 v56, v56, 3, s8         ; row0
        v_lshlrev_b32 v57, 1, v56              ; c offset
        s_mov_b32 s9, 12288
        v_mul_lo_u32 v56, v56, s9
        v_and_b32 v58, 7, v1
        v_lshlrev_b32 v58, 4, v58
        s_lshl_b32 s9, s7, 7
        s_add_u32 s9, s9, 4096
        v_add3_u32 v56, v56, v58, s9
        s_mov_b32 s84, s82
        s_mov_b32 s85, s83
        s_mov_b32 s86, {1024*6144*2}
        s_mov_b32 s87, 0x20000
        s_lshl_b32 s8, s20, 13
        s_add_u32 s8, s8, {SIDE}
        """)
        srd(a, 4, 100, 2048)
        a("buffer_load_dwordx4 v[60:63], v57, s[4:7], 0 offen")
        a("s_and_b32 s6, s2, 3\ns_lshr_b32 s7, s2, 2")
    def side_dma(idx_expr_static=None):
        if not side: return
        if idx_expr_static is not None:
            a(f"s_add_u32 m0, s8, {idx_expr_static*1024}\ns_mov_b32 s63, {idx_expr_static*12288}\nbuffer_load_dwordx4 v56, s[84:87], s63 offen lds")
        else:
            a("""
            s_sub_u32 s63, s48, 1
            s_lshl_b32 s9, s63, 10
            s_add_u32 m0, s8, s9
            s_mul_i32 s63, s63, 12288
            buffer_load_dwordx4 v56, s[84:87], s63 offen lds
            """)
    def pf_weights():
        side_dma()
        if not pfw: return
        a(f"""
        s_sub_u32 s63, s48, s80            ; 1: wo 3: w1 5: w2
        s_cmp_eq_u32 s63, 1
        s_cselect_b32 s76, s60, s64
        s_cselect_b32 s77, s61, s65
        s_cselect_b32 s78, s81, 0
        s_cmp_eq_u32 s63, 3
        s_cselect_b32 s78, s62, s78
        s_cmp_eq_u32 s63, 5
        s_cselect_b32 s76, s66, s76
        s_cselect_b32 s77, s67, s77
        s_cselect_b32 s78, s62, s78
        buffer_load_dword v18, v17, s[76:79], 0 offen
        """)
    QACC = 64
    def qacc(db, qb): r = QACC+(2*db+qb)*16; return r
    def k_dma(ldsoff_expr, tile_soff):
        a(f"s_add_u32 m0, s30, {ldsoff_expr}")
        a("s_nop 0")
        for j in range(4): a(f"buffer_load_dwordx4 v{12+j}, s[32:35], {tile_soff} offen offset:{1024*j} lds")
    def v_dma(ldsoff_expr, tile_soff):
        a(f"s_add_u32 m0, s30, {ldsoff_expr}")
        a("s_nop 0")
        for j in range(4): a(f"buffer_load_dwordx4 v16, s[36:39], {tile_soff} offen offset:{1024*j} lds")
    g = G256(a, 16, 8192, 4, 4, ACC=QACC, vW=4, vT=8)
    g.issue_stage(0)
    g.issue_stage(1)
    for i in range(128): a(f"v_mov_b32 v{QACC+i}, 0")
    a("s_mov_b32 s46, 0")
    a(f"s_add_u32 s45, s44, 16384")
    extra = []
    def mk(kind, ldsoff, soff, j):
        def f():
            out = []
            if g.cur['m0'] != ('x', ldsoff):
                out += [f"s_add_u32 m0, s30, {ldsoff}", "s_nop 0"]; g.cur['m0'] = ('x', ldsoff)
            if kind == 'K': out.append(f"buffer_load_dwordx4 v{12+j}, s[32:35], {soff} offen offset:{1024*j} lds")
            else: out.append(f"buffer_load_dwordx4 v16, s[36:39], {soff} offen offset:{1024*j} lds")
            return out
        return f
    for (kind, ldsoff, soff) in [('K', KRING, "s44"), ('K', KRING+16384, "s45"), ('V', VRING, "s44")]:
        for j in range(4): extra.append((('X', kind, j), mk(kind, ldsoff, soff, j)))
    g.first_wait2()
    if stamp is not None and "ls" not in dbg: stamp_mid(a, 1); a("s_nop 0")
    ea = {9: [0,1,2,3], 11: [4,5,6,7], 13: [8,9,10,11]}
    g.stream2(2, gap=2, extra=extra, extra_after=ea, T=0)
    a("s_waitcnt vmcnt(0)")
    a("s_barrier")
    if stamp is not None: stamp_mid(a, 2)
    QF = 192
    def qf(qb, ds): r = QF+32*qb+4*ds; return f"v[{r}:{r+3}]"
    a("s_nop 7\ns_nop 7")
    for qb in range(2):
        for ds in range(8):
            c = qacc(ds >> 1, qb)+8*(ds & 1)
            for j in range(4):
                a(f"v_cvt_pk_bf16_f32 v{QF+32*qb+4*ds+j}, v{c+2*j}, v{c+2*j+1}")
    def S(b, qb): return 64+32*b+16*qb
    def P(b, qb, ks): return 128+16*b+8*qb+4*ks
    def NM(qb): return 160+16*qb
    def O(db, qb): return (2*db+qb)*16
    RING = 128
    LREG = (40, 41)
    PDI = 4
    def item_reads(it, slot):
        r = RING+4*(slot % 8)
        if it[0] == 'K':
            _, half, ds = it[:3]
            return [f"ds_read_b128 a[{r}:{r+3}], v{20+ds} offset:{half*8192}"]
        _, half, ks, db = it[:4]
        return [f"ds_read_b64_tr_b16 a[{r+2*hf}:{r+2*hf+1}], v{28+db} offset:{(half*32+16*ks+8*hf)*256}" for hf in range(2)]
    def item_mfma(it, slot, qb):
        r = RING+4*(slot % 8)
        if it[0] == 'K':
            _, half, ds, sb, cmode = it
            d = S(sb, qb)
            if ds == 0: c = "0" if cmode == 'zero' else f"v[{NM(qb)}:{NM(qb)+15}]"
            else: c = f"v[{d}:{d+15}]"
            return f"v_mfma_f32_32x32x16_bf16 v[{d}:{d+15}], a[{r}:{r+3}], {qf(qb, ds)}, {c}"
        _, half, ks, db, pb = it
        o = O(db, qb); p = P(pb, qb, ks)
        return f"v_mfma_f32_32x32x16_bf16 a[{o}:{o+15}], a[{r}:{r+3}], v[{p}:{p+3}], a[{o}:{o+15}]"
    def nreads(it): return 1 if it[0] == 'K' else 2
    def softmax_ops(sb, pb):
        ops = []; prev = None
        for qb in range(2):
            for j in range(8):
                e0 = S(sb, qb)+2*j; e1 = e0+1
                ops.append(f"v_exp_f32 v{e0}, v{e0}")
                ops.append(f"v_exp_f32 v{e1}, v{e1}")
                if prev: ops += prev
                prev = [f"v_add_f32 v{LREG[qb]}, v{LREG[qb]}, v{e0}",
                        f"v_cvt_pk_bf16_f32 v{P(pb, qb, j >> 2)+(j & 3)}, v{e0}, v{e1}",
                        f"v_add_f32 v{LREG[qb]}, v{LREG[qb]}, v{e1}"]
        ops.append("s_nop 0"); ops += prev
        return ops
    def emit_items(items, future, valu, extra=None, slot0=0, pre_issued=True):
        seq = items+future
        n = len(items); gaps = 2*n
        vi = 0
        for i, it in enumerate(items):
            young = sum(nreads(x) for x in seq[i+1:i+PDI])
            a(f"s_waitcnt lgkmcnt({young})")
            a(item_mfma(it, slot0+i, 0))
            if extra and i in extra: extra[i]()
            if i+PDI < len(seq):
                for s in item_reads(seq[i+PDI], slot0+i+PDI): a(s)
            tgt = (len(valu)*(2*i+1))//gaps
            while vi < tgt: a(valu[vi]); vi += 1
            a(item_mfma(it, slot0+i, 1))
            tgt = (len(valu)*(2*i+2))//gaps
            while vi < tgt: a(valu[vi]); vi += 1
        assert vi == len(valu)
    def kitems(half, sb, cmode='nm'): return [('K', half, ds, sb, cmode) for ds in range(8)]
    def vitems(half, pb): return [('V', half, ks, db, pb) for ks in range(2) for db in range(4)]

    side_dma(7)
    a(f"L_{L}_att:")
    a("v_mov_b32 v40, 0\nv_mov_b32 v41, 0")
    head1 = kitems(0, 0, 'zero'); head2 = kitems(1, 1)
    for i in range(PDI):
        for s in item_reads(head1[i], i): a(s)
    zinit = [f"v_accvgpr_write_b32 a{i}, 0" for i in range(128)]
    emit_items(head1, head2, zinit, slot0=0)
    a("s_nop 7\ns_nop 7")
    if fallback:
        a(f"s_cmp_eq_u32 s46, 1\ns_cbranch_scc1 L_{L}_havem")
    for qb in range(2):
        s = S(0, qb); m = 42+qb
        a(f"v_max3_f32 v{m}, v{s}, v{s+1}, v{s+2}")
        for j in range(3, 15, 2): a(f"v_max3_f32 v{m}, v{m}, v{s+j}, v{s+j+1}")
        a(f"v_max_f32 v{m}, v{m}, v{s+15}")
    a("v_mov_b32 v44, v42\nv_mov_b32 v45, v43\ns_nop 1")
    a("v_permlane32_swap_b32 v42, v44\nv_permlane32_swap_b32 v43, v45\ns_nop 1")
    a("v_max_f32 v42, v42, v44\nv_max_f32 v43, v43, v45")
    a(f"v_sub_f32 v42, {-BIAS}, v42\nv_sub_f32 v43, {-BIAS}, v43".replace("-30.0", "0xc1f00000"))
    if fallback: a(f"L_{L}_havem:")
    for qb in range(2):
        for j in range(16): a(f"v_mov_b32 v{NM(qb)+j}, v{42+qb}")
        for j in range(16): a(f"v_add_f32 v{S(0,qb)+j}, v{S(0,qb)+j}, v{42+qb}")
    body_a = kitems(0, 0)+vitems(0, 0)
    body_b = kitems(1, 1)+vitems(1, 1)
    def adv_k_first():
        for ds in range(8): a(f"v_add_u32 v{20+ds}, 16384, v{20+ds}")
    emit_items(head2, body_a[:PDI], softmax_ops(0, 0), extra={4: adv_k_first}, slot0=8)
    if stamp is not None and "ls" in dbg:
        a("s_memtime s[68:69]\ns_waitcnt lgkmcnt(0)\ns_sub_u32 s70, s68, s90")
    a(f"""
    s_mov_b32 s47, 16384
    s_mov_b32 s48, 1
    s_add_u32 s49, s44, 16384
    L_{L}_aloop:
    s_add_u32 s50, s47, 16384
    s_cmp_eq_u32 s50, 49152
    s_cselect_b32 s50, 0, s50
    s_add_u32 s51, s50, 16384
    s_cmp_eq_u32 s51, 49152
    s_cselect_b32 s51, 0, s51
    s_sub_u32 s52, s50, s47               ; delta K
    s_sub_u32 s53, s47, s51               ; delta V
    s_add_u32 s45, s49, 16384             ; K(i+1) source
    s_add_u32 s54, s50, {KRING}
    s_add_u32 s55, s47, {VRING}           ; V(i) -> slot i%3
    """)
    def kd(j):
        def f():
            if j == 0: a("s_add_u32 m0, s30, s54\ns_nop 0")
            a(f"buffer_load_dwordx4 v{12+j}, s[32:35], s45 offen offset:{1024*j} lds")
        return f
    def vd(j):
        def f():
            if j == 0: a("s_add_u32 m0, s30, s55\ns_nop 0")
            a(f"buffer_load_dwordx4 v16, s[36:39], s49 offen offset:{1024*j} lds")
        return f
    exa = {0: kd(0), 1: kd(1), 2: kd(2), 3: kd(3), 4: vd(0), 5: vd(1), 6: vd(2), 7: vd(3), 9: pf_weights}
    emit_items(body_a, body_b[:PDI], softmax_ops(1, 1), extra=exa, slot0=0)
    def adv_k():
        for ds in range(8): a(f"v_add_u32 v{20+ds}, s52, v{20+ds}")
    def sync_only():
        a(f"s_waitcnt vmcnt({(1 if pfw else 0)+(1 if side else 0)})")
        a("s_barrier")
    def adv_v():
        for db in range(4): a(f"v_add_u32 v{28+db}, s53, v{28+db}")
    ex = {4: adv_k, 12: lambda: (sync_only(), adv_v())}
    emit_items(body_b, body_a[:PDI], softmax_ops(0, 0), extra=ex, slot0=16)
    a(f"""
    s_mov_b32 s47, s50
    s_add_u32 s49, s49, 16384
    s_add_u32 s48, s48, 1
    s_cmp_lt_u32 s48, 8
    s_cbranch_scc1 L_{L}_aloop
    s_waitcnt lgkmcnt(0)
    """)
    if stamp is not None and "ls" in dbg: stamp_mid(a, 1)
    t1 = vitems(0, 0); t2 = vitems(1, 1)
    for i in range(PDI):
        for s in item_reads(t1[i], i): a(s)
    emit_items(t1, t2[:PDI], softmax_ops(1, 1), slot0=0)
    a("s_nop 1")
    emit_items(t2, [], [], slot0=8)
    if stamp is not None: stamp_mid(a, 3)
    a("""
    v_mov_b32 v44, v40
    v_mov_b32 v45, v41
    s_nop 1
    v_permlane32_swap_b32 v40, v44
    v_permlane32_swap_b32 v41, v45
    s_nop 1
    v_add_f32 v40, v40, v44
    v_add_f32 v41, v41, v45
    """)
    if fallback:
        a(f"""
        s_cmp_eq_u32 s46, 1
        s_cbranch_scc1 L_{L}_fin
        v_mov_b32 v46, 0x6c800000          ; 2^90
        v_cmp_nle_f32 vcc, v40, v46
        v_cmp_nle_f32 s[56:57], v41, v46
        s_or_b64 vcc, vcc, s[56:57]
        s_cmp_lg_u64 vcc, 0
        s_cselect_b32 s58, 1, 0
        v_mov_b32 v46, s58
        v_mov_b32 v47, s30
        v_lshrrev_b32 v47, 10, v47         ; w*4
        s_barrier
        ds_write_b32 v47, v46
        s_waitcnt lgkmcnt(0)
        s_barrier
        v_mov_b32 v47, 0
        ds_read_b128 v[48:51], v47
        s_waitcnt lgkmcnt(0)
        v_or_b32 v48, v48, v49
        v_or_b32 v50, v50, v51
        v_or_b32 v48, v48, v50
        s_nop 0
        v_readfirstlane_b32 s58, v48
        s_cmp_eq_u32 s58, 0
        s_cbranch_scc1 L_{L}_fin
        """)
        a(f"""
        s_barrier
        v_mov_b32 v42, 0xff800000
        v_mov_b32 v43, 0xff800000
        s_mov_b32 s48, 0
        s_mov_b32 s49, s44
        ; K read addresses back to slot 0 : current slot offset is s47 (tile 8 % 3), registers point there
        L_{L}_fbsub:
        """)
        for ds in range(8): a(f"v_subrev_u32 v{20+ds}, s47, v{20+ds}")
        a(f"L_{L}_fbloop:")
        k_dma(KRING, "s49")
        a("s_waitcnt vmcnt(0)\ns_barrier")
        for half in range(2):
            for ds in range(8):
                a(f"ds_read_b128 a[{RING+4*ds}:{RING+4*ds+3}], v{20+ds} offset:{half*8192}")
            a("s_waitcnt lgkmcnt(0)")
            for ds in range(8):
                for qb in range(2):
                    d = S(0, qb); c = "0" if ds == 0 else f"v[{d}:{d+15}]"
                    a(f"v_mfma_f32_32x32x16_bf16 v[{d}:{d+15}], a[{RING+4*ds}:{RING+4*ds+3}], {qf(qb, ds)}, {c}")
            a("s_nop 7\ns_nop 7")
            for qb in range(2):
                s = S(0, qb); m = 42+qb
                for j in range(0, 16, 2): a(f"v_max3_f32 v{m}, v{m}, v{s+j}, v{s+j+1}")
        a(f"""
        s_barrier
        s_add_u32 s49, s49, 16384
        s_add_u32 s48, s48, 1
        s_cmp_lt_u32 s48, 8
        s_cbranch_scc1 L_{L}_fbloop
        v_mov_b32 v44, v42
        v_mov_b32 v45, v43
        s_nop 1
        v_permlane32_swap_b32 v42, v44
        v_permlane32_swap_b32 v43, v45
        s_nop 1
        v_max_f32 v42, v42, v44
        v_max_f32 v43, v43, v45
        v_sub_f32 v42, 0, v42
        v_sub_f32 v43, 0, v43
        s_mov_b32 s46, 1
        """)
        for db in range(4): a(f"v_subrev_u32 v{28+db}, 16384, v{28+db}")
        a(f"s_add_u32 s45, s44, 16384")
        k_dma(KRING, "s44"); k_dma(KRING+16384, "s45"); v_dma(VRING, "s44")
        a(f"""
        s_waitcnt vmcnt(0)
        s_barrier
        s_branch L_{L}_att
        L_{L}_fin:
        """)
    a("""
    v_rcp_f32 v44, v40
    v_rcp_f32 v45, v40
    v_rcp_f32 v46, v41
    v_rcp_f32 v47, v41
    s_nop 7
    s_nop 7
    """)
    elog = VmLog()
    side_ops = []
    if side:
        srd(a, 36, 10, 4*4096*4, WS_PB)
        a("s_mov_b32 s27, 0xffff0000\ns_mov_b32 s9, 0xbfb8aa3b")
        so = side_ops
        a("v_lshlrev_b32 v125, 4, v1\nv_add_u32 v125, s8, v125\ns_waitcnt vmcnt(0)")
        for i in range(8): a(f"ds_read_b128 v[{128+4*i}:{131+4*i}], v125 offset:{1024*i}")
        for j in range(4):
            so.append(f"v_lshlrev_b32 v{164+2*j}, 16, v{60+j}")
            so.append(f"v_and_b32 v{165+2*j}, s27, v{60+j}")
        for j in range(8): so.append(f"v_mul_f32 v{172+j}, s9, v{164+j}")
        for j in range(8): so.append(f"v_exp_f32 v{172+j}, v{172+j}")
        for j in range(8): so.append(f"v_add_f32 v{172+j}, 1.0, v{172+j}")
        for j in range(8): so.append(f"v_rcp_f32 v{172+j}, v{172+j}")
        for j in range(8): so.append(f"v_mul_f32 v{164+j}, v{164+j}, v{172+j}")
        for j in range(4): so.append(f"v_cvt_pk_bf16_f32 v{160+j}, v{164+2*j}, v{165+2*j}")
        for j in range(4):
            so.append(f"v_lshlrev_b32 v{164+2*j}, 16, v{160+j}")
            so.append(f"v_and_b32 v{165+2*j}, s27, v{160+j}")
        for e in range(8): so.append(f"v_mov_b32 v{180+e}, 0")
        so.append("s_waitcnt lgkmcnt(0)")
        for i in range(8):
            for d in range(4):
                r = 128+4*i+d
                so.append(f"v_lshlrev_b32 v172, 16, v{r}")
                so.append(f"v_and_b32 v173, s27, v{r}")
                so.append(f"v_fmac_f32 v{180+2*d}, v{164+i}, v172")
                so.append(f"v_fmac_f32 v{181+2*d}, v{164+i}, v173")
        so.append("s_nop 1")
        for e in range(8): so.append(f"v_add_f32_dpp v{180+e}, v{180+e}, v{180+e} row_ror:8 row_mask:0xf bank_mask:0xf")
        for sw in ["v_permlane16_swap_b32", "v_permlane32_swap_b32"]:
            for e in range(8): so.append(f"v_mov_b32 v{172+e}, v{180+e}")
            so.append("s_nop 1")
            for e in range(8): so.append(f"{sw} v{180+e}, v{172+e}")
            so.append("s_nop 1")
            for e in range(8): so.append(f"v_add_f32 v{180+e}, v{180+e}, v{172+e}")
    nside = len(side_ops); per = (nside+13)//14 if nside else 0
    def side_emit(n):
        for _ in range(n):
            if not side_ops: return
            o = side_ops.pop(0)
            if isinstance(o, tuple): a(f"s_waitcnt vmcnt({elog.wait_for(lambda x: x == o[1])})")
            else: a(o)
    a(f"""
    s_mul_i32 s26, s25, {4096*64}
    s_lshl_b32 s31, s24, 13
    s_add_u32 s26, s26, s31
    """)
    for qb in range(2):
        if qb == 1: a(f"s_add_u32 s26, s26, {4096*64-4096}")
        for db in range(4):
            o = O(db, qb)
            for j in range(16): a(f"v_accvgpr_read_b32 v{64+j}, a{o+j}")
            for j in range(0, 16, 2): a(f"v_pk_mul_f32 v[{64+j}:{65+j}], v[{64+j}:{65+j}], v[{44+2*qb}:{45+2*qb}]")
            t = 80+8*(db & 1)
            for j in range(8): a(f"v_cvt_pk_bf16_f32 v{t+j}, v{64+2*j}, v{64+2*j+1}")
            if db == 2: a("s_add_u32 s26, s26, 4096")
            a(f"buffer_store_dwordx4 v[{t}:{t+3}], v2, s[40:43], s26 offen offset:{(db&1)*2048}{stflag}"); elog.issue(('s',))
            side_emit(per)
            a(f"buffer_store_dwordx4 v[{t+4}:{t+7}], v2, s[40:43], s26 offen offset:{(db&1)*2048+1024}{stflag}"); elog.issue(('s',))
            side_emit(per)
    side_emit(10000)
    if side:
        a(f"""
        s_lshl_b32 s9, s20, 8
        v_lshlrev_b32 v125, 5, v1
        v_add_u32 v125, s9, v125               ; w*256 + lane*32
        v_cmp_gt_u32 vcc, 8, v1
        s_and_saveexec_b64 s[56:57], vcc
        ds_write_b128 v125, v[180:183] offset:1024
        ds_write_b128 v125, v[184:187] offset:1040
        s_mov_b64 exec, s[56:57]
        s_waitcnt lgkmcnt(0)
        s_barrier
        s_cmp_lg_u32 s20, 0
        s_cbranch_scc1 L_{L}_side_done
        v_lshlrev_b32 v125, 2, v1
        ds_read_b32 v172, v125 offset:1024
        ds_read_b32 v173, v125 offset:1280
        ds_read_b32 v174, v125 offset:1536
        ds_read_b32 v175, v125 offset:1792
        s_lshl_b32 s9, s6, 14
        s_lshl_b32 s8, s7, 8
        s_add_u32 s9, s9, s8
        s_waitcnt lgkmcnt(0)
        v_add_f32 v172, v172, v173
        v_add_f32 v174, v174, v175
        v_add_f32 v172, v172, v174
        buffer_store_dword v172, v125, s[36:39], s9 offen
        L_{L}_side_done:
        """)
    if stamp is not None:
        stamp_mid(a, 4); stamp_end2(a, stamp, 10)
    a(f"""
    L_{L}_done:
    s_endpgm
    """)
    txt = a.text()
    return (name, (256,1,1), (256,1,1), 163840), txt, kernel_desc(name, 256+192, accum=256)
```

```python
from asmlib import *
from gen_small import *
from gen_gemm import lane_common, tr_lane_terms, Filt
from stream import *

WS_P1 = 0x5000000
WS_P2 = WS_P1 if REUSE else 0x6000000

def g256_setup_w(a, w_stride, vW=4, vT=8, nbase=1):
    a(f"""
    v_lshrrev_b32 v32, 4, v1               ; L>>4
    v_and_b32 v33, 15, v1                  ; p
    v_lshlrev_b32 v34, 2, v32
    v_xor_b32 v34, v33, v34
    v_lshlrev_b32 v34, 4, v34
    v_mul_u32_u24 v35, {w_stride}, v32
    v_add_u32 v{vW}, v35, v34
    v_add_u32 v{vW+1}, {4*w_stride-1024}, v{vW}
    v_add_u32 v{vW+2}, {8*w_stride-2048}, v{vW}
    v_add_u32 v{vW+3}, {12*w_stride-3072}, v{vW}
    """)
def g256_setup_tr(a, vT=8, nbase=1):
    tr_lane_terms(a, 32, 33, 34, 35)
    a("""
    v_lshrrev_b32 v35, 1, v34              ; sw>>1
    v_lshl_add_u32 v35, v33, 1, v35        ; c0
    v_bfe_u32 v36, v1, 2, 2                ; i>>2
    v_lshlrev_b32 v37, 2, v36              ; swz
    v_and_b32 v34, 1, v34
    v_lshlrev_b32 v34, 3, v34              ; half8*8
    v_lshl_add_u32 v38, v32, 8, v34
    """)
    for db in range(4):
        a(f"""
        v_or_b32 v42, {4*db}, v35
        v_xor_b32 v42, v42, v37
        v_lshl_add_u32 v{vT+db}, v42, 4, v38
        """)
        for b in range(1, nbase): a(f"v_add_u32 v{vT+4*b+db}, {65536*b}, v{vT+db}")

class G256:
    def __init__(self, a, KT, w_stride, NSLOT, NBUF, ACC=64, vW=4, vT=8):
        self.a = a; self.KT = KT; self.ws = w_stride; self.NSLOT = NSLOT; self.NBUF = NBUF; self.ACC = ACC
        self.vW = vW; self.vT = vT; self.FR = 32*NBUF
        self.log = VmLog(); self.cur = dict(m0=None, ws=0, as_=0)
        g = self
        def wdma(s, j):
            out = []
            if g.cur['ws'] != s:
                out.append(f"s_add_u32 s28, s28, {(s-g.cur['ws'])*64*g.ws}"); g.cur['ws'] = s
            want = (s % NSLOT)*16384
            if g.cur['m0'] != want:
                out.append(f"s_add_u32 m0, s30, {want}"); out.append("s_nop 0"); g.cur['m0'] = want
            out.append(f"buffer_load_dwordx4 v{g.vW+j}, s[12:15], s28 offen offset:{1024*j} lds")
            return out
        wdma.n = 4
        self.wdma = wdma
    def hbuf(self, buf, qb, ks): r = 32*buf+16*qb+4*ks; return f"a[{r}:{r+3}]"
    def actload(self, s, ks, tb):
        pre = ""
        if self.cur['as_'] != s:
            pre = f"s_mov_b32 s29, {s*4096}\n"; self.cur['as_'] = s
        return pre+f"buffer_load_dwordx4 {self.hbuf(s % self.NBUF, tb, ks)}, v{2+tb}, s[16:19], s29 offen offset:{1024*ks}"
    def qacc(self, db, qb): return self.ACC+(2*db+qb)*16
    def wfr(self, q, db): return self.FR+(q % 2)*16+4*db
    def wreads(self, t, ks):
        q = 4*t+ks; slot = t % self.NSLOT; out = []
        for db in range(4):
            r = self.wfr(q, db)
            for hf in range(2):
                out.append(f"ds_read_b64_tr_b16 a[{r+2*hf}:{r+2*hf+1}], v{self.vT+4*(slot//4)+db} offset:{(slot%4)*16384+(16*ks+4*hf)*256}")
        return out
    def mfma(self, t, ks, db, qb):
        r = self.wfr(4*t+ks, db); c = self.qacc(db, qb)
        return f"v_mfma_f32_32x32x16_bf16 v[{c}:{c+15}], a[{r}:{r+3}], {self.hbuf(t % self.NBUF, qb, ks)}, v[{c}:{c+15}]"
    def issue_stage(self, s):
        a = self.a
        for j in range(4):
            for l in self.wdma(s, j): a(l)
            self.log.issue(('W', s, j))
            for tb in range(2):
                a(self.actload(s, j, tb)); self.log.issue(('A', s, j, tb))
    def first_wait(self):
        a = self.a
        a(f"s_waitcnt vmcnt({self.log.wait_for(lambda x: x[0] in 'WA' and x[1] == 0)})")
        a("s_barrier")
        for s in self.wreads(0, 0): a(s)
    def read_item(self, t, ks, db, ring):
        r = self.FR+4*ring; slot = t % self.NSLOT
        return [f"ds_read_b64_tr_b16 a[{r+2*hf}:{r+2*hf+1}], v{self.vT+4*(slot//4)+db} offset:{(slot%4)*16384+(16*ks+4*hf)*256}" for hf in range(2)]
    def mfma2(self, t, ks, db, qb, ring):
        r = self.FR+4*ring; c = self.qacc(db, qb)
        return f"v_mfma_f32_32x32x16_bf16 v[{c}:{c+15}], a[{r}:{r+3}], {self.hbuf(t % self.NBUF, qb, ks)}, v[{c}:{c+15}]"
    def first_wait2(self):
        a = self.a
        a(f"s_waitcnt vmcnt({self.log.wait_for(lambda x: x[0] in 'WA' and x[1] == 0)})")
        a("s_barrier")
        for db in range(4):
            for s in self.read_item(0, 0, db, db): a(s)
    def stream2(self, pre, gap=2, extra=None, extra_after=None, T=0, post=None):
        emit_stream2(self.a, self.KT, self.NSLOT, self.NBUF, self.read_item, self.mfma2, self.wdma, self.actload, self.log, pre, gap=gap, extra=extra, extra_after=extra_after, T=T, post=post)
    def stream(self, pre, gap=2, extra=None, extra_after=None):
        emit_stream(self.a, self.KT, 4, 2, self.NSLOT, self.NBUF, self.wreads, self.mfma, self.wdma, self.actload, self.log, pre, gap=gap, extra=extra, extra_after=extra_after)

def gen_g256(name, kind, stamp=None, NSLOT=6, NBUF=5, pre=2, gap=2, dbg="", stflag=" sc0 sc1", T=0, touch=True):
    a = Filt(dbg); L = name
    cfg = {
      "oproj": dict(KT=16, w_arg=32, ws=2048, wbytes=4096*1024*2, act=WS_OF, atb=4096*64, nwg=256),
      "ffn1":  dict(KT=16, w_arg=48, ws=7168, wbytes=1024*3584*2, act=WS_H2F, atb=1024*64, nwg=224),
      "ffn2":  dict(KT=14, w_arg=56, ws=2048, wbytes=3584*1024*2, act=WS_HIDF, atb=3584*64, nwg=256),
    }[kind]
    KT, ws, atb = cfg["KT"], cfg["ws"], cfg["atb"]
    kernel_begin(a, name)
    a(f"""
    s_cmp_ge_u32 s2, {cfg["nwg"]}
    s_cbranch_scc1 L_{L}_done
    s_load_dwordx2 s[4:5], s[0:1], {cfg["w_arg"]}
    s_load_dwordx2 s[6:7], s[0:1], 96
    s_load_dwordx4 s[60:63], s[0:1], 48    ; w1 s[60:61], w2 s[62:63]
    """)
    if stamp is not None: stamp_begin(a)
    lane_common(a)
    a("""
    s_and_b32 s21, s2, 7
    s_lshr_b32 s22, s2, 3
    s_and_b32 s23, s21, 3                  ; q
    s_lshr_b32 s24, s21, 2
    s_lshl_b32 s24, s24, 2                 ; 4*th
    """)
    if kind == "ffn1":
        a("""
        s_mul_i32 s25, s22, 37
        s_lshr_b32 s25, s25, 8
        s_add_u32 s24, s24, s25
        s_mul_i32 s25, s25, 7
        s_sub_u32 s25, s22, s25            ; idx % 7
        s_mul_i32 s26, s23, 7
        s_add_u32 s25, s25, s26
        s_mov_b32 s26, 0                   ; k offset rows
        s_mov_b32 s27, 0
        """)
    else:
        kq = KT*64
        a(f"""
        s_lshr_b32 s25, s22, 3
        s_add_u32 s24, s24, s25
        s_and_b32 s25, s22, 7              ; n tile
        s_mul_i32 s26, s23, {kq}           ; k offset rows
        s_mul_i32 s27, s23, {kq*64}
        """)
    a(f"""
    s_lshl_b32 s24, s24, 3
    s_lshl_b32 s31, s20, 1
    s_add_u32 s24, s24, s31
    v_add_u32 v3, {atb}, v2
    """)
    g256_setup_w(a, ws)
    a("s_waitcnt lgkmcnt(0)")
    if stamp is not None: stamp_mid(a, 0)
    srd(a, 12, 4, cfg["wbytes"])
    a(f"""
    s_mul_i32 s31, s24, {atb}
    s_add_u32 s31, s31, s27
    s_add_u32 s31, s31, {cfg["act"]}
    s_add_u32 s16, s6, s31
    s_addc_u32 s17, s7, 0
    s_mov_b32 s18, {atb+KT*4096}
    s_mov_b32 s19, 0x20000
    s_lshl_b32 s31, s20, 4
    s_add_u32 s31, s31, s26
    s_mul_i32 s28, s31, {ws}
    s_lshl_b32 s31, s25, 8
    s_add_u32 s28, s28, s31                ; W soffset
    s_mov_b32 s29, 0
    s_lshl_b32 s30, s20, 12
    """)
    g = G256(a, KT, ws, NSLOT, NBUF)
    g.issue_stage(0)
    g256_setup_tr(a, 8, (NSLOT+3)//4)
    for s in range(1, pre): g.issue_stage(s)
    for i in range(128): a(f"v_mov_b32 v{64+i}, 0")
    if kind == "ffn1":
        srd(a, 40, 6, 2048*3584*2, WS_HIDF); otb = 3584*64
        a(f"s_mul_i32 s26, s24, {otb}\ns_lshl_b32 s27, s25, 13\ns_add_u32 s26, s26, s27")
    else:
        otb = 65536
        a(f"""
        s_lshl_b32 s31, s23, 22
        s_add_u32 s31, s31, {WS_P1 if kind == "oproj" else WS_P2}
        s_add_u32 s40, s6, s31
        s_addc_u32 s41, s7, 0
        s_mov_b32 s42, {2048*1024*2}
        s_mov_b32 s43, 0x20000
        s_lshl_b32 s26, s24, 16
        s_lshl_b32 s27, s25, 13
        s_add_u32 s26, s26, s27
        """)
    a(f"s_add_u32 s27, s26, {otb}")
    a("s_add_u32 s34, s26, 4096\ns_add_u32 s35, s27, 4096")
    def post(db):
        dbs = range(4) if db is None else [db]
        ops = []
        for d_ in dbs:
            for qb in range(2):
                c = g.qacc(d_, qb); t = 20+8*qb
                for j in range(8):
                    ops.append(f"v_cvt_pk_bf16_f32 v{t+j}, v{c+2*j}, v{c+2*j+1}")
                    if kind == "ffn1": ops.append(f"v_pk_max_i16 v{t+j}, v{t+j}, 0")
                so = ["s26", "s27"][qb] if d_ < 2 else ["s34", "s35"][qb]
                ops.append(f"buffer_store_dwordx4 v[{t}:{t+3}], v2, s[40:43], {so} offen offset:{(d_&1)*2048}{stflag}")
                ops.append(f"buffer_store_dwordx4 v[{t+4}:{t+7}], v2, s[40:43], {so} offen offset:{(d_&1)*2048+1024}{stflag}")
        return ops
    extra = []; ea = {}
    nxt = {"oproj": 60, "ffn1": 62}.get(kind)
    if touch and nxt is not None:
        nw = cfg["nwg"]*4
        lines = 3584*1024*2//128
        per = -(-lines//(nw*64))
        a(f"""
        s_lshl_b32 s46, s2, 2
        s_add_u32 s46, s46, s20
        s_mul_i32 s46, s46, {per*8192}
        v_lshlrev_b32 v18, 7, v1
        v_add_u32 v18, s46, v18
        s_mov_b32 s48, s{nxt}
        s_mov_b32 s49, s{nxt+1}
        s_mov_b32 s51, 0x20000
        s_and_b32 s47, s2, 3
        s_mov_b32 s52, {3584*1024*2}
        """)
        def mkt(ph, k):
            def f():
                return [f"s_cmp_eq_u32 s47, {ph}", "s_cselect_b32 s50, s52, 0", f"s_mov_b32 s53, {k*8192}", "buffer_load_dword v19, v18, s[48:51], s53 offen"]
            return f
        for ph in range(4):
            for k in range(per):
                extra.append((('X', 'pf', ph, k), mkt(ph, k)))
                ea.setdefault(3+2*ph, []).append(len(extra)-1)
    g.first_wait2()
    if stamp is not None: stamp_mid(a, 1)
    a.inloop = True
    g.stream2(pre, gap, T=T, post=post, extra=extra, extra_after=ea)
    a.inloop = False
    if stamp is not None: stamp_mid(a, 2)
    if stamp is not None: stamp_mid(a, 3); stamp_end2(a, stamp, 6)
    a(f"""
    L_{L}_done:
    s_endpgm
    """)
    return (name, (cfg["nwg"],1,1), (256,1,1), NSLOT*16384), a.text(), kernel_desc(name, 256+32*NBUF+32, accum=256)
```

```python
from asmlib import *
from gen_small import *
import struct

def gen_k01(name="k01_kernel", outscale=1.0, stamp=None, stflag=" sc1", spin_max=100000):
    a = Asm(); L = name
    osc = struct.unpack("<I", struct.pack("<f", outscale))[0]
    kernel_begin(a, name)
    a(f"""
    s_cmp_ge_u32 s2, 256
    s_cbranch_scc1 L_{L}_done
    s_load_dwordx4 s[4:7], s[0:1], 64      ; c s[4:5], w_mod s[6:7]
    s_load_dwordx2 s[8:9], s[0:1], 96      ; ws
    s_load_dwordx4 s[48:51], s[0:1], 0     ; x s[48:49], k s[50:51]
    s_load_dwordx4 s[52:55], s[0:1], 16    ; v s[52:53], wq s[54:55]
    s_load_dwordx2 s[56:57], s[0:1], 88    ; debug
    """)
    if stamp is not None: stamp_begin(a)
    a(f"""
    s_getpc_b64 s[58:59]
    L_{L}_pc:
    s_add_u32 s58, s58, L_code_begin-L_{L}_pc
    s_addc_u32 s59, s59, 0
    v_and_b32 v1, 7, v0
    v_lshrrev_b32 v2, 3, v0              ; 8w + cl
    v_and_b32 v3, 7, v2                  ; cl
    v_lshrrev_b32 v4, 6, v0              ; w
    v_lshl_add_u32 v5, v4, 4, v3
    s_lshr_b32 s10, s2, 2
    s_and_b32 s11, s2, 3
    s_lshl_b32 s10, s10, 16
    s_lshl_b32 s11, s11, 7
    s_add_u32 s10, s10, s11
    v_lshlrev_b32 v6, 9, v5
    v_lshl_add_u32 v6, v1, 4, v6
    v_add_u32 v6, s10, v6
    s_lshl_b32 s12, s2, 14
    v_lshlrev_b32 v7, 11, v1
    v_lshl_add_u32 v7, v5, 4, v7
    v_add_u32 v7, s12, v7                ; x offset
    v_lshlrev_b32 v8, 5, v2
    s_mov_b32 s24, 196608
    v_mul_lo_u32 v9, v2, s24
    v_lshlrev_b32 v10, 4, v1
    s_lshl_b32 s25, s2, 7
    v_add3_u32 v9, v9, v10, s25
    v_readfirstlane_b32 s40, v4
    s_waitcnt lgkmcnt(0)
    """)
    srd(a, 12, 6, 1024*6144*2)
    srd(a, 16, 4, 2048)
    srd(a, 32, 48, 2048*1024*2)
    srd(a, 20, 8, 6144*4, WS_MOD)
    srd(a, 24, 8, 2048*1024*2, WS_HF)
    a(f"""
    s_mov_b32 s45, 0xffff0000
    s_mov_b32 s46, 0xbfb8aa3b
    s_cmp_eq_u32 s40, 8
    s_cbranch_scc1 L_{L}_ctrl
    """)
    def gemv_loads():
        a("buffer_load_dwordx4 v[44:47], v8, s[16:19], 0 offen")
        a("buffer_load_dwordx4 v[48:51], v8, s[16:19], 0 offen offset:16")
        a("s_mov_b32 s47, 0")
        for i in range(16):
            a(f"buffer_load_dwordx4 v[{64+4*i}:{67+4*i}], v9, s[12:15], s47 offen")
            if i < 15: a("s_add_u32 s47, s47, 12288")
    def gemv_compute(young):
        a(f"s_waitcnt vmcnt({16+young})")
        for j in range(8):
            a(f"v_lshlrev_b32 v{128+2*j}, 16, v{44+j}")
            a(f"v_and_b32 v{129+2*j}, s45, v{44+j}")
        for j in range(16): a(f"v_mul_f32 v{144+j}, s46, v{128+j}")
        for j in range(16): a(f"v_exp_f32 v{144+j}, v{144+j}")
        for j in range(16): a(f"v_add_f32 v{144+j}, 1.0, v{144+j}")
        for j in range(16): a(f"v_rcp_f32 v{144+j}, v{144+j}")
        for j in range(16): a(f"v_mul_f32 v{128+j}, v{128+j}, v{144+j}")
        for j in range(8): a(f"v_cvt_pk_bf16_f32 v{44+j}, v{128+2*j}, v{129+2*j}")
        for j in range(8):
            a(f"v_lshlrev_b32 v{128+2*j}, 16, v{44+j}")
            a(f"v_and_b32 v{129+2*j}, s45, v{44+j}")
        for e in range(8): a(f"v_mov_b32 v{52+e}, 0")
        for i in range(16):
            a(f"s_waitcnt vmcnt({15-i+young})")
            for d in range(4):
                r = 64+4*i+d
                a(f"v_lshlrev_b32 v60, 16, v{r}")
                a(f"v_and_b32 v61, s45, v{r}")
                a(f"v_fmac_f32 v{52+2*d}, v{128+i}, v60")
                a(f"v_fmac_f32 v{53+2*d}, v{128+i}, v61")
        a("s_nop 1")
        for e in range(8): a(f"v_add_f32_dpp v{52+e}, v{52+e}, v{52+e} row_ror:8 row_mask:0xf bank_mask:0xf")
        for sw in ["v_permlane16_swap_b32", "v_permlane32_swap_b32"]:
            for e in range(8): a(f"v_mov_b32 v{144+e}, v{52+e}")
            a("s_nop 1")
            for e in range(8): a(f"{sw} v{52+e}, v{144+e}")
            a("s_nop 1")
            for e in range(8): a(f"v_add_f32 v{52+e}, v{52+e}, v{144+e}")
        a("""
        v_and_b32 v60, 63, v0
        v_lshlrev_b32 v61, 8, v4
        v_lshl_add_u32 v61, v60, 5, v61
        v_cmp_gt_u32 vcc, 8, v60
        s_and_saveexec_b64 s[60:61], vcc
        ds_write_b128 v61, v[52:55] offset:1024
        ds_write_b128 v61, v[56:59] offset:1040
        s_mov_b64 exec, s[60:61]
        """)
    a(f"""
    s_cmp_ge_u32 s2, 32
    s_cbranch_scc1 L_{L}_a_other
    """)
    gemv_loads()
    a("buffer_load_dwordx4 v[12:15], v7, s[32:35], 0 offen")
    a("buffer_load_dwordx4 v[16:19], v7, s[32:35], 0 offen offset:128")
    gemv_compute(2)
    a(f"s_branch L_{L}_a_done")
    a(f"L_{L}_a_other:")
    a("buffer_load_dwordx4 v[12:15], v7, s[32:35], 0 offen")
    a("buffer_load_dwordx4 v[16:19], v7, s[32:35], 0 offen offset:128")
    a(f"L_{L}_a_done:")
    a("s_waitcnt vmcnt(0)")
    for j in range(8):
        a(f"v_lshlrev_b32 v{20+2*j}, 16, v{12+j}")
        a(f"v_and_b32 v{21+2*j}, s45, v{12+j}")
    def reduce_lanes(r, t):
        a("s_nop 1")
        a(f"v_add_f32_dpp v{r}, v{r}, v{r} row_ror:8 row_mask:0xf bank_mask:0xf")
        a(f"v_mov_b32 v{t}, v{r}")
        a("s_nop 1")
        a(f"v_permlane16_swap_b32 v{r}, v{t}")
        a("s_nop 1")
        a(f"v_add_f32 v{r}, v{r}, v{t}")
        a(f"v_mov_b32 v{t}, v{r}")
        a("s_nop 1")
        a(f"v_permlane32_swap_b32 v{r}, v{t}")
        a("s_nop 1")
        a(f"v_add_f32 v{r}, v{r}, v{t}")
    a("v_add_f32 v36, v20, v21")
    a("v_add_f32 v37, v22, v23")
    for j in range(2, 8):
        a(f"v_add_f32 v{36+(j&1)}, v{36+(j&1)}, v{20+2*j}")
        a(f"v_add_f32 v{36+(j&1)}, v{36+(j&1)}, v{21+2*j}")
    a("v_add_f32 v36, v36, v37")
    reduce_lanes(36, 38)
    a("v_mul_f32 v36, 0x3c000000, v36")
    for j in range(16): a(f"v_sub_f32 v{144+j}, v{20+j}, v36")
    a("v_mul_f32 v37, v144, v144")
    a("v_mul_f32 v39, v145, v145")
    for j in range(2, 16, 2):
        a(f"v_fmac_f32 v37, v{144+j}, v{144+j}")
        a(f"v_fmac_f32 v39, v{145+j}, v{145+j}")
    a("v_add_f32 v37, v37, v39")
    reduce_lanes(37, 38)
    a("""
    v_lshlrev_b32 v40, 6, v1
    v_lshl_add_u32 v41, v4, 3, v40
    v_and_b32 v42, 63, v0
    v_cmp_gt_u32 vcc, 8, v42
    s_and_saveexec_b64 s[60:61], vcc
    ds_write_b64 v41, v[36:37]
    s_mov_b64 exec, s[60:61]
    s_waitcnt lgkmcnt(0)
    s_barrier
    """)
    if stamp is not None: stamp_mid(a, 0)
    a(f"""
    s_cmp_lt_u32 s2, 32
    s_cbranch_scc1 L_{L}_b_done
    s_cmp_ge_u32 s2, 96
    s_cbranch_scc1 L_{L}_b_touch
    """)
    gemv_loads()
    a(f"s_branch L_{L}_b_done")
    a(f"L_{L}_b_touch:")
    srd(a, 36, 54, 1024*4096*2)
    a(f"""
    v_and_b32 v44, 63, v0
    v_lshrrev_b32 v45, 4, v44
    v_and_b32 v46, 15, v44
    v_lshlrev_b32 v46, 7, v46
    v_lshl_add_u32 v46, v45, 13, v46
    s_sub_u32 s41, s2, 96
    s_lshr_b32 s41, s41, 3
    s_lshl_b32 s41, s41, 3
    s_add_u32 s41, s41, s40              ; gid
    s_and_b32 s43, s2, 3
    s_lshl_b32 s44, s43, 11
    s_lshl_b32 s42, s41, 15
    s_add_u32 s42, s42, s44
    buffer_load_dword v47, v46, s[36:39], s42 offen
    s_add_u32 s42, s42, {160*32768}
    buffer_load_dword v48, v46, s[36:39], s42 offen
    v_lshlrev_b32 v45, 7, v44            ; lane*128
    s_cmp_ge_u32 s41, 32
    s_cbranch_scc1 L_{L}_t_code
    s_cmp_ge_u32 s41, 16
    s_cselect_b32 s36, s52, s50
    s_cselect_b32 s37, s53, s51
    s_mov_b32 s38, {4*2048*128*2}
    s_and_b32 s42, s41, 15
    s_lshl_b32 s42, s42, 13
    s_lshl_b32 s44, s43, 19
    s_add_u32 s42, s42, s44
    s_add_u32 s42, s42, {1536*256}
    buffer_load_dword v49, v45, s[36:39], s42 offen
    s_branch L_{L}_b_done
    L_{L}_t_code:
    s_cmp_ge_u32 s41, 48
    s_cbranch_scc1 L_{L}_b_done
    s_sub_u32 s42, s41, 32
    s_lshl_b32 s42, s42, 13
    v_add_u32 v45, s42, v45
    v_min_u32 v45, L_code_end-L_code_begin, v45
    global_load_dword v49, v45, s[58:59]
    L_{L}_b_done:
    ds_read_b128 v[128:131], v40
    ds_read_b128 v[132:135], v40 offset:16
    ds_read_b128 v[136:139], v40 offset:32
    ds_read_b128 v[140:143], v40 offset:48
    s_waitcnt lgkmcnt(0)
    """)
    a("v_add_f32 v36, v128, v130")
    for j in range(2, 8): a(f"v_add_f32 v36, v36, v{128+2*j}")
    a("v_mul_f32 v36, 0x3e000000, v36")
    a("v_add_f32 v37, v129, v131")
    for j in range(2, 8): a(f"v_add_f32 v37, v37, v{129+2*j}")
    for j in range(8): a(f"v_sub_f32 v{128+2*j}, v{128+2*j}, v36")
    a("v_mul_f32 v38, v128, v128")
    for j in range(1, 8): a(f"v_fmac_f32 v38, v{128+2*j}, v{128+2*j}")
    a(f"""
    v_mov_b32 v39, 0x43000000
    v_fmac_f32 v37, v39, v38
    v_mov_b32 v39, 0x3727c5ac
    v_fmac_f32 v39, 0x3a800000, v37
    v_rsq_f32 v39, v39
    s_nop 0
    """)
    for j in range(16): a(f"v_sub_f32 v{20+j}, v{20+j}, v36")
    for j in range(16): a(f"v_mul_f32 v{20+j}, v{20+j}, v39")
    a("v_lshlrev_b32 v62, 5, v5            ; chunk0*32")
    a("s_barrier")
    if stamp is not None: stamp_mid(a, 1)
    a("""
    ds_read_b128 v[128:131], v62 offset:4096
    ds_read_b128 v[132:135], v62 offset:4112
    ds_read_b128 v[136:139], v62 offset:4352
    ds_read_b128 v[140:143], v62 offset:4368
    ds_read_b128 v[144:147], v62 offset:8192
    ds_read_b128 v[148:151], v62 offset:8208
    ds_read_b128 v[152:155], v62 offset:8448
    ds_read_b128 v[156:159], v62 offset:8464
    s_waitcnt lgkmcnt(0)
    """)
    for j in range(16): a(f"v_add_f32 v{144+j}, 1.0, v{144+j}")
    for j in range(16): a(f"v_fmac_f32 v{128+j}, v{20+j}, v{144+j}")
    if outscale != 1.0:
        a(f"s_mov_b32 s28, {osc}")
        for j in range(16): a(f"v_mul_f32 v{128+j}, s28, v{128+j}")
    for j in range(8): a(f"v_cvt_pk_bf16_f32 v{12+j}, v{128+2*j}, v{129+2*j}")
    a(f"""
    v_add_u32 v7, 4096, v6
    buffer_store_dwordx4 v[12:15], v6, s[24:27], 0 offen{stflag}
    buffer_store_dwordx4 v[16:19], v7, s[24:27], 0 offen{stflag}
    """)
    if stamp is not None: stamp_mid(a, 2)
    a(f"""
    s_cmp_lt_u32 s2, 32
    s_cbranch_scc1 L_{L}_c_done
    s_cmp_ge_u32 s2, 96
    s_cbranch_scc1 L_{L}_c_done
    """)
    gemv_compute(2)
    a(f"""
    L_{L}_c_done:
    s_waitcnt lgkmcnt(0)
    s_barrier
    """)
    if stamp is not None:
        stamp_mid(a, 3); a("s_mov_b32 s74, 0"); stamp_end2(a, stamp, 8)
    def finalize(flag):
        for j in range(8): a(f"ds_read_b32 v{80+j}, v43 offset:{1024+256*j}")
        a(f"""
        s_lshl_b32 s41, s2, 8
        v_add_u32 v45, s41, v43
        s_waitcnt lgkmcnt(0)
        v_add_f32 v80, v80, v81
        v_add_f32 v82, v82, v83
        v_add_f32 v84, v84, v85
        v_add_f32 v86, v86, v87
        v_add_f32 v80, v80, v82
        v_add_f32 v84, v84, v86
        v_add_f32 v80, v80, v84
        buffer_store_dword v80, v45, s[20:23], 0 offen{flag}
        """)
    a(f"""
    s_endpgm
    L_{L}_ctrl:
    v_and_b32 v42, 63, v0                ; lane
    v_lshlrev_b32 v43, 2, v42            ; lane*4
    s_barrier
    """)
    if stamp is not None: stamp_mid(a, 0)
    a(f"""
    s_cmp_ge_u32 s2, 32
    s_cbranch_scc1 L_{L}_nopub
    """)
    finalize(" sc1")
    a(f"""
    s_waitcnt vmcnt(0)
    s_mov_b64 s[60:61], exec
    s_mov_b64 exec, 1
    s_lshl_b32 s41, s2, 2
    v_mov_b32 v45, s41
    v_mov_b32 v44, 1
    global_atomic_add v45, v44, s[56:57]
    s_mov_b64 exec, s[60:61]
    L_{L}_nopub:
    """)
    if stamp is not None: stamp_mid(a, 1)
    a(f"""
    s_mov_b32 s41, 0
    v_cmp_le_u32 s[62:63], 32, v42
    L_{L}_poll:
    global_load_dword v44, v43, s[56:57] sc1
    s_waitcnt vmcnt(0)
    v_cmp_le_u32 vcc, 1, v44
    s_nop 1
    s_or_b64 vcc, vcc, s[62:63]
    s_cmp_eq_u64 vcc, -1
    s_cbranch_scc1 L_{L}_polled
    s_add_u32 s41, s41, 1
    s_cmp_lt_u32 s41, {spin_max}
    s_cbranch_scc0 L_{L}_polled
    s_sleep 1
    s_branch L_{L}_poll
    L_{L}_polled:
    """)
    if stamp is not None: stamp_mid(a, 2); a("s_mov_b32 s74, s41")
    a(f"""
    v_lshlrev_b32 v46, 4, v42            ; lane*16
    s_mov_b32 s41, 0
    """)
    for j in range(8):
        a(f"buffer_load_dwordx4 v[{48+4*j}:{51+4*j}], v46, s[20:23], s41 offen sc1")
        a("s_add_u32 s41, s41, 1024")
    for j in range(8):
        a(f"s_waitcnt vmcnt({7-j})")
        a(f"ds_write_b128 v46, v[{48+4*j}:{51+4*j}] offset:{4096+1024*j}")
    if stamp is not None:
        a("s_waitcnt lgkmcnt(0)"); stamp_mid(a, 3)
        a("v_mov_b32 v0, 0")
        stamp_end2(a, 1, 8)
    a(f"""
    s_waitcnt lgkmcnt(0)
    s_barrier
    s_barrier
    s_cmp_lt_u32 s2, 32
    s_cbranch_scc1 L_{L}_done
    s_cmp_ge_u32 s2, 96
    s_cbranch_scc1 L_{L}_done
    """)
    finalize("")
    a(f"""
    L_{L}_done:
    s_endpgm
    L_code_begin:
    s_endpgm
    """)
    return (name, (256,1,1), (576,1,1), 4096+8192), a.text(), kernel_desc(name, 160, sgpr=102)
```

```python
from asmlib import *
from gen_small import *
from gen_g256 import WS_P1, WS_P2, PSTRIDE

def common_head(a, L, stamp):
    a(f"""
    s_cmp_ge_u32 s2, 256
    s_cbranch_scc1 L_{L}_done
    s_load_dwordx2 s[4:5], s[0:1], 0
    s_load_dwordx2 s[6:7], s[0:1], 80
    s_load_dwordx2 s[8:9], s[0:1], 96
    """)
    if stamp is not None: stamp_begin(a)
    a(f"""
    v_and_b32 v1, 7, v0
    v_lshrrev_b32 v2, 3, v0              ; 8w + cl
    v_and_b32 v3, 7, v2                  ; cl
    v_lshrrev_b32 v4, 6, v0              ; w
    v_lshl_add_u32 v5, v4, 4, v3
    s_lshr_b32 s10, s2, 2
    s_and_b32 s11, s2, 3
    s_lshl_b32 s10, s10, 16
    s_lshl_b32 s11, s11, 7
    s_add_u32 s10, s10, s11
    v_lshlrev_b32 v6, 9, v5
    v_lshl_add_u32 v6, v1, 4, v6
    v_add_u32 v6, s10, v6
    v_add_u32 v8, 4096, v6
    v_lshlrev_b32 v9, 5, v5
    """)

def load_partials(a, off):
    srd(a, 24, 8, 3*PSTRIDE+2048*1024*2, off)
    a(f"s_mov_b32 s28, {PSTRIDE}\ns_mov_b32 s29, {2*PSTRIDE}\ns_mov_b32 s30, {3*PSTRIDE}")
    for q, so in enumerate(["0", "s28", "s29", "s30"]):
        a(f"buffer_load_dwordx4 v[{100+8*q}:{103+8*q}], v6, s[24:27], {so} offen")
        a(f"buffer_load_dwordx4 v[{104+8*q}:{107+8*q}], v8, s[24:27], {so} offen")

def load_vec(a, dst, idx, sreg):
    a(f"s_mov_b32 s{sreg}, {idx*4096}")
    a(f"buffer_load_dwordx4 v[{dst}:{dst+3}], v9, s[16:19], s{sreg} offen")
    a(f"buffer_load_dwordx4 v[{dst+4}:{dst+7}], v9, s[16:19], s{sreg} offen offset:16")
    a(f"buffer_load_dwordx4 v[{dst+8}:{dst+11}], v9, s[16:19], s{sreg} offen offset:256")
    a(f"buffer_load_dwordx4 v[{dst+12}:{dst+15}], v9, s[16:19], s{sreg} offen offset:272")

def sum_partials_and_residual(a, res, gate, out):
    for j in range(8):
        a(f"v_lshlrev_b32 v{84+2*j}, 16, v{100+j}")
        a(f"v_and_b32 v{85+2*j}, s27_, v{100+j}".replace("s27_", "s33"))
    for q in range(1, 4):
        for j in range(8):
            a(f"v_lshlrev_b32 v40, 16, v{100+8*q+j}")
            a(f"v_and_b32 v41, s33, v{100+8*q+j}")
            a(f"v_add_f32 v{84+2*j}, v{84+2*j}, v40")
            a(f"v_add_f32 v{85+2*j}, v{85+2*j}, v41")
    for j in range(8):
        a(f"v_lshlrev_b32 v{out+2*j}, 16, v{res+j}")
        a(f"v_and_b32 v{out+2*j+1}, s33, v{res+j}")
    for j in range(16): a(f"v_fmac_f32 v{out+j}, v{gate+j}, v{84+j}")

def gen_ln2p(name="ln2_kernel", stamp=None, stflag="", xf=False, parts=False, touch_w2=False):
    a = Asm(); L = name
    kernel_begin(a, name)
    a("s_load_dwordx2 s[52:53], s[0:1], 56")
    common_head(a, L, stamp)
    if not xf:
        a("""
        s_lshl_b32 s12, s2, 14
        v_lshlrev_b32 v7, 11, v1
        v_lshl_add_u32 v7, v5, 4, v7
        v_add_u32 v7, s12, v7
        """)
    a("s_waitcnt lgkmcnt(0)")
    if parts:
        srd(a, 16, 8, 4*4096*4, WS_PB)
        modpart_issue(a, 160, 0, 1024, 156, 16384)
        modpart_issue(a, 176, 2048, 2048, 156, 16384)
    else:
        srd(a, 16, 8, 6144*4, WS_MOD)
        modvec_issue(a, 148, 2, 3, 156)
        modvec_issue(a, 152, 4, 4, 156)
    load_partials(a, WS_P1)
    if xf:
        srd(a, 12, 8, 2048*1024*2, WS_XF)
        a("buffer_load_dwordx4 v[12:15], v6, s[12:15], 0 offen")
        a("buffer_load_dwordx4 v[16:19], v8, s[12:15], 0 offen")
    else:
        srd(a, 12, 4, 2048*1024*2)
        a("buffer_load_dwordx4 v[12:15], v7, s[12:15], 0 offen")
        a("buffer_load_dwordx4 v[16:19], v7, s[12:15], 0 offen offset:128")
    ntouch = 0
    if touch_w2:
        srd(a, 48, 52, 3584*1024*2)
        a("""
        v_readfirstlane_b32 s54, v4
        s_lshl_b32 s55, s2, 3
        s_add_u32 s55, s55, s54
        s_lshl_b32 s55, s55, 13
        v_and_b32 v159, 63, v0
        v_lshlrev_b32 v159, 7, v159
        buffer_load_dword v155, v159, s[48:51], s55 offen
        """)
        ntouch = 1
    srd(a, 20, 8, 2048*1024*2, WS_H2F)
    srd(a, 44, 8, 2048*1024*2, WS_X1F)
    a("s_mov_b32 s33, 0xffff0000")
    if stamp is not None: stamp_mid(a, 0)
    a(f"s_waitcnt vmcnt({10+ntouch})")
    if parts:
        modpart_sum(a, 160); modpart_sum(a, 176)
        modvec_stage(a, 160, 1024, 156)
        modvec_stage(a, 176, 1024+8192, 157)
    else:
        modvec_stage(a, 148, 1024, 156)
        modvec_stage(a, 152, 1024+8192, 157)
    a("s_waitcnt lgkmcnt(0)")
    modvec_read(a, 132, 0, 1024, 156)
    modvec_read(a, 68, 1, 1024, 157)
    modvec_read(a, 52, 0, 1024+8192, 158)
    a(f"s_waitcnt vmcnt({ntouch}) lgkmcnt(0)")
    if stamp is not None: stamp_mid(a, 1)
    sum_partials_and_residual(a, 12, 132, 20)
    for j in range(8): a(f"v_cvt_pk_bf16_f32 v{12+j}, v{20+2*j}, v{21+2*j}")
    a(f"buffer_store_dwordx4 v[12:15], v6, s[44:47], 0 offen{stflag}")
    a(f"buffer_store_dwordx4 v[16:19], v8, s[44:47], 0 offen{stflag}")
    def reduce_lanes(r, t):
        a("s_nop 1")
        a(f"v_add_f32_dpp v{r}, v{r}, v{r} row_ror:8 row_mask:0xf bank_mask:0xf")
        a(f"v_mov_b32 v{t}, v{r}")
        a("s_nop 1")
        a(f"v_permlane16_swap_b32 v{r}, v{t}")
        a("s_nop 1")
        a(f"v_add_f32 v{r}, v{r}, v{t}")
        a(f"v_mov_b32 v{t}, v{r}")
        a("s_nop 1")
        a(f"v_permlane32_swap_b32 v{r}, v{t}")
        a("s_nop 1")
        a(f"v_add_f32 v{r}, v{r}, v{t}")
    a("v_add_f32 v36, v20, v21")
    a("v_add_f32 v37, v22, v23")
    for j in range(2, 8):
        a(f"v_add_f32 v{36+(j&1)}, v{36+(j&1)}, v{20+2*j}")
        a(f"v_add_f32 v{36+(j&1)}, v{36+(j&1)}, v{21+2*j}")
    a("v_add_f32 v36, v36, v37")
    reduce_lanes(36, 38)
    a("v_mul_f32 v36, 0x3c000000, v36")
    for j in range(16): a(f"v_sub_f32 v{84+j}, v{20+j}, v36")
    a("v_mul_f32 v37, v84, v84")
    a("v_mul_f32 v39, v85, v85")
    for j in range(2, 16, 2):
        a(f"v_fmac_f32 v37, v{84+j}, v{84+j}")
        a(f"v_fmac_f32 v39, v{85+j}, v{85+j}")
    a("v_add_f32 v37, v37, v39")
    reduce_lanes(37, 38)
    a("""
    v_lshlrev_b32 v40, 6, v1
    v_lshl_add_u32 v41, v4, 3, v40
    v_and_b32 v42, 63, v0
    v_cmp_gt_u32 vcc, 8, v42
    s_and_saveexec_b64 s[30:31], vcc
    ds_write_b64 v41, v[36:37]
    s_mov_b64 exec, s[30:31]
    s_waitcnt lgkmcnt(0)
    """)
    if stamp is not None: stamp_mid(a, 2)
    a("""
    s_barrier
    ds_read_b128 v[84:87], v40
    ds_read_b128 v[88:91], v40 offset:16
    ds_read_b128 v[92:95], v40 offset:32
    ds_read_b128 v[96:99], v40 offset:48
    s_waitcnt lgkmcnt(0)
    """)
    a("v_add_f32 v36, v84, v86")
    for j in range(2, 8): a(f"v_add_f32 v36, v36, v{84+2*j}")
    a("v_mul_f32 v36, 0x3e000000, v36")
    a("v_add_f32 v37, v85, v87")
    for j in range(2, 8): a(f"v_add_f32 v37, v37, v{85+2*j}")
    for j in range(8): a(f"v_sub_f32 v{84+2*j}, v{84+2*j}, v36")
    a("v_mul_f32 v38, v84, v84")
    for j in range(1, 8): a(f"v_fmac_f32 v38, v{84+2*j}, v{84+2*j}")
    a(f"""
    v_mov_b32 v39, 0x43000000
    v_fmac_f32 v37, v39, v38
    v_mov_b32 v39, 0x3727c5ac
    v_fmac_f32 v39, 0x3a800000, v37
    v_rsq_f32 v39, v39
    s_nop 0
    """)
    for j in range(16): a(f"v_sub_f32 v{20+j}, v{20+j}, v36")
    for j in range(16): a(f"v_add_f32 v{52+j}, 1.0, v{52+j}")
    for j in range(16): a(f"v_mul_f32 v{20+j}, v{20+j}, v39")
    for j in range(16): a(f"v_fmac_f32 v{68+j}, v{20+j}, v{52+j}")
    for j in range(8): a(f"v_cvt_pk_bf16_f32 v{12+j}, v{68+2*j}, v{69+2*j}")
    a(f"""
    buffer_store_dwordx4 v[12:15], v6, s[20:23], 0 offen{stflag}
    buffer_store_dwordx4 v[16:19], v8, s[20:23], 0 offen{stflag}
    """)
    if stamp is not None:
        stamp_mid(a, 3)
        a("s_mov_b32 s74, 0")
        stamp_end2(a, stamp, 8)
    a(f"L_{L}_done:\ns_endpgm")
    return (name, (256,1,1), (512,1,1), 1024+16384), a.text(), kernel_desc(name, 192, sgpr=102)

def gen_redk(name="red_kernel", stamp=None, parts=False):
    a = Asm(); L = name
    kernel_begin(a, name); common_head(a, L, stamp)
    a("s_waitcnt lgkmcnt(0)")
    if parts:
        srd(a, 16, 8, 4*4096*4, WS_PB)
        modpart_issue(a, 160, 3072, 3072, 156, 16384)
    else:
        srd(a, 16, 8, 6144*4, WS_MOD)
        modvec_issue(a, 148, 5, 5, 156)
    load_partials(a, WS_P2)
    srd(a, 12, 8, 2048*1024*2, WS_X1F)
    a("buffer_load_dwordx4 v[12:15], v6, s[12:15], 0 offen")
    a("buffer_load_dwordx4 v[16:19], v8, s[12:15], 0 offen")
    srd(a, 20, 6, 2048*1024*2)
    a("""
    v_xor_b32 v42, v3, v1                ; cl ^ tk
    v_lshlrev_b32 v42, 4, v42
    v_lshl_add_u32 v42, v1, 8, v42
    v_lshl_add_u32 v42, v4, 11, v42      ; write addr (+128 for chunk1)
    v_and_b32 v43, 63, v0
    v_lshrrev_b32 v44, 3, v43            ; tk'
    v_and_b32 v45, 7, v43                ; c'
    v_xor_b32 v46, v45, v44
    v_lshlrev_b32 v46, 4, v46
    v_lshl_add_u32 v46, v44, 8, v46
    v_lshl_add_u32 v46, v4, 11, v46      ; read addr
    s_lshl_b32 s12_, s2, 14
    v_lshlrev_b32 v47, 11, v44
    v_lshl_add_u32 v47, v45, 4, v47
    v_lshl_add_u32 v47, v4, 8, v47       ; + 16w chunks*16
    v_add_u32 v47, s12_, v47             ; out offset
    s_mov_b32 s33, 0xffff0000
    """.replace("s12_", "s37"))
    if stamp is not None: stamp_mid(a, 0)
    a("s_waitcnt vmcnt(10)")
    if parts:
        modpart_sum(a, 160); modvec_stage(a, 160, 16384, 156)
    else:
        modvec_stage(a, 148, 16384, 156)
    a("s_waitcnt lgkmcnt(0)")
    modvec_read(a, 132, 0, 16384, 156)
    a("s_waitcnt vmcnt(0) lgkmcnt(0)")
    if stamp is not None: stamp_mid(a, 1)
    sum_partials_and_residual(a, 12, 132, 20)
    for j in range(8): a(f"v_cvt_pk_bf16_f32 v{12+j}, v{20+2*j}, v{21+2*j}")
    a("""
    ds_write_b128 v42, v[12:15]
    ds_write_b128 v42, v[16:19] offset:128
    s_waitcnt lgkmcnt(0)
    ds_read_b128 v[20:23], v46
    ds_read_b128 v[24:27], v46 offset:128
    s_waitcnt lgkmcnt(1)
    buffer_store_dwordx4 v[20:23], v47, s[20:23], 0 offen
    s_waitcnt lgkmcnt(0)
    buffer_store_dwordx4 v[24:27], v47, s[20:23], 0 offen offset:128
    """)
    if stamp is not None:
        stamp_mid(a, 2)
        a("s_mov_b32 s73, 0\ns_mov_b32 s74, 0")
        stamp_end2(a, stamp, 8)
    a(f"L_{L}_done:\ns_endpgm")
    return (name, (256,1,1), (512,1,1), 16384+8192), a.text(), kernel_desc(name, 176, sgpr=102)
```

```python
from asmlib import *

WS_MOD  = 0x0000000
WS_HF   = 0x0100000
WS_OF   = 0x1000000
WS_X1F  = 0x2000000
import os
REUSE = os.environ.get('NOREUSE', '0') != '1'
WS_H2F  = WS_HF if REUSE else 0x2400000
WS_HIDF = WS_OF if REUSE else 0x3000000
WS_WLIN = 0x4000000

def srd(a, r, base, nbytes, off=0):
    if off:
        a(f"s_add_u32 s{r}, s{base}, {off}")
        a(f"s_addc_u32 s{r+1}, s{base+1}, 0")
    else:
        a(f"s_mov_b32 s{r}, s{base}")
        a(f"s_mov_b32 s{r+1}, s{base+1}")
    a(f"s_mov_b32 s{r+2}, {nbytes}")
    a(f"s_mov_b32 s{r+3}, 0x20000")

def gen_k0(name="k0_kernel", prefetch=None, stamp=None, pfwg=True, code_bytes=131072, stride=128, pf_wq=False):
    a = Asm()
    kernel_begin(a, name)
    a(f"""
    s_cmp_ge_u32 s2, 96
    s_cbranch_scc1 {"L_k0_pf" if pfwg else "L_k0_done"}
    s_load_dwordx4 s[4:7], s[0:1], 64
    s_load_dwordx2 s[8:9], s[0:1], 96
    """)
    if stamp is not None: stamp_begin(a)
    a(f"""
    v_lshrrev_b32 v1, 3, v0              ; 8w+g
    v_and_b32 v2, 7, v0                  ; cc
    v_lshlrev_b32 v3, 5, v1
    s_mov_b32 s24, 196608                ; 16*12288
    v_mul_lo_u32 v4, v1, s24
    v_lshlrev_b32 v2, 4, v2
    s_lshl_b32 s25, s2, 7
    v_add3_u32 v4, v4, v2, s25
    s_waitcnt lgkmcnt(0)
    """)
    srd(a, 12, 4, 2048)
    srd(a, 16, 6, 1024*6144*2)
    srd(a, 20, 8, 6144*4, WS_MOD)
    a("""
    buffer_load_dwordx4 v[8:11], v3, s[12:15], 0 offen
    buffer_load_dwordx4 v[12:15], v3, s[12:15], 0 offen offset:16
    s_mov_b32 s26, 0
    """)
    for i in range(16):
        a(f"buffer_load_dwordx4 v[{64+4*i}:{67+4*i}], v4, s[16:19], s26 offen")
        if i < 15: a(f"s_add_u32 s26, s26, 12288")
    if prefetch:
        prefetch(a)
        npf = prefetch.n
    else:
        npf = 0
    a(f"""
    s_mov_b32 s27, 0xffff0000
    s_mov_b32 s28, 0xbfb8aa3b            ; -log2(e)
    s_waitcnt vmcnt({16+npf})
    """)
    for j in range(8):
        a(f"v_lshlrev_b32 v{16+2*j}, 16, v{8+j}")
        a(f"v_and_b32 v{17+2*j}, s27, v{8+j}")
    for j in range(16): a(f"v_mul_f32 v{32+j}, s28, v{16+j}")
    for j in range(16): a(f"v_exp_f32 v{32+j}, v{32+j}")
    for j in range(16): a(f"v_add_f32 v{32+j}, 1.0, v{32+j}")
    for j in range(16): a(f"v_rcp_f32 v{32+j}, v{32+j}")
    for j in range(16): a(f"v_mul_f32 v{16+j}, v{16+j}, v{32+j}")
    for j in range(8): a(f"v_cvt_pk_bf16_f32 v{8+j}, v{16+2*j}, v{17+2*j}")
    for j in range(8):
        a(f"v_lshlrev_b32 v{16+2*j}, 16, v{8+j}")
        a(f"v_and_b32 v{17+2*j}, s27, v{8+j}")
    for e in range(8): a(f"v_mov_b32 v{32+e}, 0")
    for i in range(16):
        a(f"s_waitcnt vmcnt({15-i+npf})")
        for d in range(4):
            r = 64+4*i+d
            a(f"v_lshlrev_b32 v40, 16, v{r}")
            a(f"v_and_b32 v41, s27, v{r}")
            a(f"v_fmac_f32 v{32+2*d}, v{16+i}, v40")
            a(f"v_fmac_f32 v{33+2*d}, v{16+i}, v41")
    a("s_nop 1")
    for e in range(8): a(f"v_add_f32_dpp v{32+e}, v{32+e}, v{32+e} row_ror:8 row_mask:0xf bank_mask:0xf")
    for e in range(8): a(f"v_mov_b32 v{40+e}, v{32+e}")
    a("s_nop 1")
    for e in range(8): a(f"v_permlane16_swap_b32 v{32+e}, v{40+e}")
    a("s_nop 1")
    for e in range(8): a(f"v_add_f32 v{32+e}, v{32+e}, v{40+e}")
    for e in range(8): a(f"v_mov_b32 v{40+e}, v{32+e}")
    a("s_nop 1")
    for e in range(8): a(f"v_permlane32_swap_b32 v{32+e}, v{40+e}")
    a("s_nop 1")
    for e in range(8): a(f"v_add_f32 v{32+e}, v{32+e}, v{40+e}")
    a("""
    v_and_b32 v5, 63, v0
    v_lshrrev_b32 v6, 6, v0              ; wave
    v_lshlrev_b32 v7, 8, v6              ; w*256
    v_lshl_add_u32 v7, v5, 5, v7
    v_cmp_gt_u32 vcc, 8, v5
    s_and_saveexec_b64 s[30:31], vcc
    ds_write_b128 v7, v[32:35]
    ds_write_b128 v7, v[36:39] offset:16
    s_mov_b64 exec, s[30:31]
    s_waitcnt lgkmcnt(0)
    s_barrier
    v_cmp_gt_u32 vcc, 64, v0
    s_and_saveexec_b64 s[30:31], vcc
    s_cbranch_execz L_k0_end
    v_lshlrev_b32 v7, 2, v0
    """)
    for j in range(8): a(f"ds_read_b32 v{16+j}, v7 offset:{256*j}")
    a("""
    s_lshl_b32 s25, s2, 8
    v_add_u32 v6, s25, v7
    s_waitcnt lgkmcnt(0)
    v_add_f32 v16, v16, v17
    v_add_f32 v18, v18, v19
    v_add_f32 v20, v20, v21
    v_add_f32 v22, v22, v23
    v_add_f32 v16, v16, v18
    v_add_f32 v20, v20, v22
    v_add_f32 v16, v16, v20
    buffer_store_dword v16, v6, s[20:23], 0 offen
    L_k0_end:
    s_mov_b64 exec, s[30:31]
    """)
    if stamp is not None: stamp_end2(a, stamp, 8)
    a("""
    L_k0_done:
    s_endpgm
    """)
    if pfwg:
        a(f"""
        L_k0_pf:
        s_cmp_ge_u32 s2, 256
        s_cbranch_scc1 L_k0_done
        s_load_dwordx4 s[4:7], s[0:1], 0       ; x, k
        s_load_dwordx4 s[8:11], s[0:1], 16     ; v, wq
        s_getpc_b64 s[28:29]
        L_k0_pc:
        s_add_u32 s28, s28, L_code_begin-L_k0_pc
        s_addc_u32 s29, s29, 0
        v_lshrrev_b32 v2, 6, v0
        v_and_b32 v1, 63, v0
        v_readfirstlane_b32 s20, v2
        s_and_b32 s21, s2, 7                   ; xcd
        s_sub_u32 s22, s2, 96
        s_lshr_b32 s22, s22, 3
        s_lshl_b32 s22, s22, 3
        s_add_u32 s22, s22, s20                ; gid 0..159
        v_lshrrev_b32 v3, 4, v1                ; l>>4
        v_and_b32 v4, 15, v1
        v_lshlrev_b32 v4, 7, v4                ; line*128
        v_lshlrev_b32 v5, 7, v1                ; l*128
        s_waitcnt lgkmcnt(0)
        """)
        srd(a, 12, 4, 2048*1024*2)
        srd(a, 16, 10, 1024*4096*2)
        a(f"""
        s_cmp_ge_u32 s22, 64
        s_cbranch_scc1 L_k0_pf_kv
        s_lshr_b32 s23, s22, 1
        s_lshl_b32 s23, s23, 3
        s_add_u32 s23, s23, s21
        s_lshl_b32 s23, s23, 3
        s_and_b32 s24, s22, 1
        s_lshl_b32 s24, s24, 2
        s_add_u32 s23, s23, s24
        s_lshl_b32 s23, s23, 11
        v_lshl_add_u32 v6, v3, 11, v4
        buffer_load_dword v8, v6, s[12:15], s23 offen
        s_branch L_k0_pf_wq
        L_k0_pf_kv:
        s_cmp_ge_u32 s22, 96
        s_cbranch_scc1 L_k0_pf_code
        s_sub_u32 s23, s22, 64                 ; 0..31 : 0..15 K, 16..31 V
        s_cmp_ge_u32 s23, 16
        s_cselect_b32 s12, s8, s6
        s_cselect_b32 s13, s9, s7
        s_mov_b32 s14, {4*2048*128*2}
        s_and_b32 s23, s23, 15
        s_lshl_b32 s23, s23, 13
        s_and_b32 s24, s21, 3
        s_lshl_b32 s24, s24, 19
        s_add_u32 s23, s23, s24
        s_add_u32 s23, s23, {1536*256}
        buffer_load_dword v8, v5, s[12:15], s23 offen
        s_branch L_k0_pf_wq
        L_k0_pf_code:
        s_cmp_ge_u32 s22, {96+code_bytes//8192}
        s_cbranch_scc1 L_k0_pf_wq
        s_sub_u32 s23, s22, 96
        s_lshl_b32 s23, s23, 13
        v_add_u32 v6, s23, v5
        v_min_u32 v6, L_code_end-L_code_begin, v6
        global_load_dword v8, v6, s[28:29]
        L_k0_pf_wq:
        s_and_b32 s24, s21, 3
        s_lshl_b32 s24, s24, 11                ; g*2048
        v_lshl_add_u32 v6, v3, 13, v4
        s_lshl_b32 s23, s22, 15
        s_add_u32 s23, s23, s24
        """)
        if pf_wq:
            a(f"""
            buffer_load_dword v9, v6, s[16:19], s23 offen
            s_add_u32 s23, s23, {160*32768}
            buffer_load_dword v10, v6, s[16:19], s23 offen
            """)
        a(f"""
        s_waitcnt vmcnt(0)
        s_endpgm
        L_code_begin:
        s_endpgm
        """)
    return (name, (256 if pfwg else 96,1,1), (512,1,1), 2048), a.text(), kernel_desc(name, 128, sgpr=102)

def gen_ln(name, src, dst_off, shift_idx, scale_idx, outscale, stamp=None, pf_wq=False, xf=False, stflag="", parts=False):
    a = Asm()
    L = name
    kernel_begin(a, name)
    import struct
    osc = struct.unpack("<I", struct.pack("<f", outscale))[0]
    a(f"""
    s_cmp_ge_u32 s2, 256
    s_cbranch_scc1 L_{L}_done
    s_load_dwordx2 s[4:5], s[0:1], 0
    s_load_dwordx2 s[8:9], s[0:1], 96
    """)
    if stamp is not None: stamp_begin(a)
    a(f"""
    v_and_b32 v1, 7, v0
    v_lshrrev_b32 v2, 3, v0              ; 8w + cl
    v_and_b32 v3, 7, v2                  ; cl
    v_lshrrev_b32 v4, 6, v0              ; w
    v_lshl_add_u32 v5, v4, 4, v3
    s_lshr_b32 s10, s2, 2
    s_and_b32 s11, s2, 3
    s_lshl_b32 s10, s10, 16
    s_lshl_b32 s11, s11, 7
    s_add_u32 s10, s10, s11
    v_lshlrev_b32 v6, 9, v5
    v_lshl_add_u32 v6, v1, 4, v6
    v_add_u32 v6, s10, v6
    v_lshlrev_b32 v9, 5, v5
    """)
    if src == 'x':
        a("""
        s_lshl_b32 s12, s2, 14
        v_lshlrev_b32 v7, 11, v1
        v_lshl_add_u32 v7, v5, 4, v7
        v_add_u32 v7, s12, v7
        """)
    a("s_waitcnt lgkmcnt(0)")
    if src == 'x':
        srd(a, 12, 4, 2048*1024*2)
        a("buffer_load_dwordx4 v[12:15], v7, s[12:15], 0 offen")
        a("buffer_load_dwordx4 v[16:19], v7, s[12:15], 0 offen offset:128")
    else:
        srd(a, 12, 8, 2048*1024*2, src[1])
        a("v_add_u32 v7, 4096, v6")
        a("buffer_load_dwordx4 v[12:15], v6, s[12:15], 0 offen")
        a("buffer_load_dwordx4 v[16:19], v7, s[12:15], 0 offen")
    if pf_wq:
        a(f"""
        s_load_dwordx2 s[34:35], s[0:1], 24
        v_and_b32 v44, 63, v0
        v_lshrrev_b32 v45, 4, v44
        v_and_b32 v44, 15, v44
        v_lshlrev_b32 v44, 7, v44
        v_lshl_add_u32 v44, v45, 13, v44
        v_readfirstlane_b32 s36, v4
        s_lshr_b32 s37, s2, 3
        s_lshl_b32 s37, s37, 3
        s_add_u32 s37, s37, s36
        s_lshl_b32 s37, s37, 15
        s_and_b32 s38, s2, 3
        s_lshl_b32 s38, s38, 11
        s_add_u32 s37, s37, s38
        s_waitcnt lgkmcnt(0)
        """)
        srd(a, 40, 34, 1024*4096*2)
    if parts: srd(a, 16, 8, 4*2048*4, WS_PA)
    else: srd(a, 16, 8, 6144*4, WS_MOD)
    srd(a, 20, 8, 2048*1024*2, dst_off)
    if parts: modpart_issue(a, 100, 0, 1024, 116, 8192)
    else: modvec_issue(a, 100, shift_idx, scale_idx, 104)
    if pf_wq: a("buffer_load_dword v46, v44, s[40:43], s37 offen")
    if xf:
        srd(a, 28, 8, 2048*1024*2, WS_XF)
    a("s_mov_b32 s27, 0xffff0000")
    a(f"s_waitcnt vmcnt({(1 if pf_wq else 0)+(4 if parts else 1)})")
    if xf:
        a(f"v_add_u32 v47, 4096, v6")
        a(f"buffer_store_dwordx4 v[12:15], v6, s[28:31], 0 offen{stflag}")
        a(f"buffer_store_dwordx4 v[16:19], v47, s[28:31], 0 offen{stflag}")
    for j in range(8):
        a(f"v_lshlrev_b32 v{20+2*j}, 16, v{12+j}")
        a(f"v_and_b32 v{21+2*j}, s27, v{12+j}")
    def reduce_lanes(r, t):
        a("s_nop 1")
        a(f"v_add_f32_dpp v{r}, v{r}, v{r} row_ror:8 row_mask:0xf bank_mask:0xf")
        a(f"v_mov_b32 v{t}, v{r}")
        a("s_nop 1")
        a(f"v_permlane16_swap_b32 v{r}, v{t}")
        a("s_nop 1")
        a(f"v_add_f32 v{r}, v{r}, v{t}")
        a(f"v_mov_b32 v{t}, v{r}")
        a("s_nop 1")
        a(f"v_permlane32_swap_b32 v{r}, v{t}")
        a("s_nop 1")
        a(f"v_add_f32 v{r}, v{r}, v{t}")
    a("v_add_f32 v36, v20, v21")
    a("v_add_f32 v37, v22, v23")
    for j in range(2, 8):
        a(f"v_add_f32 v{36+(j&1)}, v{36+(j&1)}, v{20+2*j}")
        a(f"v_add_f32 v{36+(j&1)}, v{36+(j&1)}, v{21+2*j}")
    a("v_add_f32 v36, v36, v37")
    reduce_lanes(36, 38)
    a("v_mul_f32 v36, 0x3c000000, v36")
    for j in range(16): a(f"v_sub_f32 v{84+j}, v{20+j}, v36")
    a("v_mul_f32 v37, v84, v84")
    a("v_mul_f32 v39, v85, v85")
    for j in range(2, 16, 2):
        a(f"v_fmac_f32 v37, v{84+j}, v{84+j}")
        a(f"v_fmac_f32 v39, v{85+j}, v{85+j}")
    a("v_add_f32 v37, v37, v39")
    reduce_lanes(37, 38)
    nyoung = (1 if pf_wq else 0)+(2 if xf else 0)
    a(f"s_waitcnt vmcnt({nyoung})")
    if parts: modpart_sum(a, 100)
    modvec_stage(a, 100, 1024, 104)
    a("""
    v_lshlrev_b32 v40, 6, v1
    v_lshl_add_u32 v41, v4, 3, v40
    v_and_b32 v42, 63, v0
    v_cmp_gt_u32 vcc, 8, v42
    s_and_saveexec_b64 s[30:31], vcc
    ds_write_b64 v41, v[36:37]
    s_mov_b64 exec, s[30:31]
    s_waitcnt lgkmcnt(0)
    s_barrier
    ds_read_b128 v[84:87], v40
    ds_read_b128 v[88:91], v40 offset:16
    ds_read_b128 v[92:95], v40 offset:32
    ds_read_b128 v[96:99], v40 offset:48
    """)
    modvec_read(a, 68, 0, 1024, 104)
    modvec_read(a, 52, 1, 1024, 105)
    a("s_waitcnt lgkmcnt(8)")
    a("v_add_f32 v36, v84, v86")
    for j in range(2, 8): a(f"v_add_f32 v36, v36, v{84+2*j}")
    a("v_mul_f32 v36, 0x3e000000, v36")
    a("v_add_f32 v37, v85, v87")
    for j in range(2, 8): a(f"v_add_f32 v37, v37, v{85+2*j}")
    for j in range(8): a(f"v_sub_f32 v{84+2*j}, v{84+2*j}, v36")
    a("v_mul_f32 v38, v84, v84")
    for j in range(1, 8): a(f"v_fmac_f32 v38, v{84+2*j}, v{84+2*j}")
    a(f"""
    v_mov_b32 v39, 0x43000000
    v_fmac_f32 v37, v39, v38             ; M2 total
    v_mov_b32 v39, 0x3727c5ac            ; 1e-5
    v_fmac_f32 v39, 0x3a800000, v37
    v_rsq_f32 v39, v39
    s_waitcnt lgkmcnt(0)
    """)
    for j in range(16): a(f"v_sub_f32 v{20+j}, v{20+j}, v36")
    for j in range(16): a(f"v_add_f32 v{52+j}, 1.0, v{52+j}")
    for j in range(16): a(f"v_mul_f32 v{20+j}, v{20+j}, v39")
    for j in range(16): a(f"v_fmac_f32 v{68+j}, v{20+j}, v{52+j}")
    if outscale != 1.0:
        a(f"s_mov_b32 s28, {osc}")
        for j in range(16): a(f"v_mul_f32 v{68+j}, s28, v{68+j}")
    for j in range(8): a(f"v_cvt_pk_bf16_f32 v{12+j}, v{68+2*j}, v{69+2*j}")
    a(f"""
    v_add_u32 v7, 4096, v6
    buffer_store_dwordx4 v[12:15], v6, s[20:23], 0 offen{stflag}
    buffer_store_dwordx4 v[16:19], v7, s[20:23], 0 offen{stflag}
    """)
    if stamp is not None: stamp_end2(a, stamp, 8)
    a(f"""
    L_{L}_done:
    s_endpgm
    """)
    return (name, (256,1,1), (512,1,1), 1024+8192), a.text(), kernel_desc(name, 120, sgpr=102)


WS_XF = 0x2800000
WS_PA = 0x10000
WS_FL = 0x38000
WS_GB = 0x3c000
WS_PB = 0x20000
def modpart_issue(a, dstv, colA, colB, vaddr, qstride, srd0=16):
    a(f"""
    v_and_b32 v{vaddr}, 31, v0
    v_lshlrev_b32 v{vaddr}, 4, v{vaddr}
    v_lshl_add_u32 v{vaddr}, v4, 9, v{vaddr}          ; w*512 + (l&31)*16
    v_bfe_u32 v{vaddr+1}, v0, 5, 1
    v_mul_u32_u24 v{vaddr+1}, {(colB-colA)*4}, v{vaddr+1}
    v_add_u32 v{vaddr}, v{vaddr}, v{vaddr+1}
    """)
    for q in range(4):
        a(f"s_mov_b32 s{60+q}, {colA*4+q*qstride}")
    for q in range(4):
        a(f"buffer_load_dwordx4 v[{dstv+4*q}:{dstv+4*q+3}], v{vaddr}, s[{srd0}:{srd0+3}], s{60+q} offen")
def modpart_sum(a, dstv):
    for j in range(4):
        a(f"v_add_f32 v{dstv+j}, v{dstv+j}, v{dstv+4+j}")
        a(f"v_add_f32 v{dstv+8+j}, v{dstv+8+j}, v{dstv+12+j}")
    for j in range(4): a(f"v_add_f32 v{dstv+j}, v{dstv+j}, v{dstv+8+j}")
def modvec_issue(a, dstv, idxA, idxB, vaddr, srd0=16):
    a(f"""
    v_and_b32 v{vaddr}, 31, v0
    v_lshlrev_b32 v{vaddr}, 4, v{vaddr}
    v_lshl_add_u32 v{vaddr}, v4, 9, v{vaddr}          ; w*512 + (l&31)*16
    v_bfe_u32 v{vaddr+1}, v0, 5, 1
    v_mul_u32_u24 v{vaddr+1}, {(idxB-idxA)*4096}, v{vaddr+1}
    v_add_u32 v{vaddr}, v{vaddr}, v{vaddr+1}
    v_add_u32 v{vaddr}, {idxA*4096}, v{vaddr}
    buffer_load_dwordx4 v[{dstv}:{dstv+3}], v{vaddr}, s[{srd0}:{srd0+3}], 0 offen
    """)
def modvec_stage(a, srcv, ldsbase, vtmp):
    a(f"""
    v_and_b32 v{vtmp}, 63, v0
    v_lshlrev_b32 v{vtmp}, 4, v{vtmp}
    v_lshl_add_u32 v{vtmp}, v4, 10, v{vtmp}
    ds_write_b128 v{vtmp}, v[{srcv}:{srcv+3}] offset:{ldsbase}
    """)
def modvec_read(a, dst, half, ldsbase, vtmp):
    a(f"""
    v_lshlrev_b32 v{vtmp}, 5, v3
    v_lshl_add_u32 v{vtmp}, v4, 10, v{vtmp}
    ds_read_b128 v[{dst}:{dst+3}], v{vtmp} offset:{ldsbase+half*512}
    ds_read_b128 v[{dst+4}:{dst+7}], v{vtmp} offset:{ldsbase+half*512+16}
    ds_read_b128 v[{dst+8}:{dst+11}], v{vtmp} offset:{ldsbase+half*512+256}
    ds_read_b128 v[{dst+12}:{dst+15}], v{vtmp} offset:{ldsbase+half*512+272}
    """)
WS_STAMP = 0x8000000
def stamp_begin(a):
    a("""
    s_memtime s[90:91]
    s_memrealtime s[92:93]
    """)
def stamp_end(a, slot, wsreg):
    a(f"""
    s_waitcnt vmcnt(0) lgkmcnt(0)
    s_memtime s[94:95]
    s_memrealtime s[96:97]
    s_add_u32 s84, s{wsreg}, {WS_STAMP + slot*16384}
    s_addc_u32 s85, s{wsreg+1}, 0
    s_mov_b32 s86, 16384
    s_mov_b32 s87, 0x20000
    s_waitcnt lgkmcnt(0)
    s_sub_u32 s94, s94, s90
    v_mov_b32 v4, s94
    v_mov_b32 v5, s92
    v_mov_b32 v6, s96
    v_mov_b32 v7, s2
    s_lshl_b32 s88, s2, 4
    v_mov_b32 v8, s88
    v_cmp_eq_u32 vcc, 0, v0
    s_and_saveexec_b64 s[98:99], vcc
    s_cbranch_execz L_stamp_skip_{slot}
    buffer_store_dwordx4 v[4:7], v8, s[84:87], 0 offen
    L_stamp_skip_{slot}:
    s_mov_b64 exec, s[98:99]
    """)

def stamp_mid(a, k):
    a(f"""
    s_memtime s[68:69]
    s_waitcnt lgkmcnt(0)
    s_sub_u32 s{70+k}, s68, s90
    """)
def stamp_end2(a, slot, wsreg):
    a(f"""
    s_waitcnt vmcnt(0) lgkmcnt(0)
    s_memtime s[94:95]
    s_memrealtime s[96:97]
    s_add_u32 s84, s{wsreg}, {WS_STAMP + slot*16384}
    s_addc_u32 s85, s{wsreg+1}, 0
    s_mov_b32 s86, 16384
    s_mov_b32 s87, 0x20000
    s_waitcnt lgkmcnt(0)
    s_sub_u32 s94, s94, s90
    v_mov_b32 v4, s94
    v_mov_b32 v5, s92
    v_mov_b32 v6, s96
    v_mov_b32 v7, s70
    v_mov_b32 v8, s71
    v_mov_b32 v9, s72
    v_mov_b32 v10, s73
    v_mov_b32 v11, s74
    s_lshl_b32 s88, s2, 5
    v_mov_b32 v12, s88
    v_cmp_eq_u32 vcc, 0, v0
    s_and_saveexec_b64 s[98:99], vcc
    s_cbranch_execz L_stamp_skip_{slot}
    buffer_store_dwordx4 v[4:7], v12, s[84:87], 0 offen
    buffer_store_dwordx4 v[8:11], v12, s[84:87], 0 offen offset:16
    L_stamp_skip_{slot}:
    s_mov_b64 exec, s[98:99]
    """)


def gen_k0b(name="k0_kernel", stamp=None):
    a = Asm(); L = name
    kernel_begin(a, name)
    a(f"""
    s_cmp_ge_u32 s2, 128
    s_cbranch_scc1 L_{L}_pf
    s_load_dwordx4 s[4:7], s[0:1], 64
    s_load_dwordx2 s[8:9], s[0:1], 96
    """)
    if stamp is not None: stamp_begin(a)
    a(f"""
    v_lshrrev_b32 v1, 3, v0              ; 8w+g
    v_and_b32 v2, 7, v0                  ; cc
    s_and_b32 s20, s2, 3                 ; kq
    s_lshr_b32 s21, s2, 2                ; strip
    v_lshlrev_b32 v3, 2, v1
    s_lshl_b32 s22, s20, 8
    v_add_u32 v3, s22, v3
    s_mov_b32 s24, 12288
    v_mul_lo_u32 v4, v3, s24
    v_lshlrev_b32 v2, 4, v2
    s_lshl_b32 s25, s21, 7
    v_add3_u32 v4, v4, v2, s25
    v_lshlrev_b32 v3, 1, v3
    s_waitcnt lgkmcnt(0)
    """)
    srd(a, 12, 4, 2048)
    srd(a, 16, 6, 1024*6144*2)
    srd(a, 36, 8, 4*2048*4, WS_PA)
    a("buffer_load_dwordx2 v[8:9], v3, s[12:15], 0 offen")
    a("s_mov_b32 s26, 0")
    for i in range(4):
        a(f"buffer_load_dwordx4 v[{64+4*i}:{67+4*i}], v4, s[16:19], s26 offen")
        if i < 3: a("s_add_u32 s26, s26, 12288")
    a("""
    s_mov_b32 s27, 0xffff0000
    s_mov_b32 s33, 0xbfb8aa3b
    s_waitcnt vmcnt(4)
    v_lshlrev_b32 v16, 16, v8
    v_and_b32 v17, s27, v8
    v_lshlrev_b32 v18, 16, v9
    v_and_b32 v19, s27, v9
    """)
    for j in range(4): a(f"v_mul_f32 v{20+j}, s33, v{16+j}")
    for j in range(4): a(f"v_exp_f32 v{20+j}, v{20+j}")
    for j in range(4): a(f"v_add_f32 v{20+j}, 1.0, v{20+j}")
    for j in range(4): a(f"v_rcp_f32 v{20+j}, v{20+j}")
    for j in range(4): a(f"v_mul_f32 v{16+j}, v{16+j}, v{20+j}")
    a("""
    v_cvt_pk_bf16_f32 v8, v16, v17
    v_cvt_pk_bf16_f32 v9, v18, v19
    v_lshlrev_b32 v16, 16, v8
    v_and_b32 v17, s27, v8
    v_lshlrev_b32 v18, 16, v9
    v_and_b32 v19, s27, v9
    """)
    for e in range(8): a(f"v_mov_b32 v{32+e}, 0")
    for i in range(4):
        a(f"s_waitcnt vmcnt({3-i})")
        for d in range(4):
            r = 64+4*i+d
            a(f"v_lshlrev_b32 v40, 16, v{r}")
            a(f"v_and_b32 v41, s27, v{r}")
            a(f"v_fmac_f32 v{32+2*d}, v{16+i}, v40")
            a(f"v_fmac_f32 v{33+2*d}, v{16+i}, v41")
    a("s_nop 1")
    for e in range(8): a(f"v_add_f32_dpp v{32+e}, v{32+e}, v{32+e} row_ror:8 row_mask:0xf bank_mask:0xf")
    for sw in ["v_permlane16_swap_b32", "v_permlane32_swap_b32"]:
        for e in range(8): a(f"v_mov_b32 v{40+e}, v{32+e}")
        a("s_nop 1")
        for e in range(8): a(f"{sw} v{32+e}, v{40+e}")
        a("s_nop 1")
        for e in range(8): a(f"v_add_f32 v{32+e}, v{32+e}, v{40+e}")
    a(f"""
    v_and_b32 v5, 63, v0
    v_lshrrev_b32 v6, 6, v0
    v_lshlrev_b32 v7, 8, v6
    v_lshl_add_u32 v7, v5, 5, v7
    v_cmp_gt_u32 vcc, 8, v5
    s_and_saveexec_b64 s[30:31], vcc
    ds_write_b128 v7, v[32:35]
    ds_write_b128 v7, v[36:39] offset:16
    s_mov_b64 exec, s[30:31]
    s_waitcnt lgkmcnt(0)
    s_barrier
    v_cmp_gt_u32 vcc, 64, v0
    s_and_saveexec_b64 s[30:31], vcc
    s_cbranch_execz L_{L}_end
    v_lshlrev_b32 v7, 2, v0
    """)
    for j in range(8): a(f"ds_read_b32 v{16+j}, v7 offset:{256*j}")
    a(f"""
    s_lshl_b32 s25, s21, 8
    s_lshl_b32 s26, s20, 13
    s_add_u32 s25, s25, s26
    v_add_u32 v6, s25, v7
    s_waitcnt lgkmcnt(0)
    v_add_f32 v16, v16, v17
    v_add_f32 v18, v18, v19
    v_add_f32 v20, v20, v21
    v_add_f32 v22, v22, v23
    v_add_f32 v16, v16, v18
    v_add_f32 v20, v20, v22
    v_add_f32 v16, v16, v20
    buffer_store_dword v16, v6, s[36:39], 0 offen
    L_{L}_end:
    s_mov_b64 exec, s[30:31]
    """)
    if stamp is not None:
        a("s_mov_b32 s70, 0\ns_mov_b32 s71, 0\ns_mov_b32 s72, 0\ns_mov_b32 s73, 0\ns_mov_b32 s74, 0")
        stamp_end2(a, stamp, 8)
    a(f"""
    L_{L}_done:
    s_endpgm
    L_{L}_pf:
    s_cmp_ge_u32 s2, 256
    s_cbranch_scc1 L_{L}_done
    s_load_dwordx4 s[4:7], s[0:1], 0       ; x, k
    s_load_dwordx2 s[8:9], s[0:1], 16      ; v
    s_getpc_b64 s[28:29]
    L_{L}_pc:
    s_add_u32 s28, s28, L_code_begin-L_{L}_pc
    s_addc_u32 s29, s29, 0
    v_lshrrev_b32 v2, 6, v0
    v_and_b32 v1, 63, v0
    v_readfirstlane_b32 s20, v2
    s_and_b32 s21, s2, 7                   ; xcd
    s_sub_u32 s22, s2, 128
    s_lshr_b32 s22, s22, 3
    s_lshl_b32 s22, s22, 3
    s_add_u32 s22, s22, s20                ; gid 0..127
    v_lshrrev_b32 v3, 4, v1
    v_and_b32 v4, 15, v1
    v_lshlrev_b32 v4, 7, v4
    v_lshlrev_b32 v5, 7, v1
    s_waitcnt lgkmcnt(0)
    """)
    srd(a, 12, 4, 2048*1024*2)
    a(f"""
    s_cmp_ge_u32 s22, 64
    s_cbranch_scc1 L_{L}_pf_kv
    s_lshr_b32 s23, s22, 1
    s_lshl_b32 s23, s23, 3
    s_add_u32 s23, s23, s21
    s_lshl_b32 s23, s23, 3
    s_and_b32 s24, s22, 1
    s_lshl_b32 s24, s24, 2
    s_add_u32 s23, s23, s24
    s_lshl_b32 s23, s23, 11
    v_lshl_add_u32 v6, v3, 11, v4
    buffer_load_dword v8, v6, s[12:15], s23 offen
    s_endpgm
    L_{L}_pf_kv:
    s_cmp_ge_u32 s22, 96
    s_cbranch_scc1 L_{L}_pf_code
    s_sub_u32 s23, s22, 64
    s_cmp_ge_u32 s23, 16
    s_cselect_b32 s12, s8, s6
    s_cselect_b32 s13, s9, s7
    s_mov_b32 s14, {4*2048*128*2}
    s_and_b32 s23, s23, 15
    s_lshl_b32 s23, s23, 13
    s_and_b32 s24, s21, 3
    s_lshl_b32 s24, s24, 19
    s_add_u32 s23, s23, s24
    s_add_u32 s23, s23, {1536*256}
    buffer_load_dword v8, v5, s[12:15], s23 offen
    s_endpgm
    L_{L}_pf_code:
    s_cmp_ge_u32 s22, 112
    s_cbranch_scc1 L_{L}_done
    s_sub_u32 s23, s22, 96
    s_lshl_b32 s23, s23, 13
    v_add_u32 v6, s23, v5
    v_min_u32 v6, L_code_end-L_code_begin, v6
    global_load_dword v8, v6, s[28:29]
    s_endpgm
    L_code_begin:
    s_endpgm
    """)
    return (name, (256,1,1), (512,1,1), 2048), a.text(), kernel_desc(name, 80, sgpr=102)
```

```python
from asmlib import *
from gen_small import *
from gen_gemm import lane_common, tr_lane_terms, Filt
from stream import *
import os

WS_P1 = 0x5000000
WS_P2 = WS_P1 if REUSE else 0x6000000
PSTRIDE = int(os.environ.get('PSTRIDE', str(0x400000)), 0)

def g256_setup_w(a, w_stride, vW=4, vT=8, nbase=1):
    a(f"""
    v_lshrrev_b32 v32, 4, v1               ; L>>4
    v_and_b32 v33, 15, v1                  ; p
    v_lshlrev_b32 v34, 2, v32
    v_xor_b32 v34, v33, v34
    v_lshlrev_b32 v34, 4, v34
    v_mul_u32_u24 v35, {w_stride}, v32
    v_add_u32 v{vW}, v35, v34
    v_add_u32 v{vW+1}, {4*w_stride-1024}, v{vW}
    v_add_u32 v{vW+2}, {8*w_stride-2048}, v{vW}
    v_add_u32 v{vW+3}, {12*w_stride-3072}, v{vW}
    """)
def g256_setup_tr(a, vT=8, nbase=1):
    tr_lane_terms(a, 32, 33, 34, 35)
    a("""
    v_lshrrev_b32 v35, 1, v34              ; sw>>1
    v_lshl_add_u32 v35, v33, 1, v35        ; c0
    v_bfe_u32 v36, v1, 2, 2                ; i>>2
    v_lshlrev_b32 v37, 2, v36              ; swz
    v_and_b32 v34, 1, v34
    v_lshlrev_b32 v34, 3, v34              ; half8*8
    v_lshl_add_u32 v38, v32, 8, v34
    """)
    for db in range(4):
        a(f"""
        v_or_b32 v42, {4*db}, v35
        v_xor_b32 v42, v42, v37
        v_lshl_add_u32 v{vT+db}, v42, 4, v38
        """)
        for b in range(1, nbase): a(f"v_add_u32 v{vT+4*b+db}, {65536*b}, v{vT+db}")

class G256:
    def __init__(self, a, KT, w_stride, NSLOT, NBUF, ACC=64, vW=4, vT=8):
        self.a = a; self.KT = KT; self.ws = w_stride; self.NSLOT = NSLOT; self.NBUF = NBUF; self.ACC = ACC
        self.vW = vW; self.vT = vT; self.FR = 32*NBUF
        self.log = VmLog(); self.cur = dict(m0=None, ws=0, as_=0)
        g = self
        def wdma(s, j):
            out = []
            if g.cur['ws'] != s:
                out.append(f"s_add_u32 s28, s28, {(s-g.cur['ws'])*64*g.ws}"); g.cur['ws'] = s
            want = (s % NSLOT)*16384
            if g.cur['m0'] != want:
                out.append(f"s_add_u32 m0, s30, {want}"); out.append("s_nop 0"); g.cur['m0'] = want
            out.append(f"buffer_load_dwordx4 v{g.vW+j}, s[12:15], s28 offen offset:{1024*j} lds")
            return out
        wdma.n = 4
        self.wdma = wdma
    def hbuf(self, buf, qb, ks): r = 32*buf+16*qb+4*ks; return f"a[{r}:{r+3}]"
    def actload(self, s, ks, tb):
        pre = ""
        if self.cur['as_'] != s:
            pre = f"s_mov_b32 s29, {s*4096}\n"; self.cur['as_'] = s
        return pre+f"buffer_load_dwordx4 {self.hbuf(s % self.NBUF, tb, ks)}, v{2+tb}, s[16:19], s29 offen offset:{1024*ks}"
    def qacc(self, db, qb): return self.ACC+(2*db+qb)*16
    def wfr(self, q, db): return self.FR+(q % 2)*16+4*db
    def wreads(self, t, ks):
        q = 4*t+ks; slot = t % self.NSLOT; out = []
        for db in range(4):
            r = self.wfr(q, db)
            for hf in range(2):
                out.append(f"ds_read_b64_tr_b16 a[{r+2*hf}:{r+2*hf+1}], v{self.vT+4*(slot//4)+db} offset:{(slot%4)*16384+(16*ks+4*hf)*256}")
        return out
    def mfma(self, t, ks, db, qb):
        r = self.wfr(4*t+ks, db); c = self.qacc(db, qb)
        return f"v_mfma_f32_32x32x16_bf16 v[{c}:{c+15}], a[{r}:{r+3}], {self.hbuf(t % self.NBUF, qb, ks)}, v[{c}:{c+15}]"
    def issue_stage(self, s):
        a = self.a
        for j in range(4):
            for l in self.wdma(s, j): a(l)
            self.log.issue(('W', s, j))
            for tb in range(2):
                a(self.actload(s, j, tb)); self.log.issue(('A', s, j, tb))
    def first_wait(self):
        a = self.a
        a(f"s_waitcnt vmcnt({self.log.wait_for(lambda x: x[0] in 'WA' and x[1] == 0)})")
        a("s_barrier")
        for s in self.wreads(0, 0): a(s)
    def read_item(self, t, ks, db, ring):
        r = self.FR+4*ring; slot = t % self.NSLOT
        return [f"ds_read_b64_tr_b16 a[{r+2*hf}:{r+2*hf+1}], v{self.vT+4*(slot//4)+db} offset:{(slot%4)*16384+(16*ks+4*hf)*256}" for hf in range(2)]
    def mfma2(self, t, ks, db, qb, ring):
        r = self.FR+4*ring; c = self.qacc(db, qb)
        return f"v_mfma_f32_32x32x16_bf16 v[{c}:{c+15}], a[{r}:{r+3}], {self.hbuf(t % self.NBUF, qb, ks)}, v[{c}:{c+15}]"
    def first_wait2(self):
        a = self.a
        a(f"s_waitcnt vmcnt({self.log.wait_for(lambda x: x[0] in 'WA' and x[1] == 0)})")
        a("s_barrier")
        for db in range(4):
            for s in self.read_item(0, 0, db, db): a(s)
    def stream2(self, pre, gap=2, extra=None, extra_after=None, T=0, post=None):
        emit_stream2(self.a, self.KT, self.NSLOT, self.NBUF, self.read_item, self.mfma2, self.wdma, self.actload, self.log, pre, gap=gap, extra=extra, extra_after=extra_after, T=T, post=post)
    def stream(self, pre, gap=2, extra=None, extra_after=None):
        emit_stream(self.a, self.KT, 4, 2, self.NSLOT, self.NBUF, self.wreads, self.mfma, self.wdma, self.actload, self.log, pre, gap=gap, extra=extra, extra_after=extra_after)

def g16_setup_w(a, w_stride, vW=4):
    a(f"""
    v_lshrrev_b32 v32, 4, v1               ; L>>4 = k&3
    v_and_b32 v33, 15, v1                  ; p
    v_lshlrev_b32 v34, 1, v32
    v_xor_b32 v34, v33, v34                ; j' = 0,1
    v_xor_b32 v36, 8, v34                  ; j' = 2,3
    v_lshlrev_b32 v34, 4, v34
    v_lshlrev_b32 v36, 4, v36
    v_mul_u32_u24 v35, {w_stride}, v32
    v_add_u32 v{vW}, v35, v34
    v_add_u32 v{vW+1}, {4*w_stride-1024}, v{vW}
    v_add_u32 v{vW+2}, v35, v36
    v_add_u32 v{vW+3}, {12*w_stride-3072}, v{vW+2}
    v_add_u32 v{vW+2}, {8*w_stride-2048}, v{vW+2}
    """)
def g16_setup_tr(a, vT, nbase):
    a(f"""
    v_lshrrev_b32 v32, 4, v1               ; g
    v_bfe_u32 v33, v1, 2, 2                ; i>>2
    v_lshl_add_u32 v34, v32, 3, v33        ; row = 8g + (i>>2)
    v_and_b32 v35, 1, v32
    v_lshl_or_b32 v35, v35, 2, v33         ; f
    v_bfe_u32 v36, v1, 1, 1                ; cb
    v_lshlrev_b32 v36, 4, v36
    v_and_b32 v37, 1, v1
    v_lshl_or_b32 v36, v37, 3, v36
    v_lshl_add_u32 v36, v34, 8, v36        ; row*256 + ..
    """)
    for j in range(8):
        a(f"v_xor_b32 v37, {j}, v35")
        a(f"v_lshl_add_u32 v{vT+j}, v37, 5, v36")
        for b in range(1, nbase): a(f"v_add_u32 v{vT+8*b+j}, {65536*b}, v{vT+j}")

class G16(G256):
    def __init__(self, a, KT, w_stride, NSLOT, NBUF, ACC=64, vW=4, vT=200, vA=(16, 17)):
        super().__init__(a, KT, w_stride, NSLOT, NBUF, ACC, vW, vT)
        self.vA = vA
    def abuf(self, buf, ks, tb): r = 32*buf+16*ks+4*tb; return f"a[{r}:{r+3}]"
    def actload(self, s, ks, tb):
        pre = ""
        if self.cur['as_'] != s:
            pre = f"s_mov_b32 s29, {s*4096}\n"; self.cur['as_'] = s
        return pre+f"buffer_load_dwordx4 {self.abuf(s % self.NBUF, ks, tb)}, v{self.vA[tb >> 1]}, s[16:19], s29 offen offset:{2048*ks+256*(tb & 1)}"
    def acc(self, j, tb): return self.ACC+(j*4+tb)*4
    def read_item(self, t, ks, j, ring):
        r = self.FR+4*ring; slot = t % self.NSLOT
        return [f"ds_read_b64_tr_b16 a[{r+2*hf}:{r+2*hf+1}], v{self.vT+8*(slot//4)+j} offset:{(slot%4)*16384+(32*ks+4*hf)*256}" for hf in range(2)]
    def mfma2(self, t, ks, j, tb, ring):
        r = self.FR+4*ring; c = self.acc(j, tb)
        return f"v_mfma_f32_16x16x32_bf16 v[{c}:{c+3}], a[{r}:{r+3}], {self.abuf(t % self.NBUF, ks, tb)}, v[{c}:{c+3}]"
    def issue_stage(self, s):
        a = self.a
        for j in range(4):
            for l in self.wdma(s, j): a(l)
            self.log.issue(('W', s, j))
            for tb in (2*(j & 1), 2*(j & 1)+1):
                a(self.actload(s, j >> 1, tb)); self.log.issue(('A', s, j >> 1, tb))
    def first_wait2(self):
        a = self.a
        a(f"s_waitcnt vmcnt({self.log.wait_for(lambda x: x[0] in 'WA' and x[1] == 0)})")
        a("s_barrier")
        for j in range(4):
            for s in self.read_item(0, 0, j, j): a(s)
    def stream2(self, pre, gap=2, extra=None, extra_after=None, T=0, post=None, fill=None):
        return emit_stream2(self.a, self.KT, self.NSLOT, self.NBUF, self.read_item, self.mfma2, self.wdma, self.actload, self.log, pre, gap=gap,
                     extra=extra, extra_after=extra_after, T=T, post=post, TB=4, NB=8, NKS=2, fill=fill)
    def pack_ops(self, j, m, t, relu=False):
        x = self.acc(j, 2*m); y = self.acc(j, 2*m+1)
        ops = [f"v_cvt_pk_bf16_f32 v{t}, v{x}, v{x+1}", f"v_cvt_pk_bf16_f32 v{t+1}, v{x+2}, v{x+3}",
               f"v_cvt_pk_bf16_f32 v{t+2}, v{y}, v{y+1}", f"v_cvt_pk_bf16_f32 v{t+3}, v{y+2}, v{y+3}"]
        if relu: ops += [f"v_pk_max_i16 v{t+k}, v{t+k}, 0" for k in range(4)]
        ops += ["s_nop 1", f"v_permlane16_swap_b32 v{t}, v{t+2}", f"v_permlane16_swap_b32 v{t+1}, v{t+3}"]
        return ops

def gen_g256(name, kind, stamp=None, NSLOT=6, NBUF=5, pre=2, gap=2, dbg="", stflag=" sc0 sc1", T=0, touch=True, m16=False):
    a = Filt(dbg); L = name
    cfg = {
      "oproj": dict(KT=16, w_arg=32, ws=2048, wbytes=4096*1024*2, act=WS_OF, atb=4096*64, nwg=256),
      "ffn1":  dict(KT=16, w_arg=48, ws=7168, wbytes=1024*3584*2, act=WS_H2F, atb=1024*64, nwg=224),
      "ffn2":  dict(KT=14, w_arg=56, ws=2048, wbytes=3584*1024*2, act=WS_HIDF, atb=3584*64, nwg=256),
    }[kind]
    KT, ws, atb = cfg["KT"], cfg["ws"], cfg["atb"]
    kernel_begin(a, name)
    a(f"""
    s_cmp_ge_u32 s2, {cfg["nwg"]}
    s_cbranch_scc1 L_{L}_done
    s_load_dwordx2 s[4:5], s[0:1], {cfg["w_arg"]}
    s_load_dwordx2 s[6:7], s[0:1], 96
    s_load_dwordx4 s[60:63], s[0:1], 48    ; w1 s[60:61], w2 s[62:63]
    """)
    if stamp is not None: stamp_begin(a)
    lane_common(a)
    a("""
    s_and_b32 s21, s2, 7
    s_lshr_b32 s22, s2, 3
    s_and_b32 s23, s21, 3                  ; q
    s_lshr_b32 s24, s21, 2
    s_lshl_b32 s24, s24, 2                 ; 4*th
    """)
    if kind == "ffn1":
        a("""
        s_mul_i32 s25, s22, 37
        s_lshr_b32 s25, s25, 8
        s_add_u32 s24, s24, s25
        s_mul_i32 s25, s25, 7
        s_sub_u32 s25, s22, s25            ; idx % 7
        s_mul_i32 s26, s23, 7
        s_add_u32 s25, s25, s26
        s_mov_b32 s26, 0                   ; k offset rows
        s_mov_b32 s27, 0
        """)
    else:
        kq = KT*64
        a(f"""
        s_lshr_b32 s25, s22, 3
        s_add_u32 s24, s24, s25
        s_and_b32 s25, s22, 7              ; n tile
        s_mul_i32 s26, s23, {kq}           ; k offset rows
        s_mul_i32 s27, s23, {kq*64}
        """)
    a(f"""
    s_lshl_b32 s24, s24, 3
    s_lshl_b32 s31, s20, 1
    s_add_u32 s24, s24, s31
    v_add_u32 v3, {atb}, v2
    """)
    if m16:
        g16_setup_w(a, ws)
        a(f"""
        v_lshrrev_b32 v16, 4, v1
        v_lshlrev_b32 v16, 9, v16
        v_and_b32 v17, 15, v1
        v_lshl_add_u32 v16, v17, 4, v16        ; (l>>4)*512 + (l&15)*16
        v_add_u32 v17, {atb}, v16
        """)
    else: g256_setup_w(a, ws)
    a("s_waitcnt lgkmcnt(0)")
    if stamp is not None: stamp_mid(a, 0)
    srd(a, 12, 4, cfg["wbytes"])
    a(f"""
    s_mul_i32 s31, s24, {atb}
    s_add_u32 s31, s31, s27
    s_add_u32 s31, s31, {cfg["act"]}
    s_add_u32 s16, s6, s31
    s_addc_u32 s17, s7, 0
    s_mov_b32 s18, {atb+KT*4096}
    s_mov_b32 s19, 0x20000
    s_lshl_b32 s31, s20, 4
    s_add_u32 s31, s31, s26
    s_mul_i32 s28, s31, {ws}
    s_lshl_b32 s31, s25, 8
    s_add_u32 s28, s28, s31                ; W soffset
    s_mov_b32 s29, 0
    s_lshl_b32 s30, s20, 12
    """)
    g = G16(a, KT, ws, NSLOT, NBUF) if m16 else G256(a, KT, ws, NSLOT, NBUF)
    g.issue_stage(0)
    if m16: g16_setup_tr(a, 200, (NSLOT+3)//4)
    else: g256_setup_tr(a, 8, (NSLOT+3)//4)
    for s in range(1, pre): g.issue_stage(s)
    for i in range(128): a(f"v_mov_b32 v{64+i}, 0")
    if kind == "ffn1":
        srd(a, 40, 6, 2048*3584*2, WS_HIDF); otb = 3584*64
        a(f"s_mul_i32 s26, s24, {otb}\ns_lshl_b32 s27, s25, 13\ns_add_u32 s26, s26, s27")
    else:
        otb = 65536
        a(f"""
        s_mul_i32 s31, s23, {PSTRIDE}
        s_add_u32 s31, s31, {WS_P1 if kind == "oproj" else WS_P2}
        s_add_u32 s40, s6, s31
        s_addc_u32 s41, s7, 0
        s_mov_b32 s42, {2048*1024*2}
        s_mov_b32 s43, 0x20000
        s_lshl_b32 s26, s24, 16
        s_lshl_b32 s27, s25, 13
        s_add_u32 s26, s26, s27
        """)
    a(f"s_add_u32 s27, s26, {otb}")
    a("s_add_u32 s34, s26, 4096\ns_add_u32 s35, s27, 4096")
    def post16(p_):
        ops = []
        for p in (range(4) if p_ is None else [p_]):
            for m_ in range(2):
                for j in (2*p, 2*p+1):
                    t = 20+4*((2*m_+j) % 4)
                    ops += g.pack_ops(j, m_, t, relu=(kind == "ffn1"))
                    so = ["s26", "s27"][m_] if j < 4 else ["s34", "s35"][m_]
                    ops.append("s_nop 0")
                    ops.append(f"buffer_store_dwordx4 v[{t}:{t+3}], v2, s[40:43], {so} offen offset:{(j & 3)*1024}{stflag}")
        return ops
    def post(db):
        if m16: return post16(db)
        dbs = range(4) if db is None else [db]
        ops = []
        for d_ in dbs:
            for qb in range(2):
                c = g.qacc(d_, qb); t = 20+8*qb
                for j in range(8):
                    ops.append(f"v_cvt_pk_bf16_f32 v{t+j}, v{c+2*j}, v{c+2*j+1}")
                    if kind == "ffn1": ops.append(f"v_pk_max_i16 v{t+j}, v{t+j}, 0")
                so = ["s26", "s27"][qb] if d_ < 2 else ["s34", "s35"][qb]
                ops.append(f"buffer_store_dwordx4 v[{t}:{t+3}], v2, s[40:43], {so} offen offset:{(d_&1)*2048}{stflag}")
                ops.append(f"buffer_store_dwordx4 v[{t+4}:{t+7}], v2, s[40:43], {so} offen offset:{(d_&1)*2048+1024}{stflag}")
        return ops
    extra = []; ea = {}
    nxt = {"oproj": 60, "ffn1": 62}.get(kind)
    if touch and nxt is not None:
        nw = cfg["nwg"]*4
        lines = 3584*1024*2//128
        per = -(-lines//(nw*64))
        a(f"""
        s_lshl_b32 s46, s2, 2
        s_add_u32 s46, s46, s20
        s_mul_i32 s46, s46, {per*8192}
        v_lshlrev_b32 v18, 7, v1
        v_add_u32 v18, s46, v18
        s_mov_b32 s48, s{nxt}
        s_mov_b32 s49, s{nxt+1}
        s_mov_b32 s51, 0x20000
        s_and_b32 s47, s2, 3
        s_mov_b32 s52, {3584*1024*2}
        """)
        def mkt(ph, k):
            def f():
                return [f"s_cmp_eq_u32 s47, {ph}", "s_cselect_b32 s50, s52, 0", f"s_mov_b32 s53, {k*8192}", "buffer_load_dword v19, v18, s[48:51], s53 offen"]
            return f
        for ph in range(4):
            for k in range(per):
                extra.append((('X', 'pf', ph, k), mkt(ph, k)))
                ea.setdefault(3+2*ph, []).append(len(extra)-1)
    g.first_wait2()
    if stamp is not None: stamp_mid(a, 1)
    a.inloop = True
    g.stream2(pre, gap, T=T, post=post, extra=extra, extra_after=ea)
    a.inloop = False
    if stamp is not None: stamp_mid(a, 2)
    if stamp is not None: stamp_mid(a, 3); stamp_end2(a, stamp, 6)
    a(f"""
    L_{L}_done:
    s_endpgm
    """)
    return (name, (cfg["nwg"],1,1), (256,1,1), NSLOT*16384), a.text(), kernel_desc(name, 256+32*NBUF+32, accum=256)
```

```python
class VmLog:
    def __init__(self): self.ops = []
    def issue(self, tag): self.ops.append(tag)
    def wait_for(self, pred):
        last = -1
        for i, t in enumerate(self.ops):
            if pred(t): last = i
        n = len(self.ops)-1-last
        assert n <= 63, n
        return n

def emit_stream(a, KT, NB, TB, NSLOT, NBUF, wreads, mfma, wdma, actload, log, pre_stages, gap=2, extra=None, extra_after=None, final_barrier=False):
    nW = wdma.n
    q = []
    for s in range(pre_stages, KT):
        order = []
        acts = [('A', s, ks, tb) for ks in range(4) for tb in range(TB)]
        ws = [('W', s, j) for j in range(nW)]
        i = j = 0
        while i < len(acts) or j < len(ws):
            if j < len(ws) and j*len(acts) <= i*len(ws): order.append(ws[j]); j += 1
            else: order.append(acts[i]); i += 1
        q += order
        if extra and s in extra_after: q += [('X', k) for k in extra_after[s]]
    state = dict(mf_done=set(), bar=0)
    def ready(op):
        if op[0] == 'X': return True
        if op[0] == 'W':
            s = op[1]
            return s-NSLOT+1 <= state['bar'] or s < NSLOT
        s, ks = op[1], op[2]
        return s < NBUF or (s-NBUF, ks) in state['mf_done']
    def issue_next():
        if q and ready(q[0]):
            op = q.pop(0)
            if op[0] == 'W': lines = wdma(op[1], op[2])
            elif op[0] == 'A': lines = [actload(op[1], op[2], op[3])]
            else: lines = extra[op[1]][1]()
            for l in lines: a(l)
            log.issue(op if op[0] != 'X' else extra[op[1]][0])
            return True
        return False
    m = 0
    for t in range(KT):
        last = t == KT-1
        for ks in range(4):
            bar_here = (ks == 3 and not last)
            if bar_here:
                while any(x[0] in 'WA' and x[1] <= t+1 for x in q):
                    assert issue_next(), q[0]
                n = log.wait_for(lambda x: x[0] in 'WA' and x[1] <= t+1)
                a(f"s_waitcnt vmcnt({n}) lgkmcnt(0)")
                a("s_barrier")
                state['bar'] = t+1
            if ks < 3: rl = wreads(t, ks+1)
            else: rl = [] if last else wreads(t+1, 0)
            for nb in range(NB):
                if not bar_here:
                    a(f"s_waitcnt lgkmcnt({2*(NB-1) if rl else 2*(NB-1-nb)})")
                for tb in range(TB):
                    a(mfma(t, ks, nb, tb))
                    m += 1
                    if tb == 0:
                        for s in rl[2*nb:2*nb+2]: a(s)
                    if nb == NB-1 and tb == TB-1: state['mf_done'].add((t, ks))
                    if m % gap == 0: issue_next()
    while q:
        assert issue_next(), q[0]

def emit_stream2(a, KT, NSLOT, NBUF, read_item, mfma, wdma, actload, log, pre_stages, gap=2, extra=None, extra_after=None, T=0, post=None, TB=2, NB=4, NKS=4, fill=None):
    PD = 4; PG = NB//4
    items = [(t, ks, nb) for t in range(KT-T) for ks in range(NKS) for nb in range(NB)]
    n_norm = len(items)
    items += [(t, ks, nb) for p in range(4) for t in range(KT-T, KT) for ks in range(NKS) for nb in range(p*PG, (p+1)*PG)]
    per_pass = T*NKS*PG
    nW = wdma.n
    q = []
    for s in range(pre_stages, KT):
        acts = [('A', s, ks, tb) for ks in range(NKS) for tb in range(TB)]
        ws = [('W', s, j) for j in range(nW)]
        i = j = 0
        while i < len(acts) or j < len(ws):
            if j < len(ws) and j*len(acts) <= i*len(ws): q.append(ws[j]); j += 1
            else: q.append(acts[i]); i += 1
        if extra and s in extra_after: q += [('X', k) for k in extra_after[s]]
    state = dict(mf_done=set(), bar=0)
    def ready(op):
        if op[0] == 'X': return True
        if op[0] == 'W': return op[1] < NSLOT or op[1]-NSLOT+1 <= state['bar']
        return op[1] < NBUF or (op[1]-NBUF, op[2]) in state['mf_done']
    def issue_next():
        if q and ready(q[0]):
            op = q.pop(0)
            if op[0] == 'W': lines = wdma(op[1], op[2])
            elif op[0] == 'A': lines = [actload(op[1], op[2], op[3])]
            else: lines = extra[op[1]][1]()
            for l in lines: a(l)
            log.issue(op if op[0] != 'X' else extra[op[1]][0])
            return True
        return False
    def next_lines():
        if q and ready(q[0]):
            op = q.pop(0)
            if op[0] == 'W': lines = wdma(op[1], op[2])
            elif op[0] == 'A': lines = actload(op[1], op[2], op[3]).split("\n")
            else: lines = extra[op[1]][1]()
            log.issue(op if op[0] != 'X' else extra[op[1]][0])
            return lines
        return None
    landed = 0
    pending = []; pend_rate = 0
    m = 0; mgap = gap*TB//2
    for i, (t, ks, nb) in enumerate(items):
        barrier = False
        if i+PD < len(items):
            tn = items[i+PD][0]
            if tn > landed:
                while any(x[0] in 'WA' and x[1] <= tn for x in q):
                    assert issue_next(), q[0]
                n = log.wait_for(lambda x: x[0] in 'WA' and x[1] <= tn)
                a(f"s_waitcnt vmcnt({n}) lgkmcnt(0)")
                a("s_barrier")
                landed = tn; barrier = True
                done_items = set(items[:i+PD])
                st = state['bar']
                while st < KT and all((st, k, d) in done_items for k in range(NKS) for d in range(NB)): st += 1
                state['bar'] = st
        if not barrier:
            young = 2*min(PD-1, len(items)-1-i)
            a(f"s_waitcnt lgkmcnt({young})")
        if TB == 4:
            rd = read_item(*items[i+PD], (i+PD) % 8) if i+PD < len(items) else []
            lines = None
            for tb in range(TB):
                a(mfma(t, ks, nb, tb, i % 8)); m += 1
                if tb < 2 and rd: a(rd[tb])
                if tb == 1:
                    lines = next_lines()
                    if lines:
                        for l in lines[:-1]:
                            if l.strip() != "s_nop 0": a(l)
                if tb == 2 and lines: a(lines[-1])
                if tb in (0, 3):
                    for _ in range(pend_rate):
                        if pending: a(pending.pop(0))
        else:
          for tb in range(TB):
            a(mfma(t, ks, nb, tb, i % 8)); m += 1
            if tb == 0 and i+PD < len(items):
                for s_ in read_item(*items[i+PD], (i+PD) % 8): a(s_)
            if m % mgap == 0: issue_next()
            if tb % (TB//2) == (TB//2)-1:
                for _ in range(pend_rate):
                    if pending: a(pending.pop(0))
        if fill and i in fill:
            for o in fill[i]: a(o)
        if i < n_norm and nb == NB-1: state['mf_done'].add((t, ks))
        if i >= n_norm and post is not None and (i-n_norm+1) % per_pass == 0 and i != len(items)-1:
            assert not pending
            state['post_ops'] = (post((i-n_norm)//per_pass), i+3)
        if 'post_ops' in state and i >= state['post_ops'][1]:
            ops, _ = state.pop('post_ops')
            pending = list(ops); pend_rate = max(1, -(-len(ops)//(2*(per_pass-4))))
    while q:
        assert issue_next(), q[0]
    assert not pending, len(pending)
    if post is not None:
        a("s_nop 15")
        for o in post(3 if T else None): a(o)
    return len(items)
```

```python
from asmlib import *
from gen_small import *
from gen_gemm import lane_common, tr_lane_terms
from gen_g256 import G256, G16, g16_setup_w, g16_setup_tr
from stream import VmLog

KRING = 65536
VRING = 65536+49152
BIAS = 30.0

def gen_attn(name="attn_kernel", stamp=None, fallback=True, dbg="", pfw=True, pfstride=64, stflag="", side=False, m16=False, QT=2):
    a = Asm(); L = name
    kernel_begin(a, name)
    a(f"""
    s_cmp_ge_u32 s2, 256
    s_cbranch_scc1 L_{L}_done
    s_load_dwordx4 s[4:7], s[0:1], 8
    s_load_dwordx2 s[8:9], s[0:1], 24      ; wq
    s_load_dwordx2 s[10:11], s[0:1], 96    ; ws
    s_load_dwordx2 s[60:61], s[0:1], 32    ; wo
    s_load_dwordx4 s[64:67], s[0:1], 48    ; w1 s[64:65], w2 s[66:67]
    s_load_dwordx2 s[82:83], s[0:1], 72    ; w_mod
    s_load_dwordx2 s[100:101], s[0:1], 64  ; c
    """)
    if stamp is not None: stamp_begin(a)
    lane_common(a)
    a("""
    s_and_b32 s21, s2, 7
    s_lshr_b32 s22, s2, 3
    s_and_b32 s23, s21, 3
    s_lshl_b32 s24, s23, 3
    s_and_b32 s25, s22, 7
    s_add_u32 s24, s24, s25                ; head
    s_lshr_b32 s25, s21, 2
    s_lshl_b32 s25, s25, 2
    s_lshr_b32 s26, s22, 3
    s_add_u32 s25, s25, s26
    s_lshl_b32 s25, s25, 3
    s_lshl_b32 s26, s20, 1
    s_add_u32 s25, s25, s26
    v_add_u32 v3, 0x10000, v2
    v_lshrrev_b32 v32, 4, v1               ; L>>4
    v_and_b32 v33, 15, v1                  ; p
    v_lshlrev_b32 v34, 2, v32
    v_xor_b32 v34, v33, v34                ; p ^ ((L>>4)<<2)
    v_lshlrev_b32 v34, 4, v34
    v_lshl_add_u32 v4, v32, 13, v34        ; W: row*8192 + c*16
    v_add_u32 v5, 31744, v4                ; + 4*8192 - 1024
    v_add_u32 v6, 63488, v4
    v_add_u32 v7, 95232, v4
    v_lshl_add_u32 v16, v32, 8, v34        ; V: row*256 + c*16
    """)
    for i in range(4):
        a(f"""
        v_add_u32 v35, {4*i}, v32
        v_xor_b32 v35, v33, v35
        v_lshlrev_b32 v35, 4, v35
        v_lshl_add_u32 v{12+i}, v32, 8, v35
        """)
    tr_lane_terms(a, 32, 33, 34, 35)
    a("""
    v_lshrrev_b32 v35, 1, v34              ; sw>>1
    v_lshl_add_u32 v35, v33, 1, v35        ; c0 = 2*(g&1) + (sw>>1)
    v_bfe_u32 v36, v1, 2, 2                ; i>>2
    v_lshlrev_b32 v37, 2, v36              ; swz = (i>>2)<<2
    v_and_b32 v34, 1, v34
    v_lshlrev_b32 v34, 3, v34              ; half8*8
    v_lshl_add_u32 v38, v32, 8, v34
    v_lshrrev_b32 v39, 5, v1               ; hh
    v_lshl_add_u32 v39, v39, 2, v36        ; 4hh + (i>>2)
    v_lshl_add_u32 v39, v39, 8, v34
    """)
    for db in range(4):
        a(f"""
        v_or_b32 v42, {4*db}, v35
        v_xor_b32 v42, v42, v37
        v_lshl_add_u32 v{8+db}, v42, 4, v38
        v_lshl_add_u32 v{28+db}, v42, 4, v39
        v_add_u32 v{28+db}, {VRING}, v{28+db}
        """)
    a("""
    v_and_b32 v32, 31, v1                  ; r
    v_lshrrev_b32 v33, 5, v1               ; hh
    v_and_b32 v34, 15, v1
    """)
    for ds in range(8):
        a(f"""
        v_or_b32 v35, {2*ds}, v33
        v_xor_b32 v35, v35, v34
        v_lshlrev_b32 v35, 4, v35
        v_lshl_add_u32 v{20+ds}, v32, 8, v35
        v_add_u32 v{20+ds}, {KRING}, v{20+ds}
        """)
    if m16:
        g16_setup_w(a, 8192)
        g16_setup_tr(a, 44, 1)
        a("""
        v_lshrrev_b32 v52, 4, v1
        v_lshlrev_b32 v52, 9, v52
        v_and_b32 v53, 15, v1
        v_lshl_add_u32 v52, v53, 4, v52        ; (l>>4)*512 + (l&15)*16
        v_add_u32 v53, 0x10000, v52
        """)
    a("s_waitcnt lgkmcnt(0)")
    if stamp is not None and "ls" not in dbg: stamp_mid(a, 0)
    srd(a, 12, 8, 1024*4096*2)
    a(f"""
    s_lshl_b32 s26, s25, 16
    s_add_u32 s26, s26, {WS_HF}
    s_add_u32 s16, s10, s26
    s_addc_u32 s17, s11, 0
    s_mov_b32 s18, 131072
    s_mov_b32 s19, 0x20000
    """)
    srd(a, 32, 4, 4*2048*128*2)
    srd(a, 36, 6, 4*2048*128*2)
    srd(a, 40, 10, 2048*4096*2, WS_OF)
    a(f"""
    s_mul_i32 s28, s20, {16*8192}
    s_lshl_b32 s26, s24, 8
    s_add_u32 s28, s28, s26                ; W soffset
    s_mov_b32 s29, 0                       ; h soffset
    s_lshl_b32 s30, s20, 12
    s_lshl_b32 s44, s23, 19                ; g*524288
    s_add_u32 s44, s44, {1536*256}
    s_add_u32 s44, s44, s30
    """)
    a(f"""
    s_lshl_b32 s26, s2, 2
    s_add_u32 s26, s26, s20
    s_mul_i32 s26, s26, 8192
    v_lshlrev_b32 v17, 7, v1
    v_add_u32 v17, s26, v17
    s_mul_i32 s26, s26, 3
    s_lshr_b32 s26, s26, 1                 ; gid*12288
    s_add_u32 s26, s26, 4096
    v_lshlrev_b32 v19, 7, v1
    v_add_u32 v19, s26, v19
    s_mov_b32 s62, {3584*1024*2}
    s_mov_b32 s79, 0x20000
    s_and_b32 s80, s2, 1
    s_mov_b32 s81, {4096*1024*2}
    """)
    def pf_static(idx):
        def f():
            m, ph = idx >> 2, idx & 3
            ptr = {0: 82, 1: 60, 2: 64, 3: 66}[m]; size = {0: 1024*6144*2, 1: 4096*1024*2, 2: 3584*1024*2, 3: 3584*1024*2}[m]
            return [f"s_mov_b32 s76, s{ptr}", f"s_mov_b32 s77, s{ptr+1}", f"s_mov_b32 s63, {size}", f"s_cmp_eq_u32 s80, {ph}",
                    "s_cselect_b32 s78, s63, 0", f"buffer_load_dword v18, v{19 if m == 0 else 17}, s[76:79], 0 offen"]
        return f
    SIDE = 8192
    if side:
        a(f"""
        s_and_b32 s6, s2, 3
        s_lshr_b32 s7, s2, 2
        s_lshl_b32 s8, s6, 8
        s_lshl_b32 s9, s20, 6
        s_add_u32 s8, s8, s9
        v_lshrrev_b32 v56, 3, v1
        v_lshl_add_u32 v56, v56, 3, s8         ; row0
        v_lshlrev_b32 v57, 1, v56              ; c offset
        s_mov_b32 s9, 12288
        v_mul_lo_u32 v56, v56, s9
        v_and_b32 v58, 7, v1
        v_lshlrev_b32 v58, 4, v58
        s_lshl_b32 s9, s7, 7
        s_add_u32 s9, s9, 4096
        v_add3_u32 v56, v56, v58, s9
        s_mov_b32 s84, s82
        s_mov_b32 s85, s83
        s_mov_b32 s86, {1024*6144*2}
        s_mov_b32 s87, 0x20000
        s_lshl_b32 s8, s20, 13
        s_add_u32 s8, s8, {SIDE}
        """)
        srd(a, 4, 100, 2048)
        a("buffer_load_dwordx4 v[60:63], v57, s[4:7], 0 offen")
        a("s_and_b32 s6, s2, 3\ns_lshr_b32 s7, s2, 2")
    def side_dma(idx_expr_static=None):
        if not side: return
        if idx_expr_static is not None:
            a(f"s_add_u32 m0, s8, {idx_expr_static*1024}\ns_mov_b32 s63, {idx_expr_static*12288}\nbuffer_load_dwordx4 v56, s[84:87], s63 offen lds")
        else:
            a("""
            s_sub_u32 s63, s48, 1
            s_lshl_b32 s9, s63, 10
            s_add_u32 m0, s8, s9
            s_mul_i32 s63, s63, 12288
            buffer_load_dwordx4 v56, s[84:87], s63 offen lds
            """)
    def pf_weights():
        side_dma()
        if not pfw: return
        a(f"""
        s_sub_u32 s63, s48, s80            ; 1: wo 3: w1 5: w2
        s_cmp_eq_u32 s63, 1
        s_cselect_b32 s76, s60, s64
        s_cselect_b32 s77, s61, s65
        s_cselect_b32 s78, s81, 0
        s_cmp_eq_u32 s63, 3
        s_cselect_b32 s78, s62, s78
        s_cmp_eq_u32 s63, 5
        s_cselect_b32 s76, s66, s76
        s_cselect_b32 s77, s67, s77
        s_cselect_b32 s78, s62, s78
        buffer_load_dword v18, v17, s[76:79], 0 offen
        """)
    QACC = 64
    def qacc(db, qb): r = QACC+(2*db+qb)*16; return r
    def k_dma(ldsoff_expr, tile_soff):
        a(f"s_add_u32 m0, s30, {ldsoff_expr}")
        a("s_nop 0")
        for j in range(4): a(f"buffer_load_dwordx4 v{12+j}, s[32:35], {tile_soff} offen offset:{1024*j} lds")
    def v_dma(ldsoff_expr, tile_soff):
        a(f"s_add_u32 m0, s30, {ldsoff_expr}")
        a("s_nop 0")
        for j in range(4): a(f"buffer_load_dwordx4 v16, s[36:39], {tile_soff} offen offset:{1024*j} lds")
    g = G16(a, 16, 8192, 4, 4, ACC=QACC, vW=4, vT=44, vA=(52, 53)) if m16 else G256(a, 16, 8192, 4, 4, ACC=QACC, vW=4, vT=8)
    g.issue_stage(0)
    g.issue_stage(1)
    for i in range(128): a(f"v_mov_b32 v{QACC+i}, 0")
    a("s_mov_b32 s46, 0")
    a(f"s_add_u32 s45, s44, 16384")
    extra = []
    def mk(kind, ldsoff, soff, j):
        def f():
            out = []
            if g.cur['m0'] != ('x', ldsoff):
                out += [f"s_add_u32 m0, s30, {ldsoff}", "s_nop 0"]; g.cur['m0'] = ('x', ldsoff)
            if kind == 'K': out.append(f"buffer_load_dwordx4 v{12+j}, s[32:35], {soff} offen offset:{1024*j} lds")
            else: out.append(f"buffer_load_dwordx4 v16, s[36:39], {soff} offen offset:{1024*j} lds")
            return out
        return f
    for (kind, ldsoff, soff) in [('K', KRING, "s44"), ('K', KRING+16384, "s45"), ('V', VRING, "s44")]:
        for j in range(4): extra.append((('X', kind, j), mk(kind, ldsoff, soff, j)))
    g.first_wait2()
    if stamp is not None and "ls" not in dbg: stamp_mid(a, 1); a("s_nop 0")
    ea = {9: [0,1,2,3], 11: [4,5,6,7], 13: [8,9,10,11]}
    if m16:
        def qpost(p_):
            ops = []
            for p in (range(4) if p_ is None else [p_]):
                for m_ in range(2):
                    for j in (2*p, 2*p+1): ops += g.pack_ops(j, m_, 192+32*m_+4*j)
            return ops
        ea = {7: [0,1,2,3], 9: [4,5,6,7], 11: [8,9,10,11]}
        g.stream2(2, gap=2, extra=extra, extra_after=ea, T=QT, post=qpost)
    else:
        g.stream2(2, gap=2, extra=extra, extra_after=ea, T=0)
    a("s_waitcnt vmcnt(0)")
    a("s_barrier")
    if stamp is not None: stamp_mid(a, 2)
    QF = 192
    def qf(qb, ds): r = QF+32*qb+4*ds; return f"v[{r}:{r+3}]"
    if not m16:
        a("s_nop 7\ns_nop 7")
        for qb in range(2):
            for ds in range(8):
                c = qacc(ds >> 1, qb)+8*(ds & 1)
                for j in range(4):
                    a(f"v_cvt_pk_bf16_f32 v{QF+32*qb+4*ds+j}, v{c+2*j}, v{c+2*j+1}")
    def S(b, qb): return 64+32*b+16*qb
    def P(b, qb, ks): return 128+16*b+8*qb+4*ks
    def NM(qb): return 160+16*qb
    def O(db, qb): return (2*db+qb)*16
    RING = 128
    LREG = (40, 41)
    PDI = 4
    def item_reads(it, slot):
        r = RING+4*(slot % 8)
        if it[0] == 'K':
            _, half, ds = it[:3]
            return [f"ds_read_b128 a[{r}:{r+3}], v{20+ds} offset:{half*8192}"]
        _, half, ks, db = it[:4]
        return [f"ds_read_b64_tr_b16 a[{r+2*hf}:{r+2*hf+1}], v{28+db} offset:{(half*32+16*ks+8*hf)*256}" for hf in range(2)]
    def item_mfma(it, slot, qb):
        r = RING+4*(slot % 8)
        if it[0] == 'K':
            _, half, ds, sb, cmode = it
            d = S(sb, qb)
            if ds == 0: c = "0" if cmode == 'zero' else f"v[{NM(qb)}:{NM(qb)+15}]"
            else: c = f"v[{d}:{d+15}]"
            return f"v_mfma_f32_32x32x16_bf16 v[{d}:{d+15}], a[{r}:{r+3}], {qf(qb, ds)}, {c}"
        _, half, ks, db, pb = it
        o = O(db, qb); p = P(pb, qb, ks)
        return f"v_mfma_f32_32x32x16_bf16 a[{o}:{o+15}], a[{r}:{r+3}], v[{p}:{p+3}], a[{o}:{o+15}]"
    def nreads(it): return 1 if it[0] == 'K' else 2
    def softmax_ops(sb, pb):
        ops = []; prev = None
        for qb in range(2):
            for j in range(8):
                e0 = S(sb, qb)+2*j; e1 = e0+1
                ops.append(f"v_exp_f32 v{e0}, v{e0}")
                ops.append(f"v_exp_f32 v{e1}, v{e1}")
                if prev: ops += prev
                prev = [f"v_add_f32 v{LREG[qb]}, v{LREG[qb]}, v{e0}",
                        f"v_cvt_pk_bf16_f32 v{P(pb, qb, j >> 2)+(j & 3)}, v{e0}, v{e1}",
                        f"v_add_f32 v{LREG[qb]}, v{LREG[qb]}, v{e1}"]
        ops.append("s_nop 0"); ops += prev
        return ops
    def emit_items(items, future, valu, extra=None, slot0=0, pre_issued=True):
        seq = items+future
        n = len(items); gaps = 2*n
        vi = 0
        for i, it in enumerate(items):
            young = sum(nreads(x) for x in seq[i+1:i+PDI])
            a(f"s_waitcnt lgkmcnt({young})")
            a(item_mfma(it, slot0+i, 0))
            if extra and i in extra: extra[i]()
            if i+PDI < len(seq):
                for s in item_reads(seq[i+PDI], slot0+i+PDI): a(s)
            tgt = (len(valu)*(2*i+1))//gaps
            while vi < tgt: a(valu[vi]); vi += 1
            a(item_mfma(it, slot0+i, 1))
            tgt = (len(valu)*(2*i+2))//gaps
            while vi < tgt: a(valu[vi]); vi += 1
        assert vi == len(valu)
    def kitems(half, sb, cmode='nm'): return [('K', half, ds, sb, cmode) for ds in range(8)]
    def vitems(half, pb): return [('V', half, ks, db, pb) for ks in range(2) for db in range(4)]

    side_dma(7)
    a(f"L_{L}_att:")
    a("v_mov_b32 v40, 0\nv_mov_b32 v41, 0")
    head1 = kitems(0, 0, 'zero'); head2 = kitems(1, 1)
    for i in range(PDI):
        for s in item_reads(head1[i], i): a(s)
    zinit = [f"v_accvgpr_write_b32 a{i}, 0" for i in range(128)]
    emit_items(head1, head2, zinit, slot0=0)
    a("s_nop 7\ns_nop 7")
    if fallback:
        a(f"s_cmp_eq_u32 s46, 1\ns_cbranch_scc1 L_{L}_havem")
    for qb in range(2):
        s = S(0, qb); m = 42+qb
        a(f"v_max3_f32 v{m}, v{s}, v{s+1}, v{s+2}")
        for j in range(3, 15, 2): a(f"v_max3_f32 v{m}, v{m}, v{s+j}, v{s+j+1}")
        a(f"v_max_f32 v{m}, v{m}, v{s+15}")
    a("v_mov_b32 v44, v42\nv_mov_b32 v45, v43\ns_nop 1")
    a("v_permlane32_swap_b32 v42, v44\nv_permlane32_swap_b32 v43, v45\ns_nop 1")
    a("v_max_f32 v42, v42, v44\nv_max_f32 v43, v43, v45")
    a(f"v_sub_f32 v42, {-BIAS}, v42\nv_sub_f32 v43, {-BIAS}, v43".replace("-30.0", "0xc1f00000"))
    if fallback: a(f"L_{L}_havem:")
    for qb in range(2):
        for j in range(16): a(f"v_mov_b32 v{NM(qb)+j}, v{42+qb}")
        for j in range(16): a(f"v_add_f32 v{S(0,qb)+j}, v{S(0,qb)+j}, v{42+qb}")
    body_a = kitems(0, 0)+vitems(0, 0)
    body_b = kitems(1, 1)+vitems(1, 1)
    def adv_k_first():
        for ds in range(8): a(f"v_add_u32 v{20+ds}, 16384, v{20+ds}")
    emit_items(head2, body_a[:PDI], softmax_ops(0, 0), extra={4: adv_k_first}, slot0=8)
    if stamp is not None and "ls" in dbg:
        a("s_memtime s[68:69]\ns_waitcnt lgkmcnt(0)\ns_sub_u32 s70, s68, s90")
    a(f"""
    s_mov_b32 s47, 16384
    s_mov_b32 s48, 1
    s_add_u32 s49, s44, 16384
    L_{L}_aloop:
    s_add_u32 s50, s47, 16384
    s_cmp_eq_u32 s50, 49152
    s_cselect_b32 s50, 0, s50
    s_add_u32 s51, s50, 16384
    s_cmp_eq_u32 s51, 49152
    s_cselect_b32 s51, 0, s51
    s_sub_u32 s52, s50, s47               ; delta K
    s_sub_u32 s53, s47, s51               ; delta V
    s_add_u32 s45, s49, 16384             ; K(i+1) source
    s_add_u32 s54, s50, {KRING}
    s_add_u32 s55, s47, {VRING}           ; V(i) -> slot i%3
    """)
    def kd(j):
        def f():
            if j == 0: a("s_add_u32 m0, s30, s54\ns_nop 0")
            a(f"buffer_load_dwordx4 v{12+j}, s[32:35], s45 offen offset:{1024*j} lds")
        return f
    def vd(j):
        def f():
            if j == 0: a("s_add_u32 m0, s30, s55\ns_nop 0")
            a(f"buffer_load_dwordx4 v16, s[36:39], s49 offen offset:{1024*j} lds")
        return f
    exa = {0: kd(0), 1: kd(1), 2: kd(2), 3: kd(3), 4: vd(0), 5: vd(1), 6: vd(2), 7: vd(3), 9: pf_weights}
    emit_items(body_a, body_b[:PDI], softmax_ops(1, 1), extra=exa, slot0=0)
    def adv_k():
        for ds in range(8): a(f"v_add_u32 v{20+ds}, s52, v{20+ds}")
    def sync_only():
        a(f"s_waitcnt vmcnt({(1 if pfw else 0)+(1 if side else 0)})")
        a("s_barrier")
    def adv_v():
        for db in range(4): a(f"v_add_u32 v{28+db}, s53, v{28+db}")
    ex = {4: adv_k, 12: lambda: (sync_only(), adv_v())}
    emit_items(body_b, body_a[:PDI], softmax_ops(0, 0), extra=ex, slot0=16)
    a(f"""
    s_mov_b32 s47, s50
    s_add_u32 s49, s49, 16384
    s_add_u32 s48, s48, 1
    s_cmp_lt_u32 s48, 8
    s_cbranch_scc1 L_{L}_aloop
    s_waitcnt lgkmcnt(0)
    """)
    if stamp is not None and "ls" in dbg: stamp_mid(a, 1)
    t1 = vitems(0, 0); t2 = vitems(1, 1)
    for i in range(PDI):
        for s in item_reads(t1[i], i): a(s)
    emit_items(t1, t2[:PDI], softmax_ops(1, 1), slot0=0)
    a("s_nop 1")
    emit_items(t2, [], [], slot0=8)
    if stamp is not None: stamp_mid(a, 3)
    a("""
    v_mov_b32 v44, v40
    v_mov_b32 v45, v41
    s_nop 1
    v_permlane32_swap_b32 v40, v44
    v_permlane32_swap_b32 v41, v45
    s_nop 1
    v_add_f32 v40, v40, v44
    v_add_f32 v41, v41, v45
    """)
    if fallback:
        a(f"""
        s_cmp_eq_u32 s46, 1
        s_cbranch_scc1 L_{L}_fin
        v_mov_b32 v46, 0x6c800000          ; 2^90
        v_cmp_nle_f32 vcc, v40, v46
        v_cmp_nle_f32 s[56:57], v41, v46
        s_or_b64 vcc, vcc, s[56:57]
        s_cmp_lg_u64 vcc, 0
        s_cselect_b32 s58, 1, 0
        v_mov_b32 v46, s58
        v_mov_b32 v47, s30
        v_lshrrev_b32 v47, 10, v47         ; w*4
        s_barrier
        ds_write_b32 v47, v46
        s_waitcnt lgkmcnt(0)
        s_barrier
        v_mov_b32 v47, 0
        ds_read_b128 v[48:51], v47
        s_waitcnt lgkmcnt(0)
        v_or_b32 v48, v48, v49
        v_or_b32 v50, v50, v51
        v_or_b32 v48, v48, v50
        s_nop 0
        v_readfirstlane_b32 s58, v48
        s_cmp_eq_u32 s58, 0
        s_cbranch_scc1 L_{L}_fin
        """)
        a(f"""
        s_barrier
        v_mov_b32 v42, 0xff800000
        v_mov_b32 v43, 0xff800000
        s_mov_b32 s48, 0
        s_mov_b32 s49, s44
        ; K read addresses back to slot 0 : current slot offset is s47 (tile 8 % 3), registers point there
        L_{L}_fbsub:
        """)
        for ds in range(8): a(f"v_subrev_u32 v{20+ds}, s47, v{20+ds}")
        a(f"L_{L}_fbloop:")
        k_dma(KRING, "s49")
        a("s_waitcnt vmcnt(0)\ns_barrier")
        for half in range(2):
            for ds in range(8):
                a(f"ds_read_b128 a[{RING+4*ds}:{RING+4*ds+3}], v{20+ds} offset:{half*8192}")
            a("s_waitcnt lgkmcnt(0)")
            for ds in range(8):
                for qb in range(2):
                    d = S(0, qb); c = "0" if ds == 0 else f"v[{d}:{d+15}]"
                    a(f"v_mfma_f32_32x32x16_bf16 v[{d}:{d+15}], a[{RING+4*ds}:{RING+4*ds+3}], {qf(qb, ds)}, {c}")
            a("s_nop 7\ns_nop 7")
            for qb in range(2):
                s = S(0, qb); m = 42+qb
                for j in range(0, 16, 2): a(f"v_max3_f32 v{m}, v{m}, v{s+j}, v{s+j+1}")
        a(f"""
        s_barrier
        s_add_u32 s49, s49, 16384
        s_add_u32 s48, s48, 1
        s_cmp_lt_u32 s48, 8
        s_cbranch_scc1 L_{L}_fbloop
        v_mov_b32 v44, v42
        v_mov_b32 v45, v43
        s_nop 1
        v_permlane32_swap_b32 v42, v44
        v_permlane32_swap_b32 v43, v45
        s_nop 1
        v_max_f32 v42, v42, v44
        v_max_f32 v43, v43, v45
        v_sub_f32 v42, 0, v42
        v_sub_f32 v43, 0, v43
        s_mov_b32 s46, 1
        """)
        for db in range(4): a(f"v_subrev_u32 v{28+db}, 16384, v{28+db}")
        a(f"s_add_u32 s45, s44, 16384")
        k_dma(KRING, "s44"); k_dma(KRING+16384, "s45"); v_dma(VRING, "s44")
        a(f"""
        s_waitcnt vmcnt(0)
        s_barrier
        s_branch L_{L}_att
        L_{L}_fin:
        """)
    a("""
    v_rcp_f32 v44, v40
    v_rcp_f32 v45, v40
    v_rcp_f32 v46, v41
    v_rcp_f32 v47, v41
    s_nop 7
    s_nop 7
    """)
    elog = VmLog()
    side_ops = []
    if side:
        srd(a, 36, 10, 4*4096*4, WS_PB)
        a("s_mov_b32 s27, 0xffff0000\ns_mov_b32 s9, 0xbfb8aa3b")
        so = side_ops
        a("v_lshlrev_b32 v125, 4, v1\nv_add_u32 v125, s8, v125\ns_waitcnt vmcnt(0)")
        for i in range(8): a(f"ds_read_b128 v[{128+4*i}:{131+4*i}], v125 offset:{1024*i}")
        for j in range(4):
            so.append(f"v_lshlrev_b32 v{164+2*j}, 16, v{60+j}")
            so.append(f"v_and_b32 v{165+2*j}, s27, v{60+j}")
        for j in range(8): so.append(f"v_mul_f32 v{172+j}, s9, v{164+j}")
        for j in range(8): so.append(f"v_exp_f32 v{172+j}, v{172+j}")
        for j in range(8): so.append(f"v_add_f32 v{172+j}, 1.0, v{172+j}")
        for j in range(8): so.append(f"v_rcp_f32 v{172+j}, v{172+j}")
        for j in range(8): so.append(f"v_mul_f32 v{164+j}, v{164+j}, v{172+j}")
        for j in range(4): so.append(f"v_cvt_pk_bf16_f32 v{160+j}, v{164+2*j}, v{165+2*j}")
        for j in range(4):
            so.append(f"v_lshlrev_b32 v{164+2*j}, 16, v{160+j}")
            so.append(f"v_and_b32 v{165+2*j}, s27, v{160+j}")
        for e in range(8): so.append(f"v_mov_b32 v{180+e}, 0")
        so.append("s_waitcnt lgkmcnt(0)")
        for i in range(8):
            for d in range(4):
                r = 128+4*i+d
                so.append(f"v_lshlrev_b32 v172, 16, v{r}")
                so.append(f"v_and_b32 v173, s27, v{r}")
                so.append(f"v_fmac_f32 v{180+2*d}, v{164+i}, v172")
                so.append(f"v_fmac_f32 v{181+2*d}, v{164+i}, v173")
        so.append("s_nop 1")
        for e in range(8): so.append(f"v_add_f32_dpp v{180+e}, v{180+e}, v{180+e} row_ror:8 row_mask:0xf bank_mask:0xf")
        for sw in ["v_permlane16_swap_b32", "v_permlane32_swap_b32"]:
            for e in range(8): so.append(f"v_mov_b32 v{172+e}, v{180+e}")
            so.append("s_nop 1")
            for e in range(8): so.append(f"{sw} v{180+e}, v{172+e}")
            so.append("s_nop 1")
            for e in range(8): so.append(f"v_add_f32 v{180+e}, v{180+e}, v{172+e}")
    nside = len(side_ops); per = (nside+13)//14 if nside else 0
    def side_emit(n):
        for _ in range(n):
            if not side_ops: return
            o = side_ops.pop(0)
            if isinstance(o, tuple): a(f"s_waitcnt vmcnt({elog.wait_for(lambda x: x == o[1])})")
            else: a(o)
    a(f"""
    s_mul_i32 s26, s25, {4096*64}
    s_lshl_b32 s31, s24, 13
    s_add_u32 s26, s26, s31
    """)
    for qb in range(2):
        if qb == 1: a(f"s_add_u32 s26, s26, {4096*64-4096}")
        for db in range(4):
            o = O(db, qb)
            for j in range(16): a(f"v_accvgpr_read_b32 v{64+j}, a{o+j}")
            for j in range(0, 16, 2): a(f"v_pk_mul_f32 v[{64+j}:{65+j}], v[{64+j}:{65+j}], v[{44+2*qb}:{45+2*qb}]")
            t = 80+8*(db & 1)
            for j in range(8): a(f"v_cvt_pk_bf16_f32 v{t+j}, v{64+2*j}, v{64+2*j+1}")
            if db == 2: a("s_add_u32 s26, s26, 4096")
            a(f"buffer_store_dwordx4 v[{t}:{t+3}], v2, s[40:43], s26 offen offset:{(db&1)*2048}{stflag}"); elog.issue(('s',))
            side_emit(per)
            a(f"buffer_store_dwordx4 v[{t+4}:{t+7}], v2, s[40:43], s26 offen offset:{(db&1)*2048+1024}{stflag}"); elog.issue(('s',))
            side_emit(per)
    side_emit(10000)
    if side:
        a(f"""
        s_lshl_b32 s9, s20, 8
        v_lshlrev_b32 v125, 5, v1
        v_add_u32 v125, s9, v125               ; w*256 + lane*32
        v_cmp_gt_u32 vcc, 8, v1
        s_and_saveexec_b64 s[56:57], vcc
        ds_write_b128 v125, v[180:183] offset:1024
        ds_write_b128 v125, v[184:187] offset:1040
        s_mov_b64 exec, s[56:57]
        s_waitcnt lgkmcnt(0)
        s_barrier
        s_cmp_lg_u32 s20, 0
        s_cbranch_scc1 L_{L}_side_done
        v_lshlrev_b32 v125, 2, v1
        ds_read_b32 v172, v125 offset:1024
        ds_read_b32 v173, v125 offset:1280
        ds_read_b32 v174, v125 offset:1536
        ds_read_b32 v175, v125 offset:1792
        s_lshl_b32 s9, s6, 14
        s_lshl_b32 s8, s7, 8
        s_add_u32 s9, s9, s8
        s_waitcnt lgkmcnt(0)
        v_add_f32 v172, v172, v173
        v_add_f32 v174, v174, v175
        v_add_f32 v172, v172, v174
        buffer_store_dword v172, v125, s[36:39], s9 offen
        L_{L}_side_done:
        """)
    if stamp is not None:
        stamp_mid(a, 4); stamp_end2(a, stamp, 10)
    a(f"""
    L_{L}_done:
    s_endpgm
    """)
    txt = a.text()
    return (name, (256,1,1), (256,1,1), 163840), txt, kernel_desc(name, 256+192, accum=256)
```

```python
from asmlib import *
from gen_small import *
from gen_gemm import lane_common, tr_lane_terms, Filt
from stream import *
import os

WS_P1 = 0x5000000
WS_P2 = WS_P1 if REUSE else 0x6000000
PSTRIDE = int(os.environ.get('PSTRIDE', str(0x400000)), 0)

def g256_setup_w(a, w_stride, vW=4, vT=8, nbase=1):
    a(f"""
    v_lshrrev_b32 v32, 4, v1               ; L>>4
    v_and_b32 v33, 15, v1                  ; p
    v_lshlrev_b32 v34, 2, v32
    v_xor_b32 v34, v33, v34
    v_lshlrev_b32 v34, 4, v34
    v_mul_u32_u24 v35, {w_stride}, v32
    v_add_u32 v{vW}, v35, v34
    v_add_u32 v{vW+1}, {4*w_stride-1024}, v{vW}
    v_add_u32 v{vW+2}, {8*w_stride-2048}, v{vW}
    v_add_u32 v{vW+3}, {12*w_stride-3072}, v{vW}
    """)
def g256_setup_tr(a, vT=8, nbase=1):
    tr_lane_terms(a, 32, 33, 34, 35)
    a("""
    v_lshrrev_b32 v35, 1, v34              ; sw>>1
    v_lshl_add_u32 v35, v33, 1, v35        ; c0
    v_bfe_u32 v36, v1, 2, 2                ; i>>2
    v_lshlrev_b32 v37, 2, v36              ; swz
    v_and_b32 v34, 1, v34
    v_lshlrev_b32 v34, 3, v34              ; half8*8
    v_lshl_add_u32 v38, v32, 8, v34
    """)
    for db in range(4):
        a(f"""
        v_or_b32 v42, {4*db}, v35
        v_xor_b32 v42, v42, v37
        v_lshl_add_u32 v{vT+db}, v42, 4, v38
        """)
        for b in range(1, nbase): a(f"v_add_u32 v{vT+4*b+db}, {65536*b}, v{vT+db}")

class G256:
    def __init__(self, a, KT, w_stride, NSLOT, NBUF, ACC=64, vW=4, vT=8):
        self.a = a; self.KT = KT; self.ws = w_stride; self.NSLOT = NSLOT; self.NBUF = NBUF; self.ACC = ACC
        self.vW = vW; self.vT = vT; self.FR = 32*NBUF
        self.log = VmLog(); self.cur = dict(m0=None, ws=0, as_=0)
        g = self
        def wdma(s, j):
            out = []
            if g.cur['ws'] != s:
                out.append(f"s_add_u32 s28, s28, {(s-g.cur['ws'])*64*g.ws}"); g.cur['ws'] = s
            want = (s % NSLOT)*16384
            if g.cur['m0'] != want:
                out.append(f"s_add_u32 m0, s30, {want}"); out.append("s_nop 0"); g.cur['m0'] = want
            out.append(f"buffer_load_dwordx4 v{g.vW+j}, s[12:15], s28 offen offset:{1024*j} lds")
            return out
        wdma.n = 4
        self.wdma = wdma
    def hbuf(self, buf, qb, ks): r = 32*buf+16*qb+4*ks; return f"a[{r}:{r+3}]"
    def actload(self, s, ks, tb):
        pre = ""
        if self.cur['as_'] != s:
            pre = f"s_mov_b32 s29, {s*4096}\n"; self.cur['as_'] = s
        return pre+f"buffer_load_dwordx4 {self.hbuf(s % self.NBUF, tb, ks)}, v{2+tb}, s[16:19], s29 offen offset:{1024*ks}"
    def qacc(self, db, qb): return self.ACC+(2*db+qb)*16
    def wfr(self, q, db): return self.FR+(q % 2)*16+4*db
    def wreads(self, t, ks):
        q = 4*t+ks; slot = t % self.NSLOT; out = []
        for db in range(4):
            r = self.wfr(q, db)
            for hf in range(2):
                out.append(f"ds_read_b64_tr_b16 a[{r+2*hf}:{r+2*hf+1}], v{self.vT+4*(slot//4)+db} offset:{(slot%4)*16384+(16*ks+4*hf)*256}")
        return out
    def mfma(self, t, ks, db, qb):
        r = self.wfr(4*t+ks, db); c = self.qacc(db, qb)
        return f"v_mfma_f32_32x32x16_bf16 v[{c}:{c+15}], a[{r}:{r+3}], {self.hbuf(t % self.NBUF, qb, ks)}, v[{c}:{c+15}]"
    def issue_stage(self, s):
        a = self.a
        for j in range(4):
            for l in self.wdma(s, j): a(l)
            self.log.issue(('W', s, j))
            for tb in range(2):
                a(self.actload(s, j, tb)); self.log.issue(('A', s, j, tb))
    def first_wait(self):
        a = self.a
        a(f"s_waitcnt vmcnt({self.log.wait_for(lambda x: x[0] in 'WA' and x[1] == 0)})")
        a("s_barrier")
        for s in self.wreads(0, 0): a(s)
    def read_item(self, t, ks, db, ring):
        r = self.FR+4*ring; slot = t % self.NSLOT
        return [f"ds_read_b64_tr_b16 a[{r+2*hf}:{r+2*hf+1}], v{self.vT+4*(slot//4)+db} offset:{(slot%4)*16384+(16*ks+4*hf)*256}" for hf in range(2)]
    def mfma2(self, t, ks, db, qb, ring):
        r = self.FR+4*ring; c = self.qacc(db, qb)
        return f"v_mfma_f32_32x32x16_bf16 v[{c}:{c+15}], a[{r}:{r+3}], {self.hbuf(t % self.NBUF, qb, ks)}, v[{c}:{c+15}]"
    def first_wait2(self):
        a = self.a
        a(f"s_waitcnt vmcnt({self.log.wait_for(lambda x: x[0] in 'WA' and x[1] == 0)})")
        a("s_barrier")
        for db in range(4):
            for s in self.read_item(0, 0, db, db): a(s)
    def stream2(self, pre, gap=2, extra=None, extra_after=None, T=0, post=None):
        emit_stream2(self.a, self.KT, self.NSLOT, self.NBUF, self.read_item, self.mfma2, self.wdma, self.actload, self.log, pre, gap=gap, extra=extra, extra_after=extra_after, T=T, post=post)
    def stream(self, pre, gap=2, extra=None, extra_after=None):
        emit_stream(self.a, self.KT, 4, 2, self.NSLOT, self.NBUF, self.wreads, self.mfma, self.wdma, self.actload, self.log, pre, gap=gap, extra=extra, extra_after=extra_after)

def g16_setup_w(a, w_stride, vW=4):
    a(f"""
    v_lshrrev_b32 v32, 4, v1               ; L>>4 = k&3
    v_and_b32 v33, 15, v1                  ; p
    v_lshlrev_b32 v34, 1, v32
    v_xor_b32 v34, v33, v34                ; j' = 0,1
    v_xor_b32 v36, 8, v34                  ; j' = 2,3
    v_lshlrev_b32 v34, 4, v34
    v_lshlrev_b32 v36, 4, v36
    v_mul_u32_u24 v35, {w_stride}, v32
    v_add_u32 v{vW}, v35, v34
    v_add_u32 v{vW+1}, {4*w_stride-1024}, v{vW}
    v_add_u32 v{vW+2}, v35, v36
    v_add_u32 v{vW+3}, {12*w_stride-3072}, v{vW+2}
    v_add_u32 v{vW+2}, {8*w_stride-2048}, v{vW+2}
    """)
def g16_setup_tr(a, vT, nbase, rot=None):
    a(f"""
    v_lshrrev_b32 v32, 4, v1               ; g
    v_bfe_u32 v33, v1, 2, 2                ; i>>2
    v_lshl_add_u32 v34, v32, 3, v33        ; row = 8g + (i>>2)
    v_and_b32 v35, 1, v32
    v_lshl_or_b32 v35, v35, 2, v33         ; f
    v_bfe_u32 v36, v1, 1, 1                ; cb
    v_lshlrev_b32 v36, 4, v36
    v_and_b32 v37, 1, v1
    v_lshl_or_b32 v36, v37, 3, v36
    v_lshl_add_u32 v36, v34, 8, v36        ; row*256 + ..
    """)
    for j in range(8):
        if rot is None: a(f"v_xor_b32 v37, {j}, v35")
        else:
            a(f"s_add_u32 s45, s{rot}, {1+(j >> 1)}\ns_and_b32 s45, s45, 3\ns_lshl_b32 s45, s45, 1\ns_or_b32 s45, s45, {j & 1}")
            a("v_xor_b32 v37, s45, v35")
        a(f"v_lshl_add_u32 v{vT+j}, v37, 5, v36")
        for b in range(1, nbase): a(f"v_add_u32 v{vT+8*b+j}, {65536*b}, v{vT+j}")

class G16(G256):
    def __init__(self, a, KT, w_stride, NSLOT, NBUF, ACC=64, vW=4, vT=200, vA=(16, 17)):
        super().__init__(a, KT, w_stride, NSLOT, NBUF, ACC, vW, vT)
        self.vA = vA
    def abuf(self, buf, ks, tb): r = 32*buf+16*ks+4*tb; return f"a[{r}:{r+3}]"
    def actload(self, s, ks, tb):
        pre = ""
        if self.cur['as_'] != s:
            pre = f"s_mov_b32 s29, {s*4096}\n"; self.cur['as_'] = s
        return pre+f"buffer_load_dwordx4 {self.abuf(s % self.NBUF, ks, tb)}, v{self.vA[tb >> 1]}, s[16:19], s29 offen offset:{2048*ks+256*(tb & 1)}"
    def acc(self, j, tb): return self.ACC+(j*4+tb)*4
    def read_item(self, t, ks, j, ring):
        r = self.FR+4*ring; slot = t % self.NSLOT
        return [f"ds_read_b64_tr_b16 a[{r+2*hf}:{r+2*hf+1}], v{self.vT+8*(slot//4)+j} offset:{(slot%4)*16384+(32*ks+4*hf)*256}" for hf in range(2)]
    def mfma2(self, t, ks, j, tb, ring):
        r = self.FR+4*ring; c = self.acc(j, tb)
        return f"v_mfma_f32_16x16x32_bf16 v[{c}:{c+3}], a[{r}:{r+3}], {self.abuf(t % self.NBUF, ks, tb)}, v[{c}:{c+3}]"
    def issue_stage(self, s):
        a = self.a
        for j in range(4):
            for l in self.wdma(s, j): a(l)
            self.log.issue(('W', s, j))
            for tb in (2*(j & 1), 2*(j & 1)+1):
                a(self.actload(s, j >> 1, tb)); self.log.issue(('A', s, j >> 1, tb))
    def first_wait2(self):
        a = self.a
        a(f"s_waitcnt vmcnt({self.log.wait_for(lambda x: x[0] in 'WA' and x[1] == 0)})")
        a("s_barrier")
        for j in range(4):
            for s in self.read_item(0, 0, j, j): a(s)
    def stream2(self, pre, gap=2, extra=None, extra_after=None, T=0, post=None, fill=None):
        return emit_stream2(self.a, self.KT, self.NSLOT, self.NBUF, self.read_item, self.mfma2, self.wdma, self.actload, self.log, pre, gap=gap,
                     extra=extra, extra_after=extra_after, T=T, post=post, TB=4, NB=8, NKS=2, fill=fill)
    def pack_ops(self, j, m, t, relu=False):
        x = self.acc(j, 2*m); y = self.acc(j, 2*m+1)
        ops = [f"v_cvt_pk_bf16_f32 v{t}, v{x}, v{x+1}", f"v_cvt_pk_bf16_f32 v{t+1}, v{x+2}, v{x+3}",
               f"v_cvt_pk_bf16_f32 v{t+2}, v{y}, v{y+1}", f"v_cvt_pk_bf16_f32 v{t+3}, v{y+2}, v{y+3}"]
        if relu: ops += [f"v_pk_max_i16 v{t+k}, v{t+k}, 0" for k in range(4)]
        ops += ["s_nop 1", f"v_permlane16_swap_b32 v{t}, v{t+2}", f"v_permlane16_swap_b32 v{t+1}, v{t+3}"]
        return ops

def gen_g256(name, kind, stamp=None, NSLOT=6, NBUF=5, pre=2, gap=2, dbg="", stflag=" sc0 sc1", T=0, touch=True, m16=False, xchg=False, spin_max=200000):
    a = Filt(dbg); L = name
    assert not xchg or (m16 and kind == 'ffn2' and T > 0)
    cfg = {
      "oproj": dict(KT=16, w_arg=32, ws=2048, wbytes=4096*1024*2, act=WS_OF, atb=4096*64, nwg=256),
      "ffn1":  dict(KT=16, w_arg=48, ws=7168, wbytes=1024*3584*2, act=WS_H2F, atb=1024*64, nwg=224),
      "ffn2":  dict(KT=14, w_arg=56, ws=2048, wbytes=3584*1024*2, act=WS_HIDF, atb=3584*64, nwg=256),
    }[kind]
    KT, ws, atb = cfg["KT"], cfg["ws"], cfg["atb"]
    kernel_begin(a, name)
    a(f"""
    s_cmp_ge_u32 s2, {cfg["nwg"]}
    s_cbranch_scc1 L_{L}_done
    s_load_dwordx2 s[4:5], s[0:1], {cfg["w_arg"]}
    s_load_dwordx2 s[6:7], s[0:1], 96
    s_load_dwordx4 s[60:63], s[0:1], 48    ; w1 s[60:61], w2 s[62:63]
    s_load_dwordx2 s[8:9], s[0:1], 80      ; out
    """)
    if stamp is not None: stamp_begin(a)
    lane_common(a)
    a("""
    s_and_b32 s21, s2, 7
    s_lshr_b32 s22, s2, 3
    s_and_b32 s23, s21, 3                  ; q
    s_lshr_b32 s24, s21, 2
    s_lshl_b32 s24, s24, 2                 ; 4*th
    """)
    if kind == "ffn1":
        a("""
        s_mul_i32 s25, s22, 37
        s_lshr_b32 s25, s25, 8
        s_add_u32 s24, s24, s25
        s_mul_i32 s25, s25, 7
        s_sub_u32 s25, s22, s25            ; idx % 7
        s_mul_i32 s26, s23, 7
        s_add_u32 s25, s25, s26
        s_mov_b32 s26, 0                   ; k offset rows
        s_mov_b32 s27, 0
        """)
    else:
        kq = KT*64
        a(f"""
        s_lshr_b32 s25, s22, 3
        s_add_u32 s24, s24, s25
        s_and_b32 s25, s22, 7              ; n tile
        s_mul_i32 s26, s23, {kq}           ; k offset rows
        s_mul_i32 s27, s23, {kq*64}
        s_lshl_b32 s36, s24, 3
        s_add_u32 s36, s36, s25
        """)
    a(f"""
    s_lshl_b32 s24, s24, 3
    s_lshl_b32 s31, s20, 1
    s_add_u32 s24, s24, s31
    v_add_u32 v3, {atb}, v2
    """)
    if m16:
        g16_setup_w(a, ws)
        a(f"""
        v_lshrrev_b32 v16, 4, v1
        v_lshlrev_b32 v16, 9, v16
        v_and_b32 v17, 15, v1
        v_lshl_add_u32 v16, v17, 4, v16        ; (l>>4)*512 + (l&15)*16
        v_add_u32 v17, {atb}, v16
        """)
    else: g256_setup_w(a, ws)
    a("s_waitcnt lgkmcnt(0)")
    if stamp is not None: stamp_mid(a, 0)
    srd(a, 12, 4, cfg["wbytes"])
    a(f"""
    s_mul_i32 s31, s24, {atb}
    s_add_u32 s31, s31, s27
    s_add_u32 s31, s31, {cfg["act"]}
    s_add_u32 s16, s6, s31
    s_addc_u32 s17, s7, 0
    s_mov_b32 s18, {atb+KT*4096}
    s_mov_b32 s19, 0x20000
    s_lshl_b32 s31, s20, 4
    s_add_u32 s31, s31, s26
    s_mul_i32 s28, s31, {ws}
    s_lshl_b32 s31, s25, 8
    s_add_u32 s28, s28, s31                ; W soffset
    s_mov_b32 s29, 0
    s_lshl_b32 s30, s20, 12
    """)
    g = G16(a, KT, ws, NSLOT, NBUF) if m16 else G256(a, KT, ws, NSLOT, NBUF)
    g.issue_stage(0)
    if m16: g16_setup_tr(a, 200, (NSLOT+3)//4, rot=(23 if xchg else None))
    else: g256_setup_tr(a, 8, (NSLOT+3)//4)
    for s in range(1, pre): g.issue_stage(s)
    for i in range(128): a(f"v_mov_b32 v{64+i}, 0")
    if kind == "ffn1":
        srd(a, 40, 6, 2048*3584*2, WS_HIDF); otb = 3584*64
        a(f"s_mul_i32 s26, s24, {otb}\ns_lshl_b32 s27, s25, 13\ns_add_u32 s26, s26, s27")
    else:
        otb = 65536
        a(f"""
        s_mul_i32 s31, s23, {PSTRIDE}
        s_add_u32 s31, s31, {WS_P1 if kind == "oproj" else WS_P2}
        s_add_u32 s40, s6, s31
        s_addc_u32 s41, s7, 0
        s_mov_b32 s42, {2048*1024*2}
        s_mov_b32 s43, 0x20000
        s_lshl_b32 s26, s24, 16
        s_lshl_b32 s27, s25, 13
        s_add_u32 s26, s26, s27
        """)
    a(f"s_add_u32 s27, s26, {otb}")
    a("s_add_u32 s34, s26, 4096\ns_add_u32 s35, s27, 4096")
    def post16(p_):
        ops = []
        for p in (range(4) if p_ is None else [p_]):
            for m_ in range(2):
                for j in (2*p, 2*p+1):
                    t = 20+4*((2*m_+j) % 4)
                    ops += g.pack_ops(j, m_, t, relu=(kind == "ffn1"))
                    so = ["s26", "s27"][m_] if j < 4 else ["s34", "s35"][m_]
                    ops.append("s_nop 0")
                    ops.append(f"buffer_store_dwordx4 v[{t}:{t+3}], v2, s[40:43], {so} offen offset:{(j & 3)*1024}{stflag}")
        return ops
    def post(db):
        if m16: return post16(db)
        dbs = range(4) if db is None else [db]
        ops = []
        for d_ in dbs:
            for qb in range(2):
                c = g.qacc(d_, qb); t = 20+8*qb
                for j in range(8):
                    ops.append(f"v_cvt_pk_bf16_f32 v{t+j}, v{c+2*j}, v{c+2*j+1}")
                    if kind == "ffn1": ops.append(f"v_pk_max_i16 v{t+j}, v{t+j}, 0")
                so = ["s26", "s27"][qb] if d_ < 2 else ["s34", "s35"][qb]
                ops.append(f"buffer_store_dwordx4 v[{t}:{t+3}], v2, s[40:43], {so} offen offset:{(d_&1)*2048}{stflag}")
                ops.append(f"buffer_store_dwordx4 v[{t+4}:{t+7}], v2, s[40:43], {so} offen offset:{(d_&1)*2048+1024}{stflag}")
        return ops
    if xchg:
        srd(a, 40, 6, 64*16*16384, WS_P1)
        srd(a, 44, 6, 2048*1024*2, WS_X1F)
        srd(a, 48, 6, 4096, WS_GB)
        srd(a, 52, 8, 2048*1024*2)
        a(f"""
        s_add_u32 s56, s6, {WS_FL}
        s_addc_u32 s57, s7, 0
        s_lshl_b32 s58, s20, 12            ; w*4096
        """)
        for b in range(3):
            a(f"""
            s_add_u32 s31, s23, {1+b}
            s_and_b32 s31, s31, 3
            s_lshl_b32 s59, s36, 2
            s_add_u32 s59, s59, s31
            s_lshl_b32 s59, s59, 2
            s_add_u32 s59, s59, s23
            s_lshl_b32 s59, s59, 14
            s_add_u32 s{37+b}, s59, s58
            """)
        for r in range(3):
            a(f"""
            s_add_u32 s31, s23, {1+r}
            s_and_b32 s31, s31, 3
            s_lshl_b32 s59, s36, 2
            s_add_u32 s59, s59, s23
            s_lshl_b32 s59, s59, 2
            s_add_u32 s59, s59, s31
            s_lshl_b32 s59, s59, 14
            s_add_u32 s{64+r}, s59, s58
            """)
        a(f"""
        s_lshl_b32 s31, s24, 16
        s_lshl_b32 s59, s25, 13
        s_add_u32 s31, s31, s59
        s_lshl_b32 s59, s23, 11
        s_add_u32 s67, s31, s59            ; m = 0
        s_add_u32 s31, s67, 65536          ; m = 1
        buffer_load_dwordx4 v[216:219], v2, s[44:47], s67 offen
        buffer_load_dwordx4 v[220:223], v2, s[44:47], s67 offen offset:1024
        buffer_load_dwordx4 v[224:227], v2, s[44:47], s31 offen
        buffer_load_dwordx4 v[228:231], v2, s[44:47], s31 offen offset:1024
        v_lshrrev_b32 v248, 5, v1
        v_lshlrev_b32 v248, 5, v248        ; hh*32
        s_lshl_b32 s31, s25, 9
        s_lshl_b32 s59, s23, 7
        s_add_u32 s31, s31, s59
        buffer_load_dwordx4 v[232:235], v248, s[48:51], s31 offen
        buffer_load_dwordx4 v[236:239], v248, s[48:51], s31 offen offset:16
        buffer_load_dwordx4 v[240:243], v248, s[48:51], s31 offen offset:64
        buffer_load_dwordx4 v[244:247], v248, s[48:51], s31 offen offset:80
        """)
        for k in range(8): g.log.issue(('E', k))
        for b, reg in enumerate([246+0, 0, 0]): pass
        for b, reg in enumerate([250, 39, 251]):
            a(f"""
            s_add_u32 s31, s23, {1+b}
            s_and_b32 s31, s31, 3
            s_lshl_b32 s59, s36, 2
            s_add_u32 s59, s59, s31
            s_lshl_b32 s59, s59, 2
            s_add_u32 s59, s59, s20
            s_lshl_b32 s59, s59, 2
            s_add_u32 s59, s59, s23
            s_lshl_b32 s59, s59, 2
            v_mov_b32 v{reg}, s59
            """)
        a("""
        s_lshl_b32 s59, s36, 2
        s_add_u32 s59, s59, s23
        s_lshl_b32 s59, s59, 2
        s_add_u32 s59, s59, s20
        s_lshl_b32 s59, s59, 4
        v_mov_b32 v252, s59
        v_mov_b32 v249, 1
        s_add_u32 s31, s23, 1
        s_and_b32 s31, s31, 3
        """)
        for k in range(4):
            a(f"""
            s_cmp_eq_u32 s23, {k}
            s_cselect_b32 s58, 1, 0
            v_mov_b32 v{48+k}, s58
            s_cmp_eq_u32 s31, {k}
            s_cselect_b32 s58, 1, s58
            v_mov_b32 v{44+k}, s58
            """)
        n_norm = (KT-T)*2*8; per_pass = T*2*2; SIG1 = int(os.environ.get('SIG1', '10'))
        def sig(b, reg):
            def f(log):
                n = log.wait_for(lambda x: x[0] == 'S' and x[1] == b)
                log.issue(('F', b))
                return [f"s_waitcnt vmcnt({n})", f"global_store_dword v{reg}, v249, s[56:57] sc1"]
            return f
        fill = {n_norm+3*per_pass: sig(0, 250), n_norm+3*per_pass+SIG1: sig(1, 39)}
        def postx(p):
            if p == 3: return []
            ops = []
            for m_ in range(2):
                for e in range(2):
                    t = 20+4*(2*m_+e)
                    ops += g.pack_ops(2*p+e, m_, t)
                    ops.append("s_nop 0")
                    ops.append(f"buffer_store_dwordx4 v[{t}:{t+3}], v2, s[40:43], s{37+p} offen offset:{(2*m_+e)*1024} sc1")
            return ops
        post = postx
    extra = []; ea = {}
    nxt = {"oproj": 60, "ffn1": 62}.get(kind)
    if touch and nxt is not None:
        nw = cfg["nwg"]*4
        lines = 3584*1024*2//128
        per = -(-lines//(nw*64))
        a(f"""
        s_lshl_b32 s46, s2, 2
        s_add_u32 s46, s46, s20
        s_mul_i32 s46, s46, {per*8192}
        v_lshlrev_b32 v18, 7, v1
        v_add_u32 v18, s46, v18
        s_mov_b32 s48, s{nxt}
        s_mov_b32 s49, s{nxt+1}
        s_mov_b32 s51, 0x20000
        s_and_b32 s47, s2, 3
        s_mov_b32 s52, {3584*1024*2}
        """)
        def mkt(ph, k):
            def f():
                return [f"s_cmp_eq_u32 s47, {ph}", "s_cselect_b32 s50, s52, 0", f"s_mov_b32 s53, {k*8192}", "buffer_load_dword v19, v18, s[48:51], s53 offen"]
            return f
        for ph in range(4):
            for k in range(per):
                extra.append((('X', 'pf', ph, k), mkt(ph, k)))
                ea.setdefault(3+2*ph, []).append(len(extra)-1)
    g.first_wait2()
    if stamp is not None: stamp_mid(a, 1)
    a.inloop = True
    g.stream2(pre, gap, T=T, post=post, extra=extra, extra_after=ea, **(dict(fill=fill) if xchg else {}))
    a.inloop = False
    if stamp is not None: stamp_mid(a, 2)
    if xchg:
        a(f"s_waitcnt vmcnt({g.log.wait_for(lambda x: x[0] == 'S' and x[1] == 2)})")
        a("global_store_dword v251, v249, s[56:57] sc1")
        if stamp is not None and "xs" in dbg: stamp_mid(a, 0)
        for m_ in range(2):
            for e in range(2):
                for o in g.pack_ops(6+e, m_, 20+4*(2*m_+e)): a(o)
        def reduce_flags(mask, dst):
            return f"""
            v_or_b32 v52, v40, v{mask}
            v_or_b32 v53, v41, v{mask+1}
            v_or_b32 v54, v42, v{mask+2}
            v_or_b32 v55, v43, v{mask+3}
            v_and_b32 v52, v52, v53
            v_and_b32 v54, v54, v55
            v_and_b32 v52, v52, v54
            s_nop 0
            v_readfirstlane_b32 {dst}, v52
            """
        def data_loads(rs):
            for r in rs:
                for k in range(4):
                    a(f"buffer_load_dwordx4 v[{64+16*r+4*k}:{67+16*r+4*k}], v2, s[40:43], s{64+r} offen offset:{k*1024} sc1")
        a(f"""
        s_mov_b32 s59, 0
        L_{L}_polla:
        global_load_dwordx4 v[40:43], v252, s[56:57] sc1
        s_waitcnt vmcnt(0)
        """)
        a(reduce_flags(44, "s58"))
        a(f"""
        s_cmp_eq_u32 s58, 1
        s_cbranch_scc1 L_{L}_polleda
        s_add_u32 s59, s59, 1
        s_cmp_lt_u32 s59, {spin_max}
        s_cbranch_scc0 L_{L}_polleda
        s_sleep 1
        s_branch L_{L}_polla
        L_{L}_polleda:
        """)
        a(reduce_flags(48, "s58"))
        data_loads([1, 2])
        if stamp is not None and "xs" in dbg: stamp_mid(a, 1)
        a(f"""
        s_cmp_eq_u32 s58, 1
        s_cbranch_scc1 L_{L}_polledb
        s_mov_b32 s59, 0
        L_{L}_pollb:
        global_load_dwordx4 v[40:43], v252, s[56:57] sc1
        s_waitcnt vmcnt(0)
        """)
        a(reduce_flags(48, "s58"))
        a(f"""
        s_cmp_eq_u32 s58, 1
        s_cbranch_scc1 L_{L}_polledb
        s_add_u32 s59, s59, 1
        s_cmp_lt_u32 s59, {spin_max}
        s_cbranch_scc0 L_{L}_polledb
        s_sleep 1
        s_branch L_{L}_pollb
        L_{L}_polledb:
        """)
        data_loads([0])
        a("""
        v_and_b32 v36, 31, v1
        v_lshlrev_b32 v36, 11, v36
        v_lshrrev_b32 v37, 5, v1
        v_lshl_add_u32 v36, v37, 4, v36    ; (l&31)*2048 + hh*16
        s_lshl_b32 s31, s24, 16
        s_lshl_b32 s59, s25, 8
        s_add_u32 s31, s31, s59
        s_lshl_b32 s59, s23, 6
        s_add_u32 s31, s31, s59            ; m = 0
        s_add_u32 s59, s31, 65536          ; m = 1
        s_mov_b32 s58, 0xffff0000
        """)
        a("s_waitcnt vmcnt(4)")
        for k in range(4):
            own = 20+4*k
            for d in range(4):
                lo = 112+8*k+2*d; hi = lo+1
                a(f"v_lshlrev_b32 v{lo}, 16, v{own+d}")
                a(f"v_and_b32 v{hi}, s58, v{own+d}")
                for r in (1, 2):
                    src = 64+16*r+4*k+d
                    a(f"v_lshlrev_b32 v42, 16, v{src}")
                    a(f"v_and_b32 v43, s58, v{src}")
                    a(f"v_pk_add_f32 v[{lo}:{hi}], v[{lo}:{hi}], v[42:43]")
        a("s_waitcnt vmcnt(0)")
        if stamp is not None and "xs" in dbg: stamp_mid(a, 4)
        for k in range(4):
            m_, e = k >> 1, k & 1
            x1 = 216+4*k; gb = 232+8*e
            for d in range(4):
                lo = 112+8*k+2*d; hi = lo+1; src = 64+4*k+d
                a(f"v_lshlrev_b32 v42, 16, v{src}")
                a(f"v_and_b32 v43, s58, v{src}")
                a(f"v_lshlrev_b32 v40, 16, v{x1+d}")
                a(f"v_and_b32 v41, s58, v{x1+d}")
                a(f"v_pk_add_f32 v[{lo}:{hi}], v[{lo}:{hi}], v[42:43]")
                a(f"v_pk_fma_f32 v[40:41], v[{gb+2*d}:{gb+2*d+1}], v[{lo}:{hi}], v[40:41]")
                a(f"v_cvt_pk_bf16_f32 v{144+4*k+d}, v40, v41")
            a(f"buffer_store_dwordx4 v[{144+4*k}:{147+4*k}], v36, s[52:55], {'s31' if m_ == 0 else 's59'} offen offset:{e*32}{os.environ.get('OUTFLAG', '')}")
    if stamp is not None: stamp_mid(a, 3); stamp_end2(a, stamp, 6)
    a(f"""
    L_{L}_done:
    s_endpgm
    """)
    return (name, (cfg["nwg"],1,1), (256,1,1), NSLOT*16384), a.text(), kernel_desc(name, 256+32*NBUF+32, accum=256)
```

```python
from asmlib import *
from gen_small import *
from gen_g256 import WS_P1, WS_P2, PSTRIDE

def common_head(a, L, stamp):
    a(f"""
    s_cmp_ge_u32 s2, 256
    s_cbranch_scc1 L_{L}_done
    s_load_dwordx2 s[4:5], s[0:1], 0
    s_load_dwordx2 s[6:7], s[0:1], 80
    s_load_dwordx2 s[8:9], s[0:1], 96
    """)
    if stamp is not None: stamp_begin(a)
    a(f"""
    v_and_b32 v1, 7, v0
    v_lshrrev_b32 v2, 3, v0              ; 8w + cl
    v_and_b32 v3, 7, v2                  ; cl
    v_lshrrev_b32 v4, 6, v0              ; w
    v_lshl_add_u32 v5, v4, 4, v3
    s_lshr_b32 s10, s2, 2
    s_and_b32 s11, s2, 3
    s_lshl_b32 s10, s10, 16
    s_lshl_b32 s11, s11, 7
    s_add_u32 s10, s10, s11
    v_lshlrev_b32 v6, 9, v5
    v_lshl_add_u32 v6, v1, 4, v6
    v_add_u32 v6, s10, v6
    v_add_u32 v8, 4096, v6
    v_lshlrev_b32 v9, 5, v5
    """)

def load_partials(a, off):
    srd(a, 24, 8, 3*PSTRIDE+2048*1024*2, off)
    a(f"s_mov_b32 s28, {PSTRIDE}\ns_mov_b32 s29, {2*PSTRIDE}\ns_mov_b32 s30, {3*PSTRIDE}")
    for q, so in enumerate(["0", "s28", "s29", "s30"]):
        a(f"buffer_load_dwordx4 v[{100+8*q}:{103+8*q}], v6, s[24:27], {so} offen")
        a(f"buffer_load_dwordx4 v[{104+8*q}:{107+8*q}], v8, s[24:27], {so} offen")

def load_vec(a, dst, idx, sreg):
    a(f"s_mov_b32 s{sreg}, {idx*4096}")
    a(f"buffer_load_dwordx4 v[{dst}:{dst+3}], v9, s[16:19], s{sreg} offen")
    a(f"buffer_load_dwordx4 v[{dst+4}:{dst+7}], v9, s[16:19], s{sreg} offen offset:16")
    a(f"buffer_load_dwordx4 v[{dst+8}:{dst+11}], v9, s[16:19], s{sreg} offen offset:256")
    a(f"buffer_load_dwordx4 v[{dst+12}:{dst+15}], v9, s[16:19], s{sreg} offen offset:272")

def sum_partials_and_residual(a, res, gate, out):
    for j in range(8):
        a(f"v_lshlrev_b32 v{84+2*j}, 16, v{100+j}")
        a(f"v_and_b32 v{85+2*j}, s27_, v{100+j}".replace("s27_", "s33"))
    for q in range(1, 4):
        for j in range(8):
            a(f"v_lshlrev_b32 v40, 16, v{100+8*q+j}")
            a(f"v_and_b32 v41, s33, v{100+8*q+j}")
            a(f"v_add_f32 v{84+2*j}, v{84+2*j}, v40")
            a(f"v_add_f32 v{85+2*j}, v{85+2*j}, v41")
    for j in range(8):
        a(f"v_lshlrev_b32 v{out+2*j}, 16, v{res+j}")
        a(f"v_and_b32 v{out+2*j+1}, s33, v{res+j}")
    for j in range(16): a(f"v_fmac_f32 v{out+j}, v{gate+j}, v{84+j}")

def gen_ln2p(name="ln2_kernel", stamp=None, stflag="", xf=False, parts=False, touch_w2=False, fin_gb=False):
    a = Asm(); L = name
    kernel_begin(a, name)
    a("s_load_dwordx2 s[52:53], s[0:1], 56")
    common_head(a, L, stamp)
    if not xf:
        a("""
        s_lshl_b32 s12, s2, 14
        v_lshlrev_b32 v7, 11, v1
        v_lshl_add_u32 v7, v5, 4, v7
        v_add_u32 v7, s12, v7
        """)
    a("s_waitcnt lgkmcnt(0)")
    if parts:
        srd(a, 16, 8, 4*4096*4, WS_PB)
        modpart_issue(a, 160, 0, 1024, 156, 16384)
        modpart_issue(a, 176, 2048, 2048, 156, 16384)
    else:
        srd(a, 16, 8, 6144*4, WS_MOD)
        modvec_issue(a, 148, 2, 3, 156)
        modvec_issue(a, 152, 4, 4, 156)
    load_partials(a, WS_P1)
    if xf:
        srd(a, 12, 8, 2048*1024*2, WS_XF)
        a("buffer_load_dwordx4 v[12:15], v6, s[12:15], 0 offen")
        a("buffer_load_dwordx4 v[16:19], v8, s[12:15], 0 offen")
    else:
        srd(a, 12, 4, 2048*1024*2)
        a("buffer_load_dwordx4 v[12:15], v7, s[12:15], 0 offen")
        a("buffer_load_dwordx4 v[16:19], v7, s[12:15], 0 offen offset:128")
    ntouch = 0
    if touch_w2:
        srd(a, 48, 52, 3584*1024*2)
        a("""
        v_readfirstlane_b32 s54, v4
        s_lshl_b32 s55, s2, 3
        s_add_u32 s55, s55, s54
        s_lshl_b32 s55, s55, 13
        v_and_b32 v159, 63, v0
        v_lshlrev_b32 v159, 7, v159
        buffer_load_dword v155, v159, s[48:51], s55 offen
        """)
        ntouch = 1
    srd(a, 20, 8, 2048*1024*2, WS_H2F)
    srd(a, 44, 8, 2048*1024*2, WS_X1F)
    a("s_mov_b32 s33, 0xffff0000")
    if stamp is not None: stamp_mid(a, 0)
    a(f"s_waitcnt vmcnt({10+ntouch})")
    if parts:
        modpart_sum(a, 160); modpart_sum(a, 176)
        modvec_stage(a, 160, 1024, 156)
        modvec_stage(a, 176, 1024+8192, 157)
    else:
        modvec_stage(a, 148, 1024, 156)
        modvec_stage(a, 152, 1024+8192, 157)
    a("s_waitcnt lgkmcnt(0)")
    modvec_read(a, 132, 0, 1024, 156)
    modvec_read(a, 68, 1, 1024, 157)
    modvec_read(a, 52, 0, 1024+8192, 158)
    a(f"s_waitcnt vmcnt({ntouch}) lgkmcnt(0)")
    if stamp is not None: stamp_mid(a, 1)
    sum_partials_and_residual(a, 12, 132, 20)
    for j in range(8): a(f"v_cvt_pk_bf16_f32 v{12+j}, v{20+2*j}, v{21+2*j}")
    a(f"buffer_store_dwordx4 v[12:15], v6, s[44:47], 0 offen{stflag}")
    a(f"buffer_store_dwordx4 v[16:19], v8, s[44:47], 0 offen{stflag}")
    def reduce_lanes(r, t):
        a("s_nop 1")
        a(f"v_add_f32_dpp v{r}, v{r}, v{r} row_ror:8 row_mask:0xf bank_mask:0xf")
        a(f"v_mov_b32 v{t}, v{r}")
        a("s_nop 1")
        a(f"v_permlane16_swap_b32 v{r}, v{t}")
        a("s_nop 1")
        a(f"v_add_f32 v{r}, v{r}, v{t}")
        a(f"v_mov_b32 v{t}, v{r}")
        a("s_nop 1")
        a(f"v_permlane32_swap_b32 v{r}, v{t}")
        a("s_nop 1")
        a(f"v_add_f32 v{r}, v{r}, v{t}")
    a("v_add_f32 v36, v20, v21")
    a("v_add_f32 v37, v22, v23")
    for j in range(2, 8):
        a(f"v_add_f32 v{36+(j&1)}, v{36+(j&1)}, v{20+2*j}")
        a(f"v_add_f32 v{36+(j&1)}, v{36+(j&1)}, v{21+2*j}")
    a("v_add_f32 v36, v36, v37")
    reduce_lanes(36, 38)
    a("v_mul_f32 v36, 0x3c000000, v36")
    for j in range(16): a(f"v_sub_f32 v{84+j}, v{20+j}, v36")
    a("v_mul_f32 v37, v84, v84")
    a("v_mul_f32 v39, v85, v85")
    for j in range(2, 16, 2):
        a(f"v_fmac_f32 v37, v{84+j}, v{84+j}")
        a(f"v_fmac_f32 v39, v{85+j}, v{85+j}")
    a("v_add_f32 v37, v37, v39")
    reduce_lanes(37, 38)
    a("""
    v_lshlrev_b32 v40, 6, v1
    v_lshl_add_u32 v41, v4, 3, v40
    v_and_b32 v42, 63, v0
    v_cmp_gt_u32 vcc, 8, v42
    s_and_saveexec_b64 s[30:31], vcc
    ds_write_b64 v41, v[36:37]
    s_mov_b64 exec, s[30:31]
    s_waitcnt lgkmcnt(0)
    """)
    if stamp is not None: stamp_mid(a, 2)
    a("""
    s_barrier
    ds_read_b128 v[84:87], v40
    ds_read_b128 v[88:91], v40 offset:16
    ds_read_b128 v[92:95], v40 offset:32
    ds_read_b128 v[96:99], v40 offset:48
    s_waitcnt lgkmcnt(0)
    """)
    a("v_add_f32 v36, v84, v86")
    for j in range(2, 8): a(f"v_add_f32 v36, v36, v{84+2*j}")
    a("v_mul_f32 v36, 0x3e000000, v36")
    a("v_add_f32 v37, v85, v87")
    for j in range(2, 8): a(f"v_add_f32 v37, v37, v{85+2*j}")
    for j in range(8): a(f"v_sub_f32 v{84+2*j}, v{84+2*j}, v36")
    a("v_mul_f32 v38, v84, v84")
    for j in range(1, 8): a(f"v_fmac_f32 v38, v{84+2*j}, v{84+2*j}")
    a(f"""
    v_mov_b32 v39, 0x43000000
    v_fmac_f32 v37, v39, v38
    v_mov_b32 v39, 0x3727c5ac
    v_fmac_f32 v39, 0x3a800000, v37
    v_rsq_f32 v39, v39
    s_nop 0
    """)
    for j in range(16): a(f"v_sub_f32 v{20+j}, v{20+j}, v36")
    for j in range(16): a(f"v_add_f32 v{52+j}, 1.0, v{52+j}")
    for j in range(16): a(f"v_mul_f32 v{20+j}, v{20+j}, v39")
    for j in range(16): a(f"v_fmac_f32 v{68+j}, v{20+j}, v{52+j}")
    for j in range(8): a(f"v_cvt_pk_bf16_f32 v{12+j}, v{68+2*j}, v{69+2*j}")
    a(f"""
    buffer_store_dwordx4 v[12:15], v6, s[20:23], 0 offen{stflag}
    buffer_store_dwordx4 v[16:19], v8, s[20:23], 0 offen{stflag}
    """)
    if fin_gb:
        a(f"s_cmp_lg_u32 s2, 0\ns_cbranch_scc1 L_{L}_nofin")
        modpart_issue(a, 160, 3072, 3072, 156, 16384)
        srd(a, 48, 8, 4096, WS_GB)
        srd(a, 52, 8, 16384, WS_FL)
        a("s_waitcnt vmcnt(0)")
        modpart_sum(a, 160)
        a(f"""
        v_and_b32 v156, 31, v0
        v_lshlrev_b32 v156, 4, v156
        v_lshl_add_u32 v156, v4, 9, v156
        buffer_store_dwordx4 v[160:163], v156, s[48:51], 0 offen
        v_mov_b32 v164, 0
        v_mov_b32 v165, 0
        v_mov_b32 v166, 0
        v_mov_b32 v167, 0
        v_lshlrev_b32 v157, 4, v0
        buffer_store_dwordx4 v[164:167], v157, s[52:55], 0 offen
        v_add_u32 v157, 8192, v157
        buffer_store_dwordx4 v[164:167], v157, s[52:55], 0 offen
        L_{L}_nofin:
        """)
    if stamp is not None:
        stamp_mid(a, 3)
        a("s_mov_b32 s74, 0")
        stamp_end2(a, stamp, 8)
    a(f"L_{L}_done:\ns_endpgm")
    return (name, (256,1,1), (512,1,1), 1024+16384), a.text(), kernel_desc(name, 192, sgpr=102)

def gen_redk(name="red_kernel", stamp=None, parts=False):
    a = Asm(); L = name
    kernel_begin(a, name); common_head(a, L, stamp)
    a("s_waitcnt lgkmcnt(0)")
    if parts:
        srd(a, 16, 8, 4*4096*4, WS_PB)
        modpart_issue(a, 160, 3072, 3072, 156, 16384)
    else:
        srd(a, 16, 8, 6144*4, WS_MOD)
        modvec_issue(a, 148, 5, 5, 156)
    load_partials(a, WS_P2)
    srd(a, 12, 8, 2048*1024*2, WS_X1F)
    a("buffer_load_dwordx4 v[12:15], v6, s[12:15], 0 offen")
    a("buffer_load_dwordx4 v[16:19], v8, s[12:15], 0 offen")
    srd(a, 20, 6, 2048*1024*2)
    a("""
    v_xor_b32 v42, v3, v1                ; cl ^ tk
    v_lshlrev_b32 v42, 4, v42
    v_lshl_add_u32 v42, v1, 8, v42
    v_lshl_add_u32 v42, v4, 11, v42      ; write addr (+128 for chunk1)
    v_and_b32 v43, 63, v0
    v_lshrrev_b32 v44, 3, v43            ; tk'
    v_and_b32 v45, 7, v43                ; c'
    v_xor_b32 v46, v45, v44
    v_lshlrev_b32 v46, 4, v46
    v_lshl_add_u32 v46, v44, 8, v46
    v_lshl_add_u32 v46, v4, 11, v46      ; read addr
    s_lshl_b32 s12_, s2, 14
    v_lshlrev_b32 v47, 11, v44
    v_lshl_add_u32 v47, v45, 4, v47
    v_lshl_add_u32 v47, v4, 8, v47       ; + 16w chunks*16
    v_add_u32 v47, s12_, v47             ; out offset
    s_mov_b32 s33, 0xffff0000
    """.replace("s12_", "s37"))
    if stamp is not None: stamp_mid(a, 0)
    a("s_waitcnt vmcnt(10)")
    if parts:
        modpart_sum(a, 160); modvec_stage(a, 160, 16384, 156)
    else:
        modvec_stage(a, 148, 16384, 156)
    a("s_waitcnt lgkmcnt(0)")
    modvec_read(a, 132, 0, 16384, 156)
    a("s_waitcnt vmcnt(0) lgkmcnt(0)")
    if stamp is not None: stamp_mid(a, 1)
    sum_partials_and_residual(a, 12, 132, 20)
    for j in range(8): a(f"v_cvt_pk_bf16_f32 v{12+j}, v{20+2*j}, v{21+2*j}")
    a("""
    ds_write_b128 v42, v[12:15]
    ds_write_b128 v42, v[16:19] offset:128
    s_waitcnt lgkmcnt(0)
    ds_read_b128 v[20:23], v46
    ds_read_b128 v[24:27], v46 offset:128
    s_waitcnt lgkmcnt(1)
    buffer_store_dwordx4 v[20:23], v47, s[20:23], 0 offen
    s_waitcnt lgkmcnt(0)
    buffer_store_dwordx4 v[24:27], v47, s[20:23], 0 offen offset:128
    """)
    if stamp is not None:
        stamp_mid(a, 2)
        a("s_mov_b32 s73, 0\ns_mov_b32 s74, 0")
        stamp_end2(a, stamp, 8)
    a(f"L_{L}_done:\ns_endpgm")
    return (name, (256,1,1), (512,1,1), 16384+8192), a.text(), kernel_desc(name, 176, sgpr=102)
```

```python
class VmLog:
    def __init__(self): self.ops = []
    def issue(self, tag): self.ops.append(tag)
    def wait_for(self, pred):
        last = -1
        for i, t in enumerate(self.ops):
            if pred(t): last = i
        n = len(self.ops)-1-last
        assert n <= 63, n
        return n

def emit_stream(a, KT, NB, TB, NSLOT, NBUF, wreads, mfma, wdma, actload, log, pre_stages, gap=2, extra=None, extra_after=None, final_barrier=False):
    nW = wdma.n
    q = []
    for s in range(pre_stages, KT):
        order = []
        acts = [('A', s, ks, tb) for ks in range(4) for tb in range(TB)]
        ws = [('W', s, j) for j in range(nW)]
        i = j = 0
        while i < len(acts) or j < len(ws):
            if j < len(ws) and j*len(acts) <= i*len(ws): order.append(ws[j]); j += 1
            else: order.append(acts[i]); i += 1
        q += order
        if extra and s in extra_after: q += [('X', k) for k in extra_after[s]]
    state = dict(mf_done=set(), bar=0)
    def ready(op):
        if op[0] == 'X': return True
        if op[0] == 'W':
            s = op[1]
            return s-NSLOT+1 <= state['bar'] or s < NSLOT
        s, ks = op[1], op[2]
        return s < NBUF or (s-NBUF, ks) in state['mf_done']
    def issue_next():
        if q and ready(q[0]):
            op = q.pop(0)
            if op[0] == 'W': lines = wdma(op[1], op[2])
            elif op[0] == 'A': lines = [actload(op[1], op[2], op[3])]
            else: lines = extra[op[1]][1]()
            for l in lines: a(l)
            log.issue(op if op[0] != 'X' else extra[op[1]][0])
            return True
        return False
    m = 0
    for t in range(KT):
        last = t == KT-1
        for ks in range(4):
            bar_here = (ks == 3 and not last)
            if bar_here:
                while any(x[0] in 'WA' and x[1] <= t+1 for x in q):
                    assert issue_next(), q[0]
                n = log.wait_for(lambda x: x[0] in 'WA' and x[1] <= t+1)
                a(f"s_waitcnt vmcnt({n}) lgkmcnt(0)")
                a("s_barrier")
                state['bar'] = t+1
            if ks < 3: rl = wreads(t, ks+1)
            else: rl = [] if last else wreads(t+1, 0)
            for nb in range(NB):
                if not bar_here:
                    a(f"s_waitcnt lgkmcnt({2*(NB-1) if rl else 2*(NB-1-nb)})")
                for tb in range(TB):
                    a(mfma(t, ks, nb, tb))
                    m += 1
                    if tb == 0:
                        for s in rl[2*nb:2*nb+2]: a(s)
                    if nb == NB-1 and tb == TB-1: state['mf_done'].add((t, ks))
                    if m % gap == 0: issue_next()
    while q:
        assert issue_next(), q[0]

def emit_stream2(a, KT, NSLOT, NBUF, read_item, mfma, wdma, actload, log, pre_stages, gap=2, extra=None, extra_after=None, T=0, post=None, TB=2, NB=4, NKS=4, fill=None):
    PD = 4; PG = NB//4
    items = [(t, ks, nb) for t in range(KT-T) for ks in range(NKS) for nb in range(NB)]
    n_norm = len(items)
    items += [(t, ks, nb) for p in range(4) for t in range(KT-T, KT) for ks in range(NKS) for nb in range(p*PG, (p+1)*PG)]
    per_pass = T*NKS*PG
    nW = wdma.n
    q = []
    for s in range(pre_stages, KT):
        acts = [('A', s, ks, tb) for ks in range(NKS) for tb in range(TB)]
        ws = [('W', s, j) for j in range(nW)]
        i = j = 0
        while i < len(acts) or j < len(ws):
            if j < len(ws) and j*len(acts) <= i*len(ws): q.append(ws[j]); j += 1
            else: q.append(acts[i]); i += 1
        if extra and s in extra_after: q += [('X', k) for k in extra_after[s]]
    state = dict(mf_done=set(), bar=0)
    def ready(op):
        if op[0] == 'X': return True
        if op[0] == 'W': return op[1] < NSLOT or op[1]-NSLOT+1 <= state['bar']
        return op[1] < NBUF or (op[1]-NBUF, op[2]) in state['mf_done']
    def issue_next():
        if q and ready(q[0]):
            op = q.pop(0)
            if op[0] == 'W': lines = wdma(op[1], op[2])
            elif op[0] == 'A': lines = [actload(op[1], op[2], op[3])]
            else: lines = extra[op[1]][1]()
            for l in lines: a(l)
            log.issue(op if op[0] != 'X' else extra[op[1]][0])
            return True
        return False
    def next_lines():
        if q and ready(q[0]):
            op = q.pop(0)
            if op[0] == 'W': lines = wdma(op[1], op[2])
            elif op[0] == 'A': lines = actload(op[1], op[2], op[3]).split("\n")
            else: lines = extra[op[1]][1]()
            log.issue(op if op[0] != 'X' else extra[op[1]][0])
            return lines
        return None
    def emit_pending():
        o = pending.pop(0); a(o)
        if o.startswith("buffer_store"): log.issue(('S', state['post_pass']))
    landed = 0
    pending = []; pend_rate = 0
    m = 0; mgap = gap*TB//2
    for i, (t, ks, nb) in enumerate(items):
        barrier = False
        if i+PD < len(items):
            tn = items[i+PD][0]
            if tn > landed:
                while any(x[0] in 'WA' and x[1] <= tn for x in q):
                    assert issue_next(), q[0]
                n = log.wait_for(lambda x: x[0] in 'WA' and x[1] <= tn)
                a(f"s_waitcnt vmcnt({n}) lgkmcnt(0)")
                a("s_barrier")
                landed = tn; barrier = True
                done_items = set(items[:i+PD])
                st = state['bar']
                while st < KT and all((st, k, d) in done_items for k in range(NKS) for d in range(NB)): st += 1
                state['bar'] = st
        if not barrier:
            young = 2*min(PD-1, len(items)-1-i)
            a(f"s_waitcnt lgkmcnt({young})")
        if TB == 4:
            rd = read_item(*items[i+PD], (i+PD) % 8) if i+PD < len(items) else []
            lines = None
            for tb in range(TB):
                a(mfma(t, ks, nb, tb, i % 8)); m += 1
                if tb < 2 and rd: a(rd[tb])
                if tb == 1:
                    lines = next_lines()
                    if lines:
                        for l in lines[:-1]:
                            if l.strip() != "s_nop 0": a(l)
                if tb == 2 and lines: a(lines[-1])
                if tb in (0, 3):
                    for _ in range(pend_rate):
                        if pending: emit_pending()
        else:
          for tb in range(TB):
            a(mfma(t, ks, nb, tb, i % 8)); m += 1
            if tb == 0 and i+PD < len(items):
                for s_ in read_item(*items[i+PD], (i+PD) % 8): a(s_)
            if m % mgap == 0: issue_next()
            if tb % (TB//2) == (TB//2)-1:
                for _ in range(pend_rate):
                    if pending: emit_pending()
        if fill and i in fill:
            f_ = fill[i]
            for o in (f_(log) if callable(f_) else f_): a(o)
        if i < n_norm and nb == NB-1: state['mf_done'].add((t, ks))
        if i >= n_norm and post is not None and (i-n_norm+1) % per_pass == 0 and i != len(items)-1:
            assert not pending
            state['post_ops'] = (post((i-n_norm)//per_pass), i+3); state['next_pass'] = (i-n_norm)//per_pass
        if 'post_ops' in state and i >= state['post_ops'][1]:
            ops, _ = state.pop('post_ops'); state['post_pass'] = state['next_pass']
            pending[:] = list(ops); pend_rate = max(1, -(-len(ops)//(2*(per_pass-4))))
    while q:
        assert issue_next(), q[0]
    assert not pending, len(pending)
    if post is not None:
        a("s_nop 15")
        for o in post(3 if T else None): a(o)
    return len(items)
```

```python
import sys, math
from asmlib import *
from gen_small import *
from gen_gemm import *
from gen_attn import *
from gen_g256 import *
from gen_red import *
from gen_k01 import *
QS = 128**-0.5 * math.log2(math.e)
def build(kernels, path):
    launches = [k[0] for k in kernels]
    seen = set(); bodies = []; descs = []
    for k in kernels:
        if k[0][0] in seen: continue
        seen.add(k[0][0]); bodies.append(k[1]); descs.append(k[2])
    open(path, "w").write(assemble_file(launches, bodies, descs))
def pipeline(st=False, **kw):
    S = (lambda i: i) if st else (lambda i: None)
    wt = kw.get("wt", " sc1")
    G = kw.get("G", dict(NSLOT=6, NBUF=6, T=4, touch=False, m16=kw.get("m16", True)))
    pp = kw.get("parts", True)
    xc = kw.get("xchg", True)
    if kw.get("k01", False): head = [gen_k01("k01_kernel", QS, stamp=S(0))]
    else: head = [gen_k0b(stamp=S(0)) if pp else gen_k0(stamp=S(0)), gen_ln("ln1_kernel", 'x', WS_HF, 0, 1, QS, stamp=S(1), pf_wq=True, xf=kw.get("xf", False), stflag=kw.get("l1wt", " sc1"), parts=pp)]
    return head + [gen_attn("attn_kernel", stamp=S(2), dbg=kw.get("adbg", ""), stflag=kw.get("awt", " sc1"), side=pp, m16=kw.get("am16", True), pfw=kw.get("pfw", True)),
            gen_g256("oproj_kernel", "oproj", stamp=S(3), stflag=wt, **G), gen_ln2p("ln2_kernel", stamp=S(4), stflag=kw.get("lwt", " sc1"), xf=kw.get("xf", False), parts=pp, touch_w2=kw.get("tw2", False), fin_gb=xc),
            gen_g256("ffn1_kernel", "ffn1", stamp=S(5), stflag=wt, **G), gen_g256("ffn2_kernel", "ffn2", stamp=S(6), stflag=wt, xchg=xc, dbg=kw.get("fdbg", ""), **kw.get("G2", dict(NSLOT=7, NBUF=6, T=5, touch=False, m16=True) if xc else G))] + ([] if xc else [gen_redk("red_kernel", stamp=S(7), parts=pp)])
def variants(d):
    import hk
    for nm, kw in d.items():
        build(pipeline(True, **kw), f"b_{nm}.s"); hk.build(f"b_{nm}.s")
if __name__ == "__main__":
    import hk
    build(pipeline(False), "full.s"); hk.build("full.s")
    build(pipeline(True), "full_st.s"); hk.build("full_st.s")
```

```python
from asmlib import *
from gen_small import *
from gen_gemm import lane_common, tr_lane_terms
from gen_g256 import G256, G16, g16_setup_w, g16_setup_tr
from stream import VmLog

KRING = 65536
VRING = 65536+49152
BIAS = 30.0

def gen_attn(name="attn_kernel", stamp=None, fallback=True, dbg="", pfw=True, pfstride=64, stflag="", side=False, m16=False, QT=2):
    a = Asm(); L = name
    kernel_begin(a, name)
    a(f"""
    s_cmp_ge_u32 s2, 256
    s_cbranch_scc1 L_{L}_done
    s_load_dwordx4 s[4:7], s[0:1], 8
    s_load_dwordx2 s[8:9], s[0:1], 24      ; wq
    s_load_dwordx2 s[10:11], s[0:1], 96    ; ws
    s_load_dwordx2 s[60:61], s[0:1], 32    ; wo
    s_load_dwordx4 s[64:67], s[0:1], 48    ; w1 s[64:65], w2 s[66:67]
    s_load_dwordx2 s[82:83], s[0:1], 72    ; w_mod
    s_load_dwordx2 s[100:101], s[0:1], 64  ; c
    """)
    if stamp is not None: stamp_begin(a)
    lane_common(a)
    a("""
    s_and_b32 s21, s2, 7
    s_lshr_b32 s22, s2, 3
    s_and_b32 s23, s21, 3
    s_lshl_b32 s24, s23, 3
    s_and_b32 s25, s22, 7
    s_add_u32 s24, s24, s25                ; head
    s_lshr_b32 s25, s21, 2
    s_lshl_b32 s25, s25, 2
    s_lshr_b32 s26, s22, 3
    s_add_u32 s25, s25, s26
    s_lshl_b32 s25, s25, 3
    s_lshl_b32 s26, s20, 1
    s_add_u32 s25, s25, s26
    v_add_u32 v3, 0x10000, v2
    v_lshrrev_b32 v32, 4, v1               ; L>>4
    v_and_b32 v33, 15, v1                  ; p
    v_lshlrev_b32 v34, 2, v32
    v_xor_b32 v34, v33, v34                ; p ^ ((L>>4)<<2)
    v_lshlrev_b32 v34, 4, v34
    v_lshl_add_u32 v4, v32, 13, v34        ; W: row*8192 + c*16
    v_add_u32 v5, 31744, v4                ; + 4*8192 - 1024
    v_add_u32 v6, 63488, v4
    v_add_u32 v7, 95232, v4
    v_lshl_add_u32 v16, v32, 8, v34        ; V: row*256 + c*16
    """)
    for i in range(4):
        a(f"""
        v_add_u32 v35, {4*i}, v32
        v_xor_b32 v35, v33, v35
        v_lshlrev_b32 v35, 4, v35
        v_lshl_add_u32 v{12+i}, v32, 8, v35
        """)
    tr_lane_terms(a, 32, 33, 34, 35)
    a("""
    v_lshrrev_b32 v35, 1, v34              ; sw>>1
    v_lshl_add_u32 v35, v33, 1, v35        ; c0 = 2*(g&1) + (sw>>1)
    v_bfe_u32 v36, v1, 2, 2                ; i>>2
    v_lshlrev_b32 v37, 2, v36              ; swz = (i>>2)<<2
    v_and_b32 v34, 1, v34
    v_lshlrev_b32 v34, 3, v34              ; half8*8
    v_lshl_add_u32 v38, v32, 8, v34
    v_lshrrev_b32 v39, 5, v1               ; hh
    v_lshl_add_u32 v39, v39, 2, v36        ; 4hh + (i>>2)
    v_lshl_add_u32 v39, v39, 8, v34
    """)
    for db in range(4):
        a(f"""
        v_or_b32 v42, {4*db}, v35
        v_xor_b32 v42, v42, v37
        v_lshl_add_u32 v{8+db}, v42, 4, v38
        v_lshl_add_u32 v{28+db}, v42, 4, v39
        v_add_u32 v{28+db}, {VRING}, v{28+db}
        """)
    a("""
    v_and_b32 v32, 31, v1                  ; r
    v_lshrrev_b32 v33, 5, v1               ; hh
    v_and_b32 v34, 15, v1
    """)
    for ds in range(8):
        a(f"""
        v_or_b32 v35, {2*ds}, v33
        v_xor_b32 v35, v35, v34
        v_lshlrev_b32 v35, 4, v35
        v_lshl_add_u32 v{20+ds}, v32, 8, v35
        v_add_u32 v{20+ds}, {KRING}, v{20+ds}
        """)
    if m16:
        g16_setup_w(a, 8192)
        g16_setup_tr(a, 44, 1)
        a("""
        v_lshrrev_b32 v52, 4, v1
        v_lshlrev_b32 v52, 9, v52
        v_and_b32 v53, 15, v1
        v_lshl_add_u32 v52, v53, 4, v52        ; (l>>4)*512 + (l&15)*16
        v_add_u32 v53, 0x10000, v52
        """)
    a("s_waitcnt lgkmcnt(0)")
    if stamp is not None and "ls" not in dbg: stamp_mid(a, 0)
    srd(a, 12, 8, 1024*4096*2)
    a(f"""
    s_lshl_b32 s26, s25, 16
    s_add_u32 s26, s26, {WS_HF}
    s_add_u32 s16, s10, s26
    s_addc_u32 s17, s11, 0
    s_mov_b32 s18, 131072
    s_mov_b32 s19, 0x20000
    """)
    srd(a, 32, 4, 4*2048*128*2)
    srd(a, 36, 6, 4*2048*128*2)
    srd(a, 40, 10, 2048*4096*2, WS_OF)
    a(f"""
    s_mul_i32 s28, s20, {16*8192}
    s_lshl_b32 s26, s24, 8
    s_add_u32 s28, s28, s26                ; W soffset
    s_mov_b32 s29, 0                       ; h soffset
    s_lshl_b32 s30, s20, 12
    s_lshl_b32 s44, s23, 19                ; g*524288
    s_add_u32 s44, s44, {1536*256}
    s_add_u32 s44, s44, s30
    """)
    a(f"""
    s_lshl_b32 s26, s2, 2
    s_add_u32 s26, s26, s20
    s_mul_i32 s26, s26, 8192
    v_lshlrev_b32 v17, 7, v1
    v_add_u32 v17, s26, v17
    s_mul_i32 s26, s26, 3
    s_lshr_b32 s26, s26, 1                 ; gid*12288
    s_add_u32 s26, s26, 4096
    v_lshlrev_b32 v19, 7, v1
    v_add_u32 v19, s26, v19
    s_mov_b32 s62, {3584*1024*2}
    s_mov_b32 s79, 0x20000
    s_and_b32 s80, s2, 1
    s_mov_b32 s81, {4096*1024*2}
    """)
    def pf_static(idx):
        def f():
            m, ph = idx >> 2, idx & 3
            ptr = {0: 82, 1: 60, 2: 64, 3: 66}[m]; size = {0: 1024*6144*2, 1: 4096*1024*2, 2: 3584*1024*2, 3: 3584*1024*2}[m]
            return [f"s_mov_b32 s76, s{ptr}", f"s_mov_b32 s77, s{ptr+1}", f"s_mov_b32 s63, {size}", f"s_cmp_eq_u32 s80, {ph}",
                    "s_cselect_b32 s78, s63, 0", f"buffer_load_dword v18, v{19 if m == 0 else 17}, s[76:79], 0 offen"]
        return f
    SIDE = 8192
    if side:
        a(f"""
        s_and_b32 s6, s2, 3
        s_lshr_b32 s7, s2, 2
        s_lshl_b32 s8, s6, 8
        s_lshl_b32 s9, s20, 6
        s_add_u32 s8, s8, s9
        v_lshrrev_b32 v56, 3, v1
        v_lshl_add_u32 v56, v56, 3, s8         ; row0
        v_lshlrev_b32 v57, 1, v56              ; c offset
        s_mov_b32 s9, 12288
        v_mul_lo_u32 v56, v56, s9
        v_and_b32 v58, 7, v1
        v_lshlrev_b32 v58, 4, v58
        s_lshl_b32 s9, s7, 7
        s_add_u32 s9, s9, 4096
        v_add3_u32 v56, v56, v58, s9
        s_mov_b32 s84, s82
        s_mov_b32 s85, s83
        s_mov_b32 s86, {1024*6144*2}
        s_mov_b32 s87, 0x20000
        s_lshl_b32 s8, s20, 13
        s_add_u32 s8, s8, {SIDE}
        """)
        srd(a, 4, 100, 2048)
        a("buffer_load_dwordx4 v[60:63], v57, s[4:7], 0 offen")
        a("s_and_b32 s6, s2, 3\ns_lshr_b32 s7, s2, 2")
    def side_dma(idx_expr_static=None):
        if not side: return
        if idx_expr_static is not None:
            a(f"s_add_u32 m0, s8, {idx_expr_static*1024}\ns_mov_b32 s63, {idx_expr_static*12288}\nbuffer_load_dwordx4 v56, s[84:87], s63 offen lds")
        else:
            a("""
            s_sub_u32 s63, s48, 1
            s_lshl_b32 s9, s63, 10
            s_add_u32 m0, s8, s9
            s_mul_i32 s63, s63, 12288
            buffer_load_dwordx4 v56, s[84:87], s63 offen lds
            """)
    def pf_weights():
        side_dma()
        if not pfw: return
        a(f"""
        s_sub_u32 s63, s48, s80            ; 1: wo 3: w1 5: w2
        s_cmp_eq_u32 s63, 1
        s_cselect_b32 s76, s60, s64
        s_cselect_b32 s77, s61, s65
        s_cselect_b32 s78, s81, 0
        s_cmp_eq_u32 s63, 3
        s_cselect_b32 s78, s62, s78
        s_cmp_eq_u32 s63, 5
        s_cselect_b32 s76, s66, s76
        s_cselect_b32 s77, s67, s77
        s_cselect_b32 s78, s62, s78
        buffer_load_dword v18, v17, s[76:79], 0 offen
        """)
    QACC = 64
    def qacc(db, qb): r = QACC+(2*db+qb)*16; return r
    def k_dma(ldsoff_expr, tile_soff):
        a(f"s_add_u32 m0, s30, {ldsoff_expr}")
        a("s_nop 0")
        for j in range(4): a(f"buffer_load_dwordx4 v{12+j}, s[32:35], {tile_soff} offen offset:{1024*j} lds")
    def v_dma(ldsoff_expr, tile_soff):
        a(f"s_add_u32 m0, s30, {ldsoff_expr}")
        a("s_nop 0")
        for j in range(4): a(f"buffer_load_dwordx4 v16, s[36:39], {tile_soff} offen offset:{1024*j} lds")
    g = G16(a, 16, 8192, 4, 4, ACC=QACC, vW=4, vT=44, vA=(52, 53)) if m16 else G256(a, 16, 8192, 4, 4, ACC=QACC, vW=4, vT=8)
    g.issue_stage(0)
    g.issue_stage(1)
    for i in range(128): a(f"v_mov_b32 v{QACC+i}, 0")
    a("s_mov_b32 s46, 0")
    a(f"s_add_u32 s45, s44, 16384")
    extra = []
    def mk(kind, ldsoff, soff, j):
        def f():
            out = []
            if g.cur['m0'] != ('x', ldsoff):
                out += [f"s_add_u32 m0, s30, {ldsoff}", "s_nop 0"]; g.cur['m0'] = ('x', ldsoff)
            if kind == 'K': out.append(f"buffer_load_dwordx4 v{12+j}, s[32:35], {soff} offen offset:{1024*j} lds")
            else: out.append(f"buffer_load_dwordx4 v16, s[36:39], {soff} offen offset:{1024*j} lds")
            return out
        return f
    for (kind, ldsoff, soff) in [('K', KRING, "s44"), ('K', KRING+16384, "s45"), ('V', VRING, "s44")]:
        for j in range(4): extra.append((('X', kind, j), mk(kind, ldsoff, soff, j)))
    g.first_wait2()
    if stamp is not None and "ls" not in dbg: stamp_mid(a, 1); a("s_nop 0")
    ea = {9: [0,1,2,3], 11: [4,5,6,7], 13: [8,9,10,11]}
    if m16:
        def qpost(p_):
            ops = []
            for p in (range(4) if p_ is None else [p_]):
                for m_ in range(2):
                    for j in (2*p, 2*p+1): ops += g.pack_ops(j, m_, 192+32*m_+4*j)
            return ops
        ea = {7: [0,1,2,3], 9: [4,5,6,7], 11: [8,9,10,11]}
        n_norm = (16-QT)*16
        zfill = {n_norm+k: [f"v_accvgpr_write_b32 a{2*k}, 0", f"v_accvgpr_write_b32 a{2*k+1}, 0"] for k in range(32)} if QT == 2 else None
        g.stream2(2, gap=2, extra=extra, extra_after=ea, T=QT, post=qpost, fill=zfill)
    else:
        g.stream2(2, gap=2, extra=extra, extra_after=ea, T=0)
    a("s_waitcnt vmcnt(0)")
    a("s_barrier")
    if stamp is not None: stamp_mid(a, 2)
    QF = 192
    def qf(qb, ds): r = QF+32*qb+4*ds; return f"v[{r}:{r+3}]"
    if not m16:
        a("s_nop 7\ns_nop 7")
        for qb in range(2):
            for ds in range(8):
                c = qacc(ds >> 1, qb)+8*(ds & 1)
                for j in range(4):
                    a(f"v_cvt_pk_bf16_f32 v{QF+32*qb+4*ds+j}, v{c+2*j}, v{c+2*j+1}")
    def S(b, qb): return 64+32*b+16*qb
    def P(b, qb, ks): return 128+16*b+8*qb+4*ks
    def NM(qb): return 160+16*qb
    def O(db, qb): return (2*db+qb)*16
    RING = 128
    LREG = (40, 41)
    PDI = 4
    def item_reads(it, slot):
        r = RING+4*(slot % 8)
        if it[0] == 'K':
            _, half, ds = it[:3]
            return [f"ds_read_b128 a[{r}:{r+3}], v{20+ds} offset:{half*8192}"]
        _, half, ks, db = it[:4]
        return [f"ds_read_b64_tr_b16 a[{r+2*hf}:{r+2*hf+1}], v{28+db} offset:{(half*32+16*ks+8*hf)*256}" for hf in range(2)]
    def item_mfma(it, slot, qb):
        r = RING+4*(slot % 8)
        if it[0] == 'K':
            _, half, ds, sb, cmode = it
            d = S(sb, qb)
            if ds == 0: c = "0" if cmode == 'zero' else f"v[{NM(qb)}:{NM(qb)+15}]"
            else: c = f"v[{d}:{d+15}]"
            return f"v_mfma_f32_32x32x16_bf16 v[{d}:{d+15}], a[{r}:{r+3}], {qf(qb, ds)}, {c}"
        _, half, ks, db, pb = it
        o = O(db, qb); p = P(pb, qb, ks)
        return f"v_mfma_f32_32x32x16_bf16 a[{o}:{o+15}], a[{r}:{r+3}], v[{p}:{p+3}], a[{o}:{o+15}]"
    def nreads(it): return 1 if it[0] == 'K' else 2
    def softmax_ops(sb, pb):
        ops = []; prev = None
        for qb in range(2):
            for j in range(8):
                e0 = S(sb, qb)+2*j; e1 = e0+1
                ops.append(f"v_exp_f32 v{e0}, v{e0}")
                ops.append(f"v_exp_f32 v{e1}, v{e1}")
                if prev: ops += prev
                prev = [f"v_add_f32 v{LREG[qb]}, v{LREG[qb]}, v{e0}",
                        f"v_cvt_pk_bf16_f32 v{P(pb, qb, j >> 2)+(j & 3)}, v{e0}, v{e1}",
                        f"v_add_f32 v{LREG[qb]}, v{LREG[qb]}, v{e1}"]
        ops.append("s_nop 0"); ops += prev
        return ops
    def emit_items(items, future, valu, extra=None, slot0=0, pre_issued=True):
        seq = items+future
        n = len(items); gaps = 2*n
        vi = 0
        for i, it in enumerate(items):
            young = sum(nreads(x) for x in seq[i+1:i+PDI])
            a(f"s_waitcnt lgkmcnt({young})")
            a(item_mfma(it, slot0+i, 0))
            if extra and i in extra: extra[i]()
            if i+PDI < len(seq):
                for s in item_reads(seq[i+PDI], slot0+i+PDI): a(s)
            tgt = (len(valu)*(2*i+1))//gaps
            while vi < tgt: a(valu[vi]); vi += 1
            a(item_mfma(it, slot0+i, 1))
            tgt = (len(valu)*(2*i+2))//gaps
            while vi < tgt: a(valu[vi]); vi += 1
        assert vi == len(valu)
    def kitems(half, sb, cmode='nm'): return [('K', half, ds, sb, cmode) for ds in range(8)]
    def vitems(half, pb): return [('V', half, ks, db, pb) for ks in range(2) for db in range(4)]

    side_dma(7)
    a(f"L_{L}_att:")
    a("v_mov_b32 v40, 0\nv_mov_b32 v41, 0")
    head1 = kitems(0, 0, 'zero'); head2 = kitems(1, 1)
    for i in range(PDI):
        for s in item_reads(head1[i], i): a(s)
    z0 = 64 if (m16 and QT == 2) else 0
    zinit = [f"v_accvgpr_write_b32 a{i}, 0" for i in range(z0, 128)]
    emit_items(head1, head2, zinit, slot0=0)
    a("s_nop 7\ns_nop 7")
    if fallback:
        a(f"s_cmp_eq_u32 s46, 1\ns_cbranch_scc1 L_{L}_havem")
    for qb in range(2):
        s = S(0, qb); m = 42+qb
        a(f"v_max3_f32 v{m}, v{s}, v{s+1}, v{s+2}")
        for j in range(3, 15, 2): a(f"v_max3_f32 v{m}, v{m}, v{s+j}, v{s+j+1}")
        a(f"v_max_f32 v{m}, v{m}, v{s+15}")
    a("v_mov_b32 v44, v42\nv_mov_b32 v45, v43\ns_nop 1")
    a("v_permlane32_swap_b32 v42, v44\nv_permlane32_swap_b32 v43, v45\ns_nop 1")
    a("v_max_f32 v42, v42, v44\nv_max_f32 v43, v43, v45")
    a(f"v_sub_f32 v42, {-BIAS}, v42\nv_sub_f32 v43, {-BIAS}, v43".replace("-30.0", "0xc1f00000"))
    if fallback: a(f"L_{L}_havem:")
    for qb in range(2):
        for j in range(16): a(f"v_mov_b32 v{NM(qb)+j}, v{42+qb}")
        for j in range(16): a(f"v_add_f32 v{S(0,qb)+j}, v{S(0,qb)+j}, v{42+qb}")
    body_a = kitems(0, 0)+vitems(0, 0)
    body_b = kitems(1, 1)+vitems(1, 1)
    def adv_k_first():
        for ds in range(8): a(f"v_add_u32 v{20+ds}, 16384, v{20+ds}")
    emit_items(head2, body_a[:PDI], softmax_ops(0, 0), extra={4: adv_k_first}, slot0=8)
    if stamp is not None and "ls" in dbg:
        a("s_memtime s[68:69]\ns_waitcnt lgkmcnt(0)\ns_sub_u32 s70, s68, s90")
    a(f"""
    s_mov_b32 s47, 16384
    s_mov_b32 s48, 1
    s_add_u32 s49, s44, 16384
    L_{L}_aloop:
    s_add_u32 s50, s47, 16384
    s_cmp_eq_u32 s50, 49152
    s_cselect_b32 s50, 0, s50
    s_add_u32 s51, s50, 16384
    s_cmp_eq_u32 s51, 49152
    s_cselect_b32 s51, 0, s51
    s_sub_u32 s52, s50, s47               ; delta K
    s_sub_u32 s53, s47, s51               ; delta V
    s_add_u32 s45, s49, 16384             ; K(i+1) source
    s_add_u32 s54, s50, {KRING}
    s_add_u32 s55, s47, {VRING}           ; V(i) -> slot i%3
    """)
    def kd(j):
        def f():
            if j == 0: a("s_add_u32 m0, s30, s54\ns_nop 0")
            a(f"buffer_load_dwordx4 v{12+j}, s[32:35], s45 offen offset:{1024*j} lds")
        return f
    def vd(j):
        def f():
            if j == 0: a("s_add_u32 m0, s30, s55\ns_nop 0")
            a(f"buffer_load_dwordx4 v16, s[36:39], s49 offen offset:{1024*j} lds")
        return f
    exa = {0: kd(0), 1: kd(1), 2: kd(2), 3: kd(3), 4: vd(0), 5: vd(1), 6: vd(2), 7: vd(3), 9: pf_weights}
    emit_items(body_a, body_b[:PDI], softmax_ops(1, 1), extra=exa, slot0=0)
    def adv_k():
        for ds in range(8): a(f"v_add_u32 v{20+ds}, s52, v{20+ds}")
    def sync_only():
        a(f"s_waitcnt vmcnt({(1 if pfw else 0)+(1 if side else 0)})")
        a("s_barrier")
    def adv_v():
        for db in range(4): a(f"v_add_u32 v{28+db}, s53, v{28+db}")
    ex = {4: adv_k, 12: lambda: (sync_only(), adv_v())}
    emit_items(body_b, body_a[:PDI], softmax_ops(0, 0), extra=ex, slot0=16)
    a(f"""
    s_mov_b32 s47, s50
    s_add_u32 s49, s49, 16384
    s_add_u32 s48, s48, 1
    s_cmp_lt_u32 s48, 8
    s_cbranch_scc1 L_{L}_aloop
    s_waitcnt lgkmcnt(0)
    """)
    if stamp is not None and "ls" in dbg: stamp_mid(a, 1)
    t1 = vitems(0, 0); t2 = vitems(1, 1)
    for i in range(PDI):
        for s in item_reads(t1[i], i): a(s)
    emit_items(t1, t2[:PDI], softmax_ops(1, 1), slot0=0)
    a("s_nop 1")
    emit_items(t2, [], [], slot0=8)
    if stamp is not None: stamp_mid(a, 3)
    a("""
    v_mov_b32 v44, v40
    v_mov_b32 v45, v41
    s_nop 1
    v_permlane32_swap_b32 v40, v44
    v_permlane32_swap_b32 v41, v45
    s_nop 1
    v_add_f32 v40, v40, v44
    v_add_f32 v41, v41, v45
    """)
    if fallback:
        a(f"""
        v_mov_b32 v46, 0x6c800000          ; 2^90
        v_cmp_nle_f32 vcc, v40, v46
        v_cmp_nle_f32 s[56:57], v41, v46
        s_or_b64 vcc, vcc, s[56:57]
        s_cmp_lg_u64 vcc, 0
        s_cselect_b32 s58, 1, 0
        v_mov_b32 v46, s58
        v_mov_b32 v47, s30
        v_lshrrev_b32 v47, 10, v47         ; w*4
        ds_write_b32 v47, v46
        s_branch L_{L}_fin
        L_{L}_fallback:
        """)
        a(f"""
        s_barrier
        v_mov_b32 v42, 0xff800000
        v_mov_b32 v43, 0xff800000
        s_mov_b32 s48, 0
        s_mov_b32 s49, s44
        ; K read addresses back to slot 0 : current slot offset is s47 (tile 8 % 3), registers point there
        L_{L}_fbsub:
        """)
        for ds in range(8): a(f"v_subrev_u32 v{20+ds}, s47, v{20+ds}")
        a(f"L_{L}_fbloop:")
        k_dma(KRING, "s49")
        a("s_waitcnt vmcnt(0)\ns_barrier")
        for half in range(2):
            for ds in range(8):
                a(f"ds_read_b128 a[{RING+4*ds}:{RING+4*ds+3}], v{20+ds} offset:{half*8192}")
            a("s_waitcnt lgkmcnt(0)")
            for ds in range(8):
                for qb in range(2):
                    d = S(0, qb); c = "0" if ds == 0 else f"v[{d}:{d+15}]"
                    a(f"v_mfma_f32_32x32x16_bf16 v[{d}:{d+15}], a[{RING+4*ds}:{RING+4*ds+3}], {qf(qb, ds)}, {c}")
            a("s_nop 7\ns_nop 7")
            for qb in range(2):
                s = S(0, qb); m = 42+qb
                for j in range(0, 16, 2): a(f"v_max3_f32 v{m}, v{m}, v{s+j}, v{s+j+1}")
        a(f"""
        s_barrier
        s_add_u32 s49, s49, 16384
        s_add_u32 s48, s48, 1
        s_cmp_lt_u32 s48, 8
        s_cbranch_scc1 L_{L}_fbloop
        v_mov_b32 v44, v42
        v_mov_b32 v45, v43
        s_nop 1
        v_permlane32_swap_b32 v42, v44
        v_permlane32_swap_b32 v43, v45
        s_nop 1
        v_max_f32 v42, v42, v44
        v_max_f32 v43, v43, v45
        v_sub_f32 v42, 0, v42
        v_sub_f32 v43, 0, v43
        s_mov_b32 s46, 1
        """)
        for db in range(4): a(f"v_subrev_u32 v{28+db}, 16384, v{28+db}")
        a(f"s_add_u32 s45, s44, 16384")
        k_dma(KRING, "s44"); k_dma(KRING+16384, "s45"); v_dma(VRING, "s44")
        a(f"""
        s_waitcnt vmcnt(0)
        s_barrier
        """)
        for i in range(64): a(f"v_accvgpr_write_b32 a{i}, 0")
        a(f"""
        s_branch L_{L}_att
        L_{L}_fin:
        """)
    a("""
    v_rcp_f32 v44, v40
    v_rcp_f32 v45, v40
    v_rcp_f32 v46, v41
    v_rcp_f32 v47, v41
    s_nop 7
    s_nop 7
    """)
    elog = VmLog()
    side_ops = []
    if side:
        a("s_mov_b32 s27, 0xffff0000\ns_mov_b32 s9, 0xbfb8aa3b")
        so = side_ops
        a("v_lshlrev_b32 v125, 4, v1\nv_add_u32 v125, s8, v125\ns_waitcnt vmcnt(0)")
        for i in range(8): a(f"ds_read_b128 v[{128+4*i}:{131+4*i}], v125 offset:{1024*i}")
        for j in range(4):
            so.append(f"v_lshlrev_b32 v{164+2*j}, 16, v{60+j}")
            so.append(f"v_and_b32 v{165+2*j}, s27, v{60+j}")
        for j in range(8): so.append(f"v_mul_f32 v{172+j}, s9, v{164+j}")
        for j in range(8): so.append(f"v_exp_f32 v{172+j}, v{172+j}")
        for j in range(8): so.append(f"v_add_f32 v{172+j}, 1.0, v{172+j}")
        for j in range(8): so.append(f"v_rcp_f32 v{172+j}, v{172+j}")
        for j in range(8): so.append(f"v_mul_f32 v{164+j}, v{164+j}, v{172+j}")
        for j in range(4): so.append(f"v_cvt_pk_bf16_f32 v{160+j}, v{164+2*j}, v{165+2*j}")
        for j in range(4):
            so.append(f"v_lshlrev_b32 v{164+2*j}, 16, v{160+j}")
            so.append(f"v_and_b32 v{165+2*j}, s27, v{160+j}")
        for e in range(8): so.append(f"v_mov_b32 v{180+e}, 0")
        so.append("s_waitcnt lgkmcnt(0)")
        for i in range(8):
            for d in range(4):
                r = 128+4*i+d
                so.append(f"v_lshlrev_b32 v172, 16, v{r}")
                so.append(f"v_and_b32 v173, s27, v{r}")
                so.append(f"v_fmac_f32 v{180+2*d}, v{164+i}, v172")
                so.append(f"v_fmac_f32 v{181+2*d}, v{164+i}, v173")
        so.append("s_nop 1")
        for e in range(8): so.append(f"v_add_f32_dpp v{180+e}, v{180+e}, v{180+e} row_ror:8 row_mask:0xf bank_mask:0xf")
        for sw in ["v_permlane16_swap_b32", "v_permlane32_swap_b32"]:
            for e in range(8): so.append(f"v_mov_b32 v{172+e}, v{180+e}")
            so.append("s_nop 1")
            for e in range(8): so.append(f"{sw} v{180+e}, v{172+e}")
            so.append("s_nop 1")
            for e in range(8): so.append(f"v_add_f32 v{180+e}, v{180+e}, v{172+e}")
    nside = len(side_ops); per = (nside+13)//14 if nside else 0
    def side_emit(n):
        for _ in range(n):
            if not side_ops: return
            o = side_ops.pop(0)
            if isinstance(o, tuple): a(f"s_waitcnt vmcnt({elog.wait_for(lambda x: x == o[1])})")
            else: a(o)
    a(f"""
    s_mul_i32 s26, s25, {4096*64}
    s_lshl_b32 s31, s24, 13
    s_add_u32 s26, s26, s31
    """)
    for qb in range(2):
        if qb == 1: a(f"s_add_u32 s26, s26, {4096*64-4096}")
        for db in range(4):
            o = O(db, qb)
            for j in range(16): a(f"v_accvgpr_read_b32 v{64+j}, a{o+j}")
            for j in range(0, 16, 2): a(f"v_pk_mul_f32 v[{64+j}:{65+j}], v[{64+j}:{65+j}], v[{44+2*qb}:{45+2*qb}]")
            t = 80+8*(db & 1)
            for j in range(8): a(f"v_cvt_pk_bf16_f32 v{t+j}, v{64+2*j}, v{64+2*j+1}")
            if db == 2: a("s_add_u32 s26, s26, 4096")
            a(f"buffer_store_dwordx4 v[{t}:{t+3}], v2, s[40:43], s26 offen offset:{(db&1)*2048}{stflag}"); elog.issue(('s',))
            side_emit(per)
            a(f"buffer_store_dwordx4 v[{t+4}:{t+7}], v2, s[40:43], s26 offen offset:{(db&1)*2048+1024}{stflag}"); elog.issue(('s',))
            side_emit(per)
    side_emit(10000)
    if side:
        a(f"""
        s_lshl_b32 s9, s20, 8
        v_lshlrev_b32 v125, 5, v1
        v_add_u32 v125, s9, v125               ; w*256 + lane*32
        v_cmp_gt_u32 vcc, 8, v1
        s_and_saveexec_b64 s[56:57], vcc
        ds_write_b128 v125, v[180:183] offset:1024
        ds_write_b128 v125, v[184:187] offset:1040
        s_mov_b64 exec, s[56:57]
        s_waitcnt lgkmcnt(0)
        s_barrier
        s_cmp_lg_u32 s20, 0
        s_cbranch_scc1 L_{L}_side_done
        v_lshlrev_b32 v125, 2, v1
        ds_read_b32 v172, v125 offset:1024
        ds_read_b32 v173, v125 offset:1280
        ds_read_b32 v174, v125 offset:1536
        ds_read_b32 v175, v125 offset:1792
        s_lshl_b32 s9, s6, 14
        s_lshl_b32 s31, s7, 8
        s_add_u32 s9, s9, s31
        s_add_u32 s56, s10, {WS_PB}
        s_addc_u32 s57, s11, 0
        s_mov_b32 s58, {4*4096*4}
        s_mov_b32 s59, 0x20000
        s_waitcnt lgkmcnt(0)
        v_add_f32 v172, v172, v173
        v_add_f32 v174, v174, v175
        v_add_f32 v172, v172, v174
        buffer_store_dword v172, v125, s[56:59], s9 offen
        L_{L}_side_done:
        """)
    if fallback:
        if not side: a("s_waitcnt lgkmcnt(0)\ns_barrier")
        a(f"""
        s_cmp_eq_u32 s46, 1
        s_cbranch_scc1 L_{L}_end
        v_mov_b32 v47, 0
        ds_read_b128 v[48:51], v47
        s_waitcnt lgkmcnt(0)
        v_or_b32 v48, v48, v49
        v_or_b32 v50, v50, v51
        v_or_b32 v48, v48, v50
        s_nop 0
        v_readfirstlane_b32 s58, v48
        s_cmp_lg_u32 s58, 0
        s_cbranch_scc1 L_{L}_fallback
        L_{L}_end:
        """)
    if stamp is not None:
        stamp_mid(a, 4); stamp_end2(a, stamp, 10)
    a(f"""
    L_{L}_done:
    s_endpgm
    """)
    txt = a.text()
    return (name, (256,1,1), (256,1,1), 163840), txt, kernel_desc(name, 256+192, accum=256)
```

```python
from asmlib import *
from gen_small import *
import struct

def gen_k01(name="k01_kernel", outscale=1.0, stamp=None, stflag=" sc1", spin_max=200000):
    a = Asm(); L = name
    osc = struct.unpack("<I", struct.pack("<f", outscale))[0]
    kernel_begin(a, name)
    a(f"""
    s_cmp_ge_u32 s2, 256
    s_cbranch_scc1 L_{L}_done
    s_load_dwordx4 s[4:7], s[0:1], 64      ; c s[4:5], w_mod s[6:7]
    s_load_dwordx2 s[8:9], s[0:1], 96      ; ws
    s_load_dwordx4 s[48:51], s[0:1], 0     ; x s[48:49], k s[50:51]
    s_load_dwordx4 s[52:55], s[0:1], 16    ; v s[52:53], wq s[54:55]
    s_load_dwordx2 s[56:57], s[0:1], 88    ; debug
    """)
    if stamp is not None: stamp_begin(a)
    a(f"""
    s_getpc_b64 s[58:59]
    L_{L}_pc:
    s_add_u32 s58, s58, L_code_begin-L_{L}_pc
    s_addc_u32 s59, s59, 0
    v_and_b32 v1, 7, v0
    v_lshrrev_b32 v2, 3, v0              ; 8w + cl
    v_and_b32 v3, 7, v2                  ; cl
    v_lshrrev_b32 v4, 6, v0              ; w
    v_lshl_add_u32 v5, v4, 4, v3
    s_lshr_b32 s10, s2, 2
    s_and_b32 s11, s2, 3
    s_lshl_b32 s10, s10, 16
    s_lshl_b32 s11, s11, 7
    s_add_u32 s10, s10, s11
    v_lshlrev_b32 v6, 9, v5
    v_lshl_add_u32 v6, v1, 4, v6
    v_add_u32 v6, s10, v6
    s_lshl_b32 s12, s2, 14
    v_lshlrev_b32 v7, 11, v1
    v_lshl_add_u32 v7, v5, 4, v7
    v_add_u32 v7, s12, v7                ; x offset
    s_and_b32 s20, s2, 3
    s_lshr_b32 s21, s2, 2
    v_lshlrev_b32 v8, 2, v2
    s_lshl_b32 s22, s20, 8
    v_add_u32 v8, s22, v8
    s_mov_b32 s24, 12288
    v_mul_lo_u32 v9, v8, s24
    v_lshlrev_b32 v10, 4, v1
    s_lshl_b32 s25, s21, 7
    v_add3_u32 v9, v9, v10, s25
    v_lshlrev_b32 v8, 1, v8
    v_readfirstlane_b32 s40, v4
    s_waitcnt lgkmcnt(0)
    """)
    srd(a, 12, 6, 1024*6144*2)
    srd(a, 16, 4, 2048)
    srd(a, 32, 48, 2048*1024*2)
    srd(a, 20, 8, 4*2048*4, WS_PA)
    srd(a, 24, 8, 2048*1024*2, WS_HF)
    a(f"""
    s_mov_b32 s45, 0xffff0000
    s_mov_b32 s46, 0xbfb8aa3b
    s_cmp_eq_u32 s40, 8
    s_cbranch_scc1 L_{L}_ctrl
    s_cmp_ge_u32 s2, 128
    s_cbranch_scc1 L_{L}_a_other
    buffer_load_dwordx2 v[44:45], v8, s[16:19], 0 offen
    s_mov_b32 s47, 0
    """)
    for i in range(4):
        a(f"buffer_load_dwordx4 v[{64+4*i}:{67+4*i}], v9, s[12:15], s47 offen")
        if i < 3: a("s_add_u32 s47, s47, 12288")
    a("""
    buffer_load_dwordx4 v[12:15], v7, s[32:35], 0 offen
    buffer_load_dwordx4 v[16:19], v7, s[32:35], 0 offen offset:128
    s_waitcnt vmcnt(6)
    v_lshlrev_b32 v46, 16, v44
    v_and_b32 v47, s45, v44
    v_lshlrev_b32 v48, 16, v45
    v_and_b32 v49, s45, v45
    """)
    for j in range(4): a(f"v_mul_f32 v{50+j}, s46, v{46+j}")
    for j in range(4): a(f"v_exp_f32 v{50+j}, v{50+j}")
    for j in range(4): a(f"v_add_f32 v{50+j}, 1.0, v{50+j}")
    for j in range(4): a(f"v_rcp_f32 v{50+j}, v{50+j}")
    for j in range(4): a(f"v_mul_f32 v{46+j}, v{46+j}, v{50+j}")
    a("""
    v_cvt_pk_bf16_f32 v44, v46, v47
    v_cvt_pk_bf16_f32 v45, v48, v49
    v_lshlrev_b32 v46, 16, v44
    v_and_b32 v47, s45, v44
    v_lshlrev_b32 v48, 16, v45
    v_and_b32 v49, s45, v45
    """)
    for e in range(8): a(f"v_mov_b32 v{52+e}, 0")
    for i in range(4):
        a(f"s_waitcnt vmcnt({5-i})")
        for d in range(4):
            r = 64+4*i+d
            a(f"v_lshlrev_b32 v60, 16, v{r}")
            a(f"v_and_b32 v61, s45, v{r}")
            a(f"v_fmac_f32 v{52+2*d}, v{46+i}, v60")
            a(f"v_fmac_f32 v{53+2*d}, v{46+i}, v61")
    a("s_nop 1")
    for e in range(8): a(f"v_add_f32_dpp v{52+e}, v{52+e}, v{52+e} row_ror:8 row_mask:0xf bank_mask:0xf")
    for sw in ["v_permlane16_swap_b32", "v_permlane32_swap_b32"]:
        for e in range(8): a(f"v_mov_b32 v{80+e}, v{52+e}")
        a("s_nop 1")
        for e in range(8): a(f"{sw} v{52+e}, v{80+e}")
        a("s_nop 1")
        for e in range(8): a(f"v_add_f32 v{52+e}, v{52+e}, v{80+e}")
    a(f"""
    v_and_b32 v60, 63, v0
    v_lshlrev_b32 v61, 8, v4
    v_lshl_add_u32 v61, v60, 5, v61
    v_cmp_gt_u32 vcc, 8, v60
    s_and_saveexec_b64 s[60:61], vcc
    ds_write_b128 v61, v[52:55] offset:1024
    ds_write_b128 v61, v[56:59] offset:1040
    s_mov_b64 exec, s[60:61]
    s_branch L_{L}_a_done
    L_{L}_a_other:
    buffer_load_dwordx4 v[12:15], v7, s[32:35], 0 offen
    buffer_load_dwordx4 v[16:19], v7, s[32:35], 0 offen offset:128
    L_{L}_a_done:
    s_waitcnt vmcnt(0)
    """)
    for j in range(8):
        a(f"v_lshlrev_b32 v{20+2*j}, 16, v{12+j}")
        a(f"v_and_b32 v{21+2*j}, s45, v{12+j}")
    def reduce_lanes(r, t):
        a("s_nop 1")
        a(f"v_add_f32_dpp v{r}, v{r}, v{r} row_ror:8 row_mask:0xf bank_mask:0xf")
        a(f"v_mov_b32 v{t}, v{r}")
        a("s_nop 1")
        a(f"v_permlane16_swap_b32 v{r}, v{t}")
        a("s_nop 1")
        a(f"v_add_f32 v{r}, v{r}, v{t}")
        a(f"v_mov_b32 v{t}, v{r}")
        a("s_nop 1")
        a(f"v_permlane32_swap_b32 v{r}, v{t}")
        a("s_nop 1")
        a(f"v_add_f32 v{r}, v{r}, v{t}")
    a("v_add_f32 v36, v20, v21")
    a("v_add_f32 v37, v22, v23")
    for j in range(2, 8):
        a(f"v_add_f32 v{36+(j&1)}, v{36+(j&1)}, v{20+2*j}")
        a(f"v_add_f32 v{36+(j&1)}, v{36+(j&1)}, v{21+2*j}")
    a("v_add_f32 v36, v36, v37")
    reduce_lanes(36, 38)
    a("v_mul_f32 v36, 0x3c000000, v36")
    for j in range(16): a(f"v_sub_f32 v{64+j}, v{20+j}, v36")
    a("v_mul_f32 v37, v64, v64")
    a("v_mul_f32 v39, v65, v65")
    for j in range(2, 16, 2):
        a(f"v_fmac_f32 v37, v{64+j}, v{64+j}")
        a(f"v_fmac_f32 v39, v{65+j}, v{65+j}")
    a("v_add_f32 v37, v37, v39")
    reduce_lanes(37, 38)
    a("""
    v_lshlrev_b32 v40, 6, v1
    v_lshl_add_u32 v41, v4, 3, v40
    v_and_b32 v42, 63, v0
    v_cmp_gt_u32 vcc, 8, v42
    s_and_saveexec_b64 s[60:61], vcc
    ds_write_b64 v41, v[36:37]
    s_mov_b64 exec, s[60:61]
    s_waitcnt lgkmcnt(0)
    s_barrier
    """)
    if stamp is not None: stamp_mid(a, 0)
    srd(a, 36, 54, 1024*4096*2)
    a(f"""
    v_and_b32 v44, 63, v0
    v_lshrrev_b32 v45, 4, v44
    v_and_b32 v46, 15, v44
    v_lshlrev_b32 v46, 7, v46
    v_lshl_add_u32 v46, v45, 13, v46
    s_lshr_b32 s41, s2, 3
    s_lshl_b32 s41, s41, 3
    s_add_u32 s41, s41, s40
    s_and_b32 s43, s2, 3
    s_lshl_b32 s44, s43, 11
    s_lshl_b32 s42, s41, 15
    s_add_u32 s42, s42, s44
    buffer_load_dword v47, v46, s[36:39], s42 offen
    v_lshlrev_b32 v45, 7, v44            ; lane*128
    s_cmp_ge_u32 s41, 32
    s_cbranch_scc1 L_{L}_t_code
    s_cmp_ge_u32 s41, 16
    s_cselect_b32 s36, s52, s50
    s_cselect_b32 s37, s53, s51
    s_mov_b32 s38, {4*2048*128*2}
    s_and_b32 s42, s41, 15
    s_lshl_b32 s42, s42, 13
    s_lshl_b32 s44, s43, 19
    s_add_u32 s42, s42, s44
    s_add_u32 s42, s42, {1536*256}
    buffer_load_dword v48, v45, s[36:39], s42 offen
    s_branch L_{L}_b_done
    L_{L}_t_code:
    s_cmp_ge_u32 s41, 48
    s_cbranch_scc1 L_{L}_b_done
    s_sub_u32 s42, s41, 32
    s_lshl_b32 s42, s42, 13
    v_add_u32 v45, s42, v45
    v_min_u32 v45, L_code_end-L_code_begin, v45
    global_load_dword v48, v45, s[58:59]
    L_{L}_b_done:
    ds_read_b128 v[64:67], v40
    ds_read_b128 v[68:71], v40 offset:16
    ds_read_b128 v[72:75], v40 offset:32
    ds_read_b128 v[76:79], v40 offset:48
    s_waitcnt lgkmcnt(0)
    """)
    a("v_add_f32 v36, v64, v66")
    for j in range(2, 8): a(f"v_add_f32 v36, v36, v{64+2*j}")
    a("v_mul_f32 v36, 0x3e000000, v36")
    a("v_add_f32 v37, v65, v67")
    for j in range(2, 8): a(f"v_add_f32 v37, v37, v{65+2*j}")
    for j in range(8): a(f"v_sub_f32 v{64+2*j}, v{64+2*j}, v36")
    a("v_mul_f32 v38, v64, v64")
    for j in range(1, 8): a(f"v_fmac_f32 v38, v{64+2*j}, v{64+2*j}")
    a(f"""
    v_mov_b32 v39, 0x43000000
    v_fmac_f32 v37, v39, v38
    v_mov_b32 v39, 0x3727c5ac
    v_fmac_f32 v39, 0x3a800000, v37
    v_rsq_f32 v39, v39
    s_nop 0
    """)
    for j in range(16): a(f"v_sub_f32 v{20+j}, v{20+j}, v36")
    for j in range(16): a(f"v_mul_f32 v{20+j}, v{20+j}, v39")
    a("v_lshlrev_b32 v62, 5, v5            ; chunk0*32")
    a("s_barrier")
    if stamp is not None: stamp_mid(a, 1)
    a("""
    ds_read_b128 v[64:67], v62 offset:4096
    ds_read_b128 v[68:71], v62 offset:4112
    ds_read_b128 v[72:75], v62 offset:4352
    ds_read_b128 v[76:79], v62 offset:4368
    ds_read_b128 v[80:83], v62 offset:8192
    ds_read_b128 v[84:87], v62 offset:8208
    ds_read_b128 v[88:91], v62 offset:8448
    ds_read_b128 v[92:95], v62 offset:8464
    s_waitcnt lgkmcnt(0)
    """)
    for j in range(16): a(f"v_add_f32 v{80+j}, 1.0, v{80+j}")
    for j in range(16): a(f"v_fmac_f32 v{64+j}, v{20+j}, v{80+j}")
    if outscale != 1.0:
        a(f"s_mov_b32 s28, {osc}")
        for j in range(16): a(f"v_mul_f32 v{64+j}, s28, v{64+j}")
    for j in range(8): a(f"v_cvt_pk_bf16_f32 v{12+j}, v{64+2*j}, v{65+2*j}")
    a(f"""
    v_add_u32 v7, 4096, v6
    buffer_store_dwordx4 v[12:15], v6, s[24:27], 0 offen{stflag}
    buffer_store_dwordx4 v[16:19], v7, s[24:27], 0 offen{stflag}
    """)
    if stamp is not None:
        stamp_mid(a, 2); a("s_mov_b32 s73, 0\ns_mov_b32 s74, 0"); stamp_end2(a, stamp, 8)
    a(f"""
    s_endpgm
    L_{L}_ctrl:
    v_and_b32 v42, 63, v0                ; lane
    v_lshlrev_b32 v43, 2, v42            ; lane*4
    s_barrier
    """)
    if stamp is not None: stamp_mid(a, 0)
    a(f"""
    s_cmp_ge_u32 s2, 128
    s_cbranch_scc1 L_{L}_nopub
    """)
    for j in range(8): a(f"ds_read_b32 v{80+j}, v43 offset:{1024+256*j}")
    a(f"""
    s_lshl_b32 s41, s21, 8
    s_lshl_b32 s42, s20, 13
    s_add_u32 s41, s41, s42
    v_add_u32 v45, s41, v43
    s_waitcnt lgkmcnt(0)
    v_add_f32 v80, v80, v81
    v_add_f32 v82, v82, v83
    v_add_f32 v84, v84, v85
    v_add_f32 v86, v86, v87
    v_add_f32 v80, v80, v82
    v_add_f32 v84, v84, v86
    v_add_f32 v80, v80, v84
    buffer_store_dword v80, v45, s[20:23], 0 offen sc1
    s_waitcnt vmcnt(0)
    s_mov_b64 s[60:61], exec
    s_mov_b64 exec, 1
    s_and_b32 s41, s2, 63
    s_lshl_b32 s41, s41, 2
    v_mov_b32 v45, s41
    v_mov_b32 v44, 1
    global_atomic_add v45, v44, s[56:57]
    s_mov_b64 exec, s[60:61]
    L_{L}_nopub:
    """)
    if stamp is not None: stamp_mid(a, 1)
    a(f"""
    s_mov_b32 s41, 0
    L_{L}_poll:
    global_load_dword v44, v43, s[56:57] sc1
    s_waitcnt vmcnt(0)
    v_cmp_le_u32 vcc, 2, v44
    s_nop 1
    s_cmp_eq_u64 vcc, -1
    s_cbranch_scc1 L_{L}_polled
    s_add_u32 s41, s41, 1
    s_cmp_lt_u32 s41, {spin_max}
    s_cbranch_scc0 L_{L}_polled
    s_sleep 1
    s_branch L_{L}_poll
    L_{L}_polled:
    """)
    if stamp is not None: stamp_mid(a, 2); a("s_mov_b32 s74, s41")
    a("v_lshlrev_b32 v3, 4, v42            ; lane*16")
    for i in range(8):
        for q in range(4):
            a(f"s_mov_b32 s41, {q*8192+i*1024}")
            a(f"buffer_load_dwordx4 v[{40+16*i+4*q}:{43+16*i+4*q}], v3, s[20:23], s41 offen sc1")
    for i in range(8):
        a(f"s_waitcnt vmcnt({28-4*i})")
        b = 40+16*i
        for j in range(4):
            a(f"v_add_f32 v{b+j}, v{b+j}, v{b+4+j}")
            a(f"v_add_f32 v{b+8+j}, v{b+8+j}, v{b+12+j}")
        for j in range(4): a(f"v_add_f32 v{b+j}, v{b+j}, v{b+8+j}")
        a(f"ds_write_b128 v3, v[{b}:{b+3}] offset:{4096+1024*i}")
    if stamp is not None:
        a("s_waitcnt lgkmcnt(0)"); stamp_mid(a, 3)
        a("v_mov_b32 v0, 0")
        stamp_end2(a, 1, 8)
    a(f"""
    s_waitcnt lgkmcnt(0)
    s_barrier
    L_{L}_done:
    s_endpgm
    L_code_begin:
    s_endpgm
    """)
    return (name, (256,1,1), (576,1,1), 4096+8192), a.text(), kernel_desc(name, 168, sgpr=102)
```

```python
from asmlib import *
from gen_small import *
from gen_gemm import lane_common, tr_lane_terms
from gen_g256 import G256, G16, g16_setup_w, g16_setup_tr
from stream import VmLog

NOTNEEDED = ('v_lshl_add_u32 v4,', 'v_add_u32 v5,', 'v_add_u32 v6,', 'v_add_u32 v7,', 'v_lshl_add_u32 v8,', 'v_lshl_add_u32 v9,', 'v_lshl_add_u32 v10,', 'v_lshl_add_u32 v11,')
KRING = 65536
VRING = 65536+49152
BIAS = 30.0

def gen_attn(name="attn_kernel", stamp=None, fallback=True, dbg="", pfw=True, pfstride=64, stflag="", side=False, m16=False, QT=2, fuse_oproj=None):
    a = Asm(); L = name
    kernel_begin(a, name)
    a(f"""
    s_cmp_ge_u32 s2, 256
    s_cbranch_scc1 L_{L}_done
    s_load_dwordx4 s[4:7], s[0:1], 8
    s_load_dwordx2 s[8:9], s[0:1], 24      ; wq
    s_load_dwordx2 s[10:11], s[0:1], 96    ; ws
    s_load_dwordx2 s[60:61], s[0:1], 32    ; wo
    s_load_dwordx4 s[64:67], s[0:1], 48    ; w1 s[64:65], w2 s[66:67]
    s_load_dwordx2 s[82:83], s[0:1], 72    ; w_mod
    s_load_dwordx2 s[100:101], s[0:1], 64  ; c
    """)
    if stamp is not None: stamp_begin(a)
    lane_common(a)
    a("""
    s_and_b32 s21, s2, 7
    s_lshr_b32 s22, s2, 3
    s_and_b32 s23, s21, 3
    s_lshl_b32 s24, s23, 3
    s_and_b32 s25, s22, 7
    s_add_u32 s24, s24, s25                ; head
    s_lshr_b32 s25, s21, 2
    s_lshl_b32 s25, s25, 2
    s_lshr_b32 s26, s22, 3
    s_add_u32 s25, s25, s26
    s_lshl_b32 s25, s25, 3
    s_lshl_b32 s26, s20, 1
    s_add_u32 s25, s25, s26
    v_add_u32 v3, 0x10000, v2              ; h voffset for qb=1
    """)
    a_main0 = a
    if m16: a = Asm()
    a(f"""
    ; ---- DMA voffsets
    v_lshrrev_b32 v32, 4, v1               ; L>>4
    v_and_b32 v33, 15, v1                  ; p
    v_lshlrev_b32 v34, 2, v32
    v_xor_b32 v34, v33, v34                ; p ^ ((L>>4)<<2)
    v_lshlrev_b32 v34, 4, v34
    v_lshl_add_u32 v4, v32, 13, v34        ; W: row*8192 + c*16
    v_add_u32 v5, 31744, v4                ; + 4*8192 - 1024
    v_add_u32 v6, 63488, v4
    v_add_u32 v7, 95232, v4
    v_lshl_add_u32 v16, v32, 8, v34        ; V: row*256 + c*16
    """)
    for i in range(4):
        a(f"""
        v_add_u32 v35, {4*i}, v32
        v_xor_b32 v35, v33, v35
        v_lshlrev_b32 v35, 4, v35
        v_lshl_add_u32 v{12+i}, v32, 8, v35
        """)
    tr_lane_terms(a, 32, 33, 34, 35)
    a("""
    v_lshrrev_b32 v35, 1, v34              ; sw>>1
    v_lshl_add_u32 v35, v33, 1, v35        ; c0 = 2*(g&1) + (sw>>1)
    v_bfe_u32 v36, v1, 2, 2                ; i>>2
    v_lshlrev_b32 v37, 2, v36              ; swz = (i>>2)<<2
    v_and_b32 v34, 1, v34
    v_lshlrev_b32 v34, 3, v34              ; half8*8
    v_lshl_add_u32 v38, v32, 8, v34
    v_lshrrev_b32 v39, 5, v1               ; hh
    v_lshl_add_u32 v39, v39, 2, v36        ; 4hh + (i>>2)
    v_lshl_add_u32 v39, v39, 8, v34
    """)
    for db in range(4):
        a(f"""
        v_or_b32 v42, {4*db}, v35
        v_xor_b32 v42, v42, v37
        v_lshl_add_u32 v{8+db}, v42, 4, v38
        v_lshl_add_u32 v{28+db}, v42, 4, v39
        v_add_u32 v{28+db}, {VRING}, v{28+db}
        """)
    a("""
    v_and_b32 v32, 31, v1                  ; r
    v_lshrrev_b32 v33, 5, v1               ; hh
    v_and_b32 v34, 15, v1
    """)
    for ds in range(8):
        a(f"""
        v_or_b32 v35, {2*ds}, v33
        v_xor_b32 v35, v35, v34
        v_lshlrev_b32 v35, 4, v35
        v_lshl_add_u32 v{20+ds}, v32, 8, v35
        v_add_u32 v{20+ds}, {KRING}, v{20+ds}
        """)
    early = a; a = a_main0
    if m16:
        g16_setup_w(a, 8192)
        a("""
        v_lshrrev_b32 v52, 4, v1
        v_lshlrev_b32 v52, 9, v52
        v_and_b32 v53, 15, v1
        v_lshl_add_u32 v52, v53, 4, v52        ; (l>>4)*512 + (l&15)*16
        v_add_u32 v53, 0x10000, v52
        """)
    a("s_waitcnt lgkmcnt(0)")
    if stamp is not None and "ls" not in dbg: stamp_mid(a, 0)
    srd(a, 12, 8, 1024*4096*2)
    a(f"""
    s_lshl_b32 s26, s25, 16
    s_add_u32 s26, s26, {WS_HF}
    s_add_u32 s16, s10, s26
    s_addc_u32 s17, s11, 0
    s_mov_b32 s18, 131072
    s_mov_b32 s19, 0x20000
    """)
    a(f"""
    s_mul_i32 s28, s20, {16*8192}
    s_lshl_b32 s26, s24, 8
    s_add_u32 s28, s28, s26                ; W soffset
    s_mov_b32 s29, 0                       ; h soffset
    s_lshl_b32 s30, s20, 12                ; wave LDS offset (4096*w)
    """)
    a_main = a; a = Asm()
    srd(a, 32, 4, 4*2048*128*2)
    srd(a, 36, 6, 4*2048*128*2)
    srd(a, 40, 10, 2048*4096*2, WS_OF)
    a(f"""
    s_lshl_b32 s44, s23, 19                ; g*524288
    s_add_u32 s44, s44, {1536*256}
    s_add_u32 s44, s44, s30                ; + 16w rows*256 : KV soffset for tile 0
    """)
    a(f"""
    s_lshl_b32 s26, s2, 2
    s_add_u32 s26, s26, s20
    s_mul_i32 s26, s26, 8192
    v_lshlrev_b32 v17, 7, v1
    v_add_u32 v17, s26, v17
    s_mul_i32 s26, s26, 3
    s_lshr_b32 s26, s26, 1                 ; gid*12288
    s_add_u32 s26, s26, 4096
    v_lshlrev_b32 v19, 7, v1
    v_add_u32 v19, s26, v19
    s_mov_b32 s62, {3584*1024*2}
    s_mov_b32 s79, 0x20000
    s_and_b32 s80, s2, 1
    s_mov_b32 s81, {4096*1024*2}
    """)
    def pf_static(idx):
        def f():
            m, ph = idx >> 2, idx & 3
            ptr = {0: 82, 1: 60, 2: 64, 3: 66}[m]; size = {0: 1024*6144*2, 1: 4096*1024*2, 2: 3584*1024*2, 3: 3584*1024*2}[m]
            return [f"s_mov_b32 s76, s{ptr}", f"s_mov_b32 s77, s{ptr+1}", f"s_mov_b32 s63, {size}", f"s_cmp_eq_u32 s80, {ph}",
                    "s_cselect_b32 s78, s63, 0", f"buffer_load_dword v18, v{19 if m == 0 else 17}, s[76:79], 0 offen"]
        return f
    SIDE = 8192
    if side:
        a(f"""
        s_and_b32 s6, s2, 3
        s_lshr_b32 s7, s2, 2
        s_lshl_b32 s8, s6, 8
        s_lshl_b32 s9, s20, 6
        s_add_u32 s8, s8, s9
        v_lshrrev_b32 v56, 3, v1
        v_lshl_add_u32 v56, v56, 3, s8         ; row0
        v_lshlrev_b32 v57, 1, v56              ; c offset
        s_mov_b32 s9, 12288
        v_mul_lo_u32 v56, v56, s9
        v_and_b32 v58, 7, v1
        v_lshlrev_b32 v58, 4, v58
        s_lshl_b32 s9, s7, 7
        s_add_u32 s9, s9, 4096
        v_add3_u32 v56, v56, v58, s9           ; w_mod offset (row i adds i*12288)
        s_mov_b32 s84, s82
        s_mov_b32 s85, s83
        s_mov_b32 s86, {1024*6144*2}
        s_mov_b32 s87, 0x20000
        s_lshl_b32 s8, s20, 13
        s_add_u32 s8, s8, {SIDE}
        """)
        srd(a, 4, 100, 2048)
        a("buffer_load_dwordx4 v[60:63], v57, s[4:7], 0 offen")
        a("s_and_b32 s6, s2, 3\ns_lshr_b32 s7, s2, 2")
    deferred = a; a = a_main
    def side_dma(idx_expr_static=None):
        if not side: return
        if idx_expr_static is not None:
            a(f"s_add_u32 m0, s8, {idx_expr_static*1024}\ns_mov_b32 s63, {idx_expr_static*12288}\nbuffer_load_dwordx4 v56, s[84:87], s63 offen lds")
        else:
            a("""
            s_sub_u32 s63, s48, 1
            s_lshl_b32 s9, s63, 10
            s_add_u32 m0, s8, s9
            s_mul_i32 s63, s63, 12288
            buffer_load_dwordx4 v56, s[84:87], s63 offen lds
            """)
    def pf_weights():
        side_dma()
        if not pfw: return
        a(f"""
        s_sub_u32 s63, s48, s80            ; 1: wo 3: w1 5: w2
        s_cmp_eq_u32 s63, 1
        s_cselect_b32 s76, s60, s64
        s_cselect_b32 s77, s61, s65
        s_cselect_b32 s78, s81, 0
        s_cmp_eq_u32 s63, 3
        s_cselect_b32 s78, s62, s78
        s_cmp_eq_u32 s63, 5
        s_cselect_b32 s76, s66, s76
        s_cselect_b32 s77, s67, s77
        s_cselect_b32 s78, s62, s78
        buffer_load_dword v18, v17, s[76:79], 0 offen
        """)
    QACC = 64
    def qacc(db, qb): r = QACC+(2*db+qb)*16; return r
    def k_dma(ldsoff_expr, tile_soff):
        a(f"s_add_u32 m0, s30, {ldsoff_expr}")
        a("s_nop 0")
        for j in range(4): a(f"buffer_load_dwordx4 v{12+j}, s[32:35], {tile_soff} offen offset:{1024*j} lds")
    def v_dma(ldsoff_expr, tile_soff):
        a(f"s_add_u32 m0, s30, {ldsoff_expr}")
        a("s_nop 0")
        for j in range(4): a(f"buffer_load_dwordx4 v16, s[36:39], {tile_soff} offen offset:{1024*j} lds")
    g = G16(a, 16, 8192, 4, 4, ACC=QACC, vW=4, vT=44, vA=(52, 53)) if m16 else G256(a, 16, 8192, 4, 4, ACC=QACC, vW=4, vT=8)
    g.issue_stage(0)
    if m16:
        a.lines += [l for l in early.lines if not any(l.strip().startswith(p) for p in NOTNEEDED)]
        g16_setup_tr(a, 44, 1)
    a.lines += deferred.lines
    if side: g.log.issue(('E', 'c'))
    g.issue_stage(1)
    for i in range(128): a(f"v_mov_b32 v{QACC+i}, 0")
    a("s_mov_b32 s46, 0")
    a(f"s_add_u32 s45, s44, 16384")
    extra = []
    def mk(kind, ldsoff, soff, j):
        def f():
            out = []
            if g.cur['m0'] != ('x', ldsoff):
                out += [f"s_add_u32 m0, s30, {ldsoff}", "s_nop 0"]; g.cur['m0'] = ('x', ldsoff)
            if kind == 'K': out.append(f"buffer_load_dwordx4 v{12+j}, s[32:35], {soff} offen offset:{1024*j} lds")
            else: out.append(f"buffer_load_dwordx4 v16, s[36:39], {soff} offen offset:{1024*j} lds")
            return out
        return f
    for (kind, ldsoff, soff) in [('K', KRING, "s44"), ('K', KRING+16384, "s45"), ('V', VRING, "s44")]:
        for j in range(4): extra.append((('X', kind, j), mk(kind, ldsoff, soff, j)))
    g.first_wait2()
    if stamp is not None and "ls" not in dbg: stamp_mid(a, 1); a("s_nop 0")
    ea = {9: [0,1,2,3], 11: [4,5,6,7], 13: [8,9,10,11]}
    if m16:
        def qpost(p_):
            ops = []
            for p in (range(4) if p_ is None else [p_]):
                for m_ in range(2):
                    for j in (2*p, 2*p+1): ops += g.pack_ops(j, m_, 192+32*m_+4*j)
            return ops
        ea = {7: [0,1,2,3], 9: [4,5,6,7], 11: [8,9,10,11]}
        n_norm = (16-QT)*16
        zfill = {n_norm+k: [f"v_accvgpr_write_b32 a{2*k}, 0", f"v_accvgpr_write_b32 a{2*k+1}, 0"] for k in range(32)} if QT == 2 else None
        g.stream2(2, gap=2, extra=extra, extra_after=ea, T=QT, post=qpost, fill=zfill)
    else:
        g.stream2(2, gap=2, extra=extra, extra_after=ea, T=0)
    a("s_waitcnt vmcnt(0)")
    a("s_barrier")
    if stamp is not None: stamp_mid(a, 2)
    QF = 192
    def qf(qb, ds): r = QF+32*qb+4*ds; return f"v[{r}:{r+3}]"
    if not m16:
        a("s_nop 7\ns_nop 7")
        for qb in range(2):
            for ds in range(8):
                c = qacc(ds >> 1, qb)+8*(ds & 1)
                for j in range(4):
                    a(f"v_cvt_pk_bf16_f32 v{QF+32*qb+4*ds+j}, v{c+2*j}, v{c+2*j+1}")
    def S(b, qb): return 64+32*b+16*qb
    def P(b, qb, ks): return 128+16*b+8*qb+4*ks
    def NM(qb): return 160+16*qb
    def O(db, qb): return (2*db+qb)*16
    RING = 128
    LREG = (40, 41)
    PDI = 4
    def item_reads(it, slot):
        r = RING+4*(slot % 8)
        if it[0] == 'K':
            _, half, ds = it[:3]
            return [f"ds_read_b128 a[{r}:{r+3}], v{20+ds} offset:{half*8192}"]
        _, half, ks, db = it[:4]
        return [f"ds_read_b64_tr_b16 a[{r+2*hf}:{r+2*hf+1}], v{28+db} offset:{(half*32+16*ks+8*hf)*256}" for hf in range(2)]
    def item_mfma(it, slot, qb):
        r = RING+4*(slot % 8)
        if it[0] == 'K':
            _, half, ds, sb, cmode = it
            d = S(sb, qb)
            if ds == 0: c = "0" if cmode == 'zero' else f"v[{NM(qb)}:{NM(qb)+15}]"
            else: c = f"v[{d}:{d+15}]"
            return f"v_mfma_f32_32x32x16_bf16 v[{d}:{d+15}], a[{r}:{r+3}], {qf(qb, ds)}, {c}"
        _, half, ks, db, pb = it
        o = O(db, qb); p = P(pb, qb, ks)
        return f"v_mfma_f32_32x32x16_bf16 a[{o}:{o+15}], a[{r}:{r+3}], v[{p}:{p+3}], a[{o}:{o+15}]"
    def nreads(it): return 1 if it[0] == 'K' else 2
    def softmax_ops(sb, pb):
        ops = []; prev = None
        for qb in range(2):
            for j in range(8):
                e0 = S(sb, qb)+2*j; e1 = e0+1
                ops.append(f"v_exp_f32 v{e0}, v{e0}")
                ops.append(f"v_exp_f32 v{e1}, v{e1}")
                if prev: ops += prev
                prev = [f"v_add_f32 v{LREG[qb]}, v{LREG[qb]}, v{e0}",
                        f"v_cvt_pk_bf16_f32 v{P(pb, qb, j >> 2)+(j & 3)}, v{e0}, v{e1}",
                        f"v_add_f32 v{LREG[qb]}, v{LREG[qb]}, v{e1}"]
        ops.append("s_nop 0"); ops += prev
        return ops
    def emit_items(items, future, valu, extra=None, slot0=0, pre_issued=True):
        seq = items+future
        n = len(items); gaps = 2*n
        vi = 0
        for i, it in enumerate(items):
            young = sum(nreads(x) for x in seq[i+1:i+PDI])
            a(f"s_waitcnt lgkmcnt({young})")
            a(item_mfma(it, slot0+i, 0))
            if extra and i in extra: extra[i]()
            if i+PDI < len(seq):
                for s in item_reads(seq[i+PDI], slot0+i+PDI): a(s)
            tgt = (len(valu)*(2*i+1))//gaps
            while vi < tgt: a(valu[vi]); vi += 1
            a(item_mfma(it, slot0+i, 1))
            tgt = (len(valu)*(2*i+2))//gaps
            while vi < tgt: a(valu[vi]); vi += 1
        assert vi == len(valu)
    def kitems(half, sb, cmode='nm'): return [('K', half, ds, sb, cmode) for ds in range(8)]
    def vitems(half, pb): return [('V', half, ks, db, pb) for ks in range(2) for db in range(4)]

    side_dma(7)
    a(f"L_{L}_att:")
    a("v_mov_b32 v40, 0\nv_mov_b32 v41, 0")
    head1 = kitems(0, 0, 'zero'); head2 = kitems(1, 1)
    for i in range(PDI):
        for s in item_reads(head1[i], i): a(s)
    z0 = 64 if (m16 and QT == 2) else 0
    zinit = [f"v_accvgpr_write_b32 a{i}, 0" for i in range(z0, 128)]
    emit_items(head1, head2, zinit, slot0=0)
    a("s_nop 7\ns_nop 7")
    if fallback:
        a(f"s_cmp_eq_u32 s46, 1\ns_cbranch_scc1 L_{L}_havem")
    for qb in range(2):
        s = S(0, qb); m = 42+qb
        a(f"v_max3_f32 v{m}, v{s}, v{s+1}, v{s+2}")
        for j in range(3, 15, 2): a(f"v_max3_f32 v{m}, v{m}, v{s+j}, v{s+j+1}")
        a(f"v_max_f32 v{m}, v{m}, v{s+15}")
    a("v_mov_b32 v44, v42\nv_mov_b32 v45, v43\ns_nop 1")
    a("v_permlane32_swap_b32 v42, v44\nv_permlane32_swap_b32 v43, v45\ns_nop 1")
    a("v_max_f32 v42, v42, v44\nv_max_f32 v43, v43, v45")
    a(f"v_sub_f32 v42, {-BIAS}, v42\nv_sub_f32 v43, {-BIAS}, v43".replace("-30.0", "0xc1f00000"))
    if fallback: a(f"L_{L}_havem:")
    for qb in range(2):
        for j in range(16): a(f"v_mov_b32 v{NM(qb)+j}, v{42+qb}")
        for j in range(16): a(f"v_add_f32 v{S(0,qb)+j}, v{S(0,qb)+j}, v{42+qb}")
    body_a = kitems(0, 0)+vitems(0, 0)
    body_b = kitems(1, 1)+vitems(1, 1)
    def adv_k_first():
        for ds in range(8): a(f"v_add_u32 v{20+ds}, 16384, v{20+ds}")
    emit_items(head2, body_a[:PDI], softmax_ops(0, 0), extra={4: adv_k_first}, slot0=8)
    if stamp is not None and "ls" in dbg:
        a("s_memtime s[68:69]\ns_waitcnt lgkmcnt(0)\ns_sub_u32 s70, s68, s90")
    a(f"""
    s_mov_b32 s47, 16384
    s_mov_b32 s48, 1
    s_add_u32 s49, s44, 16384
    L_{L}_aloop:
    s_add_u32 s50, s47, 16384
    s_cmp_eq_u32 s50, 49152
    s_cselect_b32 s50, 0, s50
    s_add_u32 s51, s50, 16384
    s_cmp_eq_u32 s51, 49152
    s_cselect_b32 s51, 0, s51
    s_sub_u32 s52, s50, s47               ; delta K
    s_sub_u32 s53, s47, s51               ; delta V
    s_add_u32 s45, s49, 16384             ; K(i+1) source
    s_add_u32 s54, s50, {KRING}
    s_add_u32 s55, s47, {VRING}           ; V(i) -> slot i%3
    """)
    def kd(j):
        def f():
            if j == 0: a("s_add_u32 m0, s30, s54\ns_nop 0")
            a(f"buffer_load_dwordx4 v{12+j}, s[32:35], s45 offen offset:{1024*j} lds")
        return f
    def vd(j):
        def f():
            if j == 0: a("s_add_u32 m0, s30, s55\ns_nop 0")
            a(f"buffer_load_dwordx4 v16, s[36:39], s49 offen offset:{1024*j} lds")
        return f
    exa = {0: kd(0), 1: kd(1), 2: kd(2), 3: kd(3), 4: vd(0), 5: vd(1), 6: vd(2), 7: vd(3), 9: pf_weights}
    emit_items(body_a, body_b[:PDI], softmax_ops(1, 1), extra=exa, slot0=0)
    def adv_k():
        for ds in range(8): a(f"v_add_u32 v{20+ds}, s52, v{20+ds}")
    def sync_only():
        a(f"s_waitcnt vmcnt({(1 if pfw else 0)+(1 if side else 0)})")
        a("s_barrier")
    def adv_v():
        for db in range(4): a(f"v_add_u32 v{28+db}, s53, v{28+db}")
    ex = {4: adv_k, 12: lambda: (sync_only(), adv_v())}
    emit_items(body_b, body_a[:PDI], softmax_ops(0, 0), extra=ex, slot0=16)
    a(f"""
    s_mov_b32 s47, s50
    s_add_u32 s49, s49, 16384
    s_add_u32 s48, s48, 1
    s_cmp_lt_u32 s48, 8
    s_cbranch_scc1 L_{L}_aloop
    s_waitcnt lgkmcnt(0)
    """)
    if stamp is not None and "ls" in dbg: stamp_mid(a, 1)
    t1 = vitems(0, 0); t2 = vitems(1, 1)
    for i in range(PDI):
        for s in item_reads(t1[i], i): a(s)
    emit_items(t1, t2[:PDI], softmax_ops(1, 1), slot0=0)
    a("s_nop 1")
    emit_items(t2, [], [], slot0=8)
    if stamp is not None: stamp_mid(a, 3)
    a("""
    v_mov_b32 v44, v40
    v_mov_b32 v45, v41
    s_nop 1
    v_permlane32_swap_b32 v40, v44
    v_permlane32_swap_b32 v41, v45
    s_nop 1
    v_add_f32 v40, v40, v44
    v_add_f32 v41, v41, v45
    """)
    if fallback:
        a(f"""
        v_mov_b32 v46, 0x6c800000          ; 2^90
        v_cmp_nle_f32 vcc, v40, v46
        v_cmp_nle_f32 s[56:57], v41, v46
        s_or_b64 vcc, vcc, s[56:57]
        s_cmp_lg_u64 vcc, 0
        s_cselect_b32 s58, 1, 0
        v_mov_b32 v46, s58
        v_mov_b32 v47, s30
        v_lshrrev_b32 v47, 10, v47         ; w*4
        ds_write_b32 v47, v46
        s_branch L_{L}_fin
        L_{L}_fallback:
        """)
        a(f"""
        s_barrier
        v_mov_b32 v42, 0xff800000
        v_mov_b32 v43, 0xff800000
        s_mov_b32 s48, 0
        s_mov_b32 s49, s44
        ; K read addresses back to slot 0 : current slot offset is s47 (tile 8 % 3), registers point there
        L_{L}_fbsub:
        """)
        for ds in range(8): a(f"v_subrev_u32 v{20+ds}, s47, v{20+ds}")
        a(f"L_{L}_fbloop:")
        k_dma(KRING, "s49")
        a("s_waitcnt vmcnt(0)\ns_barrier")
        for half in range(2):
            for ds in range(8):
                a(f"ds_read_b128 a[{RING+4*ds}:{RING+4*ds+3}], v{20+ds} offset:{half*8192}")
            a("s_waitcnt lgkmcnt(0)")
            for ds in range(8):
                for qb in range(2):
                    d = S(0, qb); c = "0" if ds == 0 else f"v[{d}:{d+15}]"
                    a(f"v_mfma_f32_32x32x16_bf16 v[{d}:{d+15}], a[{RING+4*ds}:{RING+4*ds+3}], {qf(qb, ds)}, {c}")
            a("s_nop 7\ns_nop 7")
            for qb in range(2):
                s = S(0, qb); m = 42+qb
                for j in range(0, 16, 2): a(f"v_max3_f32 v{m}, v{m}, v{s+j}, v{s+j+1}")
        a(f"""
        s_barrier
        s_add_u32 s49, s49, 16384
        s_add_u32 s48, s48, 1
        s_cmp_lt_u32 s48, 8
        s_cbranch_scc1 L_{L}_fbloop
        v_mov_b32 v44, v42
        v_mov_b32 v45, v43
        s_nop 1
        v_permlane32_swap_b32 v42, v44
        v_permlane32_swap_b32 v43, v45
        s_nop 1
        v_max_f32 v42, v42, v44
        v_max_f32 v43, v43, v45
        v_sub_f32 v42, 0, v42
        v_sub_f32 v43, 0, v43
        s_mov_b32 s46, 1
        """)
        for db in range(4): a(f"v_subrev_u32 v{28+db}, 16384, v{28+db}")
        a(f"s_add_u32 s45, s44, 16384")
        k_dma(KRING, "s44"); k_dma(KRING+16384, "s45"); v_dma(VRING, "s44")
        a(f"""
        s_waitcnt vmcnt(0)
        s_barrier
        """)
        for i in range(64): a(f"v_accvgpr_write_b32 a{i}, 0")
        a(f"""
        s_branch L_{L}_att
        L_{L}_fin:
        """)
    a("""
    v_rcp_f32 v44, v40
    v_rcp_f32 v45, v40
    v_rcp_f32 v46, v41
    v_rcp_f32 v47, v41
    s_nop 7
    s_nop 7
    """)
    elog = VmLog()
    side_ops = []
    if side:
        a("s_mov_b32 s27, 0xffff0000\ns_mov_b32 s9, 0xbfb8aa3b")
        so = side_ops
        a("v_lshlrev_b32 v125, 4, v1\nv_add_u32 v125, s8, v125\ns_waitcnt vmcnt(0)")
        for i in range(8): a(f"ds_read_b128 v[{128+4*i}:{131+4*i}], v125 offset:{1024*i}")
        for j in range(4):
            so.append(f"v_lshlrev_b32 v{164+2*j}, 16, v{60+j}")
            so.append(f"v_and_b32 v{165+2*j}, s27, v{60+j}")
        for j in range(8): so.append(f"v_mul_f32 v{172+j}, s9, v{164+j}")
        for j in range(8): so.append(f"v_exp_f32 v{172+j}, v{172+j}")
        for j in range(8): so.append(f"v_add_f32 v{172+j}, 1.0, v{172+j}")
        for j in range(8): so.append(f"v_rcp_f32 v{172+j}, v{172+j}")
        for j in range(8): so.append(f"v_mul_f32 v{164+j}, v{164+j}, v{172+j}")
        for j in range(4): so.append(f"v_cvt_pk_bf16_f32 v{160+j}, v{164+2*j}, v{165+2*j}")
        for j in range(4):
            so.append(f"v_lshlrev_b32 v{164+2*j}, 16, v{160+j}")
            so.append(f"v_and_b32 v{165+2*j}, s27, v{160+j}")
        for e in range(8): so.append(f"v_mov_b32 v{180+e}, 0")
        so.append("s_waitcnt lgkmcnt(0)")
        for i in range(8):
            for d in range(4):
                r = 128+4*i+d
                so.append(f"v_lshlrev_b32 v172, 16, v{r}")
                so.append(f"v_and_b32 v173, s27, v{r}")
                so.append(f"v_fmac_f32 v{180+2*d}, v{164+i}, v172")
                so.append(f"v_fmac_f32 v{181+2*d}, v{164+i}, v173")
        so.append("s_nop 1")
        for e in range(8): so.append(f"v_add_f32_dpp v{180+e}, v{180+e}, v{180+e} row_ror:8 row_mask:0xf bank_mask:0xf")
        for sw in ["v_permlane16_swap_b32", "v_permlane32_swap_b32"]:
            for e in range(8): so.append(f"v_mov_b32 v{172+e}, v{180+e}")
            so.append("s_nop 1")
            for e in range(8): so.append(f"{sw} v{180+e}, v{172+e}")
            so.append("s_nop 1")
            for e in range(8): so.append(f"v_add_f32 v{180+e}, v{180+e}, v{172+e}")
    nside = len(side_ops); per = (nside+13)//14 if nside else 0
    def side_emit(n):
        for _ in range(n):
            if not side_ops: return
            o = side_ops.pop(0)
            if isinstance(o, tuple): a(f"s_waitcnt vmcnt({elog.wait_for(lambda x: x == o[1])})")
            else: a(o)
    a(f"""
    s_mul_i32 s26, s25, {4096*64}
    s_lshl_b32 s31, s24, 13
    s_add_u32 s26, s26, s31
    """)
    for qb in range(2):
        if qb == 1: a(f"s_add_u32 s26, s26, {4096*64-4096}")
        for db in range(4):
            o = O(db, qb)
            for j in range(16): a(f"v_accvgpr_read_b32 v{64+j}, a{o+j}")
            for j in range(0, 16, 2): a(f"v_pk_mul_f32 v[{64+j}:{65+j}], v[{64+j}:{65+j}], v[{44+2*qb}:{45+2*qb}]")
            t = 80+8*(db & 1)
            for j in range(8): a(f"v_cvt_pk_bf16_f32 v{t+j}, v{64+2*j}, v{64+2*j+1}")
            if db == 2: a("s_add_u32 s26, s26, 4096")
            a(f"buffer_store_dwordx4 v[{t}:{t+3}], v2, s[40:43], s26 offen offset:{(db&1)*2048}{stflag}"); elog.issue(('s',))
            side_emit(per)
            a(f"buffer_store_dwordx4 v[{t+4}:{t+7}], v2, s[40:43], s26 offen offset:{(db&1)*2048+1024}{stflag}"); elog.issue(('s',))
            side_emit(per)
    side_emit(10000)
    if side:
        a(f"""
        s_lshl_b32 s9, s20, 8
        v_lshlrev_b32 v125, 5, v1
        v_add_u32 v125, s9, v125               ; w*256 + lane*32
        v_cmp_gt_u32 vcc, 8, v1
        s_and_saveexec_b64 s[56:57], vcc
        ds_write_b128 v125, v[180:183] offset:1024
        ds_write_b128 v125, v[184:187] offset:1040
        s_mov_b64 exec, s[56:57]
        s_waitcnt lgkmcnt(0)
        s_barrier
        s_cmp_lg_u32 s20, 0
        s_cbranch_scc1 L_{L}_side_done
        v_lshlrev_b32 v125, 2, v1
        ds_read_b32 v172, v125 offset:1024
        ds_read_b32 v173, v125 offset:1280
        ds_read_b32 v174, v125 offset:1536
        ds_read_b32 v175, v125 offset:1792
        s_lshl_b32 s9, s6, 14
        s_lshl_b32 s31, s7, 8
        s_add_u32 s9, s9, s31
        s_add_u32 s56, s10, {WS_PB}
        s_addc_u32 s57, s11, 0
        s_mov_b32 s58, {4*4096*4}
        s_mov_b32 s59, 0x20000
        s_waitcnt lgkmcnt(0)
        v_add_f32 v172, v172, v173
        v_add_f32 v174, v174, v175
        v_add_f32 v172, v172, v174
        buffer_store_dword v172, v125, s[56:59], s9 offen
        L_{L}_side_done:
        """)
    if fallback:
        if not side: a("s_waitcnt lgkmcnt(0)\ns_barrier")
        a(f"""
        s_cmp_eq_u32 s46, 1
        s_cbranch_scc1 L_{L}_end
        v_mov_b32 v47, 0
        ds_read_b128 v[48:51], v47
        s_waitcnt lgkmcnt(0)
        v_or_b32 v48, v48, v49
        v_or_b32 v50, v50, v51
        v_or_b32 v48, v48, v50
        s_nop 0
        v_readfirstlane_b32 s58, v48
        s_cmp_lg_u32 s58, 0
        s_cbranch_scc1 L_{L}_fallback
        L_{L}_end:
        """)
    nag = 192
    if stamp is not None:
        stamp_mid(a, 4)
    if fuse_oproj is not None:
        from gen_g256 import gen_g256
        a(f"""
        s_lshr_b32 s26, s25, 3                 ; blk
        s_lshl_b32 s26, s26, 2
        s_add_u32 s26, s26, s23
        s_lshl_b32 s26, s26, 2
        s_add_u32 s26, s26, s20
        s_lshl_b32 s26, s26, 7
        s_and_b32 s27, s24, 7
        s_lshl_b32 s27, s27, 2
        s_add_u32 s27, s27, s26
        v_mov_b32 v56, s27
        v_and_b32 v57, 7, v1
        v_lshlrev_b32 v57, 2, v57
        v_add_u32 v57, s26, v57
        s_add_u32 s66, s10, {WS_FL3}
        s_addc_u32 s67, s11, 0
        s_barrier
        """)
        fo = dict(fuse_oproj); fo["stamp"] = None
        nag = max(nag, gen_g256("oproj", "oproj", fused=dict(a=a, ws=10, w=60, sig=56, poll=57, fl=66, st=(stamp is not None and "fs" in dbg)), **fo))
        if stamp is not None: stamp_end2(a, stamp, 6)
    elif stamp is not None: stamp_end2(a, stamp, 10)
    a(f"""
    L_{L}_done:
    s_endpgm
    """)
    txt = a.text()
    return (name, (256,1,1), (256,1,1), 163840), txt, kernel_desc(name, 256+nag, accum=256)
```

```python
from asmlib import *
from gen_small import *
from gen_gemm import lane_common, tr_lane_terms, Filt
from stream import *
import os

WS_P1 = 0x5000000
WS_P2 = WS_P1 if REUSE else 0x6000000
PSTRIDE = int(os.environ.get('PSTRIDE', str(0x400000)), 0)

def g256_setup_w(a, w_stride, vW=4, vT=8, nbase=1):
    a(f"""
    v_lshrrev_b32 v32, 4, v1               ; L>>4
    v_and_b32 v33, 15, v1                  ; p
    v_lshlrev_b32 v34, 2, v32
    v_xor_b32 v34, v33, v34
    v_lshlrev_b32 v34, 4, v34
    v_mul_u32_u24 v35, {w_stride}, v32
    v_add_u32 v{vW}, v35, v34
    v_add_u32 v{vW+1}, {4*w_stride-1024}, v{vW}
    v_add_u32 v{vW+2}, {8*w_stride-2048}, v{vW}
    v_add_u32 v{vW+3}, {12*w_stride-3072}, v{vW}
    """)
def g256_setup_tr(a, vT=8, nbase=1):
    tr_lane_terms(a, 32, 33, 34, 35)
    a("""
    v_lshrrev_b32 v35, 1, v34              ; sw>>1
    v_lshl_add_u32 v35, v33, 1, v35        ; c0
    v_bfe_u32 v36, v1, 2, 2                ; i>>2
    v_lshlrev_b32 v37, 2, v36              ; swz
    v_and_b32 v34, 1, v34
    v_lshlrev_b32 v34, 3, v34              ; half8*8
    v_lshl_add_u32 v38, v32, 8, v34
    """)
    for db in range(4):
        a(f"""
        v_or_b32 v42, {4*db}, v35
        v_xor_b32 v42, v42, v37
        v_lshl_add_u32 v{vT+db}, v42, 4, v38
        """)
        for b in range(1, nbase): a(f"v_add_u32 v{vT+4*b+db}, {65536*b}, v{vT+db}")

class G256:
    def __init__(self, a, KT, w_stride, NSLOT, NBUF, ACC=64, vW=4, vT=8):
        self.a = a; self.KT = KT; self.ws = w_stride; self.NSLOT = NSLOT; self.NBUF = NBUF; self.ACC = ACC
        self.vW = vW; self.vT = vT; self.FR = 32*NBUF
        self.log = VmLog(); self.cur = dict(m0=None, ws=0, as_=0)
        g = self
        def wdma(s, j):
            out = []
            if g.cur['ws'] != s:
                out.append(f"s_add_u32 s28, s28, {(s-g.cur['ws'])*64*g.ws}"); g.cur['ws'] = s
            want = (s % NSLOT)*16384
            if g.cur['m0'] != want:
                out.append(f"s_add_u32 m0, s30, {want}"); out.append("s_nop 0"); g.cur['m0'] = want
            out.append(f"buffer_load_dwordx4 v{g.vW+j}, s[12:15], s28 offen offset:{1024*j} lds")
            return out
        wdma.n = 4
        self.wdma = wdma
    def hbuf(self, buf, qb, ks): r = 32*buf+16*qb+4*ks; return f"a[{r}:{r+3}]"
    def actload(self, s, ks, tb):
        pre = ""
        if self.cur['as_'] != s:
            pre = f"s_mov_b32 s29, {s*4096}\n"; self.cur['as_'] = s
        return pre+f"buffer_load_dwordx4 {self.hbuf(s % self.NBUF, tb, ks)}, v{2+tb}, s[16:19], s29 offen offset:{1024*ks}"
    def qacc(self, db, qb): return self.ACC+(2*db+qb)*16
    def wfr(self, q, db): return self.FR+(q % 2)*16+4*db
    def wreads(self, t, ks):
        q = 4*t+ks; slot = t % self.NSLOT; out = []
        for db in range(4):
            r = self.wfr(q, db)
            for hf in range(2):
                out.append(f"ds_read_b64_tr_b16 a[{r+2*hf}:{r+2*hf+1}], v{self.vT+4*(slot//4)+db} offset:{(slot%4)*16384+(16*ks+4*hf)*256}")
        return out
    def mfma(self, t, ks, db, qb):
        r = self.wfr(4*t+ks, db); c = self.qacc(db, qb)
        return f"v_mfma_f32_32x32x16_bf16 v[{c}:{c+15}], a[{r}:{r+3}], {self.hbuf(t % self.NBUF, qb, ks)}, v[{c}:{c+15}]"
    def issue_stage(self, s):
        a = self.a
        for j in range(4):
            for l in self.wdma(s, j): a(l)
            self.log.issue(('W', s, j))
            for tb in range(2):
                a(self.actload(s, j, tb)); self.log.issue(('A', s, j, tb))
    def first_wait(self):
        a = self.a
        a(f"s_waitcnt vmcnt({self.log.wait_for(lambda x: x[0] in 'WA' and x[1] == 0)})")
        a("s_barrier")
        for s in self.wreads(0, 0): a(s)
    def read_item(self, t, ks, db, ring):
        r = self.FR+4*ring; slot = t % self.NSLOT
        return [f"ds_read_b64_tr_b16 a[{r+2*hf}:{r+2*hf+1}], v{self.vT+4*(slot//4)+db} offset:{(slot%4)*16384+(16*ks+4*hf)*256}" for hf in range(2)]
    def mfma2(self, t, ks, db, qb, ring):
        r = self.FR+4*ring; c = self.qacc(db, qb)
        return f"v_mfma_f32_32x32x16_bf16 v[{c}:{c+15}], a[{r}:{r+3}], {self.hbuf(t % self.NBUF, qb, ks)}, v[{c}:{c+15}]"
    def first_wait2(self):
        a = self.a
        a(f"s_waitcnt vmcnt({self.log.wait_for(lambda x: x[0] in 'WA' and x[1] == 0)})")
        a("s_barrier")
        for db in range(4):
            for s in self.read_item(0, 0, db, db): a(s)
    def stream2(self, pre, gap=2, extra=None, extra_after=None, T=0, post=None):
        emit_stream2(self.a, self.KT, self.NSLOT, self.NBUF, self.read_item, self.mfma2, self.wdma, self.actload, self.log, pre, gap=gap, extra=extra, extra_after=extra_after, T=T, post=post)
    def stream(self, pre, gap=2, extra=None, extra_after=None):
        emit_stream(self.a, self.KT, 4, 2, self.NSLOT, self.NBUF, self.wreads, self.mfma, self.wdma, self.actload, self.log, pre, gap=gap, extra=extra, extra_after=extra_after)

def g16_setup_w(a, w_stride, vW=4):
    a(f"""
    v_lshrrev_b32 v32, 4, v1               ; L>>4 = k&3
    v_and_b32 v33, 15, v1                  ; p
    v_lshlrev_b32 v34, 1, v32
    v_xor_b32 v34, v33, v34                ; j' = 0,1
    v_xor_b32 v36, 8, v34                  ; j' = 2,3
    v_lshlrev_b32 v34, 4, v34
    v_lshlrev_b32 v36, 4, v36
    v_mul_u32_u24 v35, {w_stride}, v32
    v_add_u32 v{vW}, v35, v34
    v_add_u32 v{vW+1}, {4*w_stride-1024}, v{vW}
    v_add_u32 v{vW+2}, v35, v36
    v_add_u32 v{vW+3}, {12*w_stride-3072}, v{vW+2}
    v_add_u32 v{vW+2}, {8*w_stride-2048}, v{vW+2}
    """)
def g16_setup_tr(a, vT, nbase, rot=None):
    a(f"""
    v_lshrrev_b32 v32, 4, v1               ; g
    v_bfe_u32 v33, v1, 2, 2                ; i>>2
    v_lshl_add_u32 v34, v32, 3, v33        ; row = 8g + (i>>2)
    v_and_b32 v35, 1, v32
    v_lshl_or_b32 v35, v35, 2, v33         ; f
    v_bfe_u32 v36, v1, 1, 1                ; cb
    v_lshlrev_b32 v36, 4, v36
    v_and_b32 v37, 1, v1
    v_lshl_or_b32 v36, v37, 3, v36
    v_lshl_add_u32 v36, v34, 8, v36        ; row*256 + ..
    """)
    for j in range(8):
        if rot is None: a(f"v_xor_b32 v37, {j}, v35")
        else:
            a(f"s_add_u32 s45, s{rot}, {1+(j >> 1)}\ns_and_b32 s45, s45, 3\ns_lshl_b32 s45, s45, 1\ns_or_b32 s45, s45, {j & 1}")
            a("v_xor_b32 v37, s45, v35")
        a(f"v_lshl_add_u32 v{vT+j}, v37, 5, v36")
        for b in range(1, nbase): a(f"v_add_u32 v{vT+8*b+j}, {65536*b}, v{vT+j}")

class G16(G256):
    def __init__(self, a, KT, w_stride, NSLOT, NBUF, ACC=64, vW=4, vT=200, vA=(16, 17)):
        super().__init__(a, KT, w_stride, NSLOT, NBUF, ACC, vW, vT)
        self.vA = vA; self.ldflag = ""
    def abuf(self, buf, ks, tb): r = 32*buf+16*ks+4*tb; return f"a[{r}:{r+3}]"
    def actload(self, s, ks, tb):
        pre = ""
        if self.cur['as_'] != s:
            pre = f"s_mov_b32 s29, {s*4096}\n"; self.cur['as_'] = s
        return pre+f"buffer_load_dwordx4 {self.abuf(s % self.NBUF, ks, tb)}, v{self.vA[tb >> 1]}, s[16:19], s29 offen offset:{2048*ks+256*(tb & 1)}{self.ldflag}"
    def acc(self, j, tb): return self.ACC+(j*4+tb)*4
    def read_item(self, t, ks, j, ring):
        r = self.FR+4*ring; slot = t % self.NSLOT
        return [f"ds_read_b64_tr_b16 a[{r+2*hf}:{r+2*hf+1}], v{self.vT+8*(slot//4)+j} offset:{(slot%4)*16384+(32*ks+4*hf)*256}" for hf in range(2)]
    def mfma2(self, t, ks, j, tb, ring):
        r = self.FR+4*ring; c = self.acc(j, tb)
        return f"v_mfma_f32_16x16x32_bf16 v[{c}:{c+3}], a[{r}:{r+3}], {self.abuf(t % self.NBUF, ks, tb)}, v[{c}:{c+3}]"
    def issue_stage(self, s):
        a = self.a
        if s == 0:
            for j in range(4):
                for l in self.wdma(s, j): a(l)
                self.log.issue(('W', s, j))
            for ks in range(2):
                for tb in range(4):
                    a(self.actload(s, ks, tb)); self.log.issue(('A', s, ks, tb))
            return
        for j in range(4):
            for l in self.wdma(s, j): a(l)
            self.log.issue(('W', s, j))
            for tb in (2*(j & 1), 2*(j & 1)+1):
                a(self.actload(s, j >> 1, tb)); self.log.issue(('A', s, j >> 1, tb))
    def first_wait2(self):
        a = self.a
        a(f"s_waitcnt vmcnt({self.log.wait_for(lambda x: x[1] == 0 and (x[0] == 'W' or (x[0] == 'A' and x[2] == 0)))})")
        a("s_barrier")
        for j in range(4):
            for s in self.read_item(0, 0, j, j): a(s)
    def stream2(self, pre, gap=2, extra=None, extra_after=None, T=0, post=None, fill=None):
        fill = dict(fill or {})
        assert 7 not in fill
        fill[7] = lambda log: [f"s_waitcnt vmcnt({log.wait_for(lambda x: x[0] == 'A' and x[1] == 0)})"]
        return emit_stream2(self.a, self.KT, self.NSLOT, self.NBUF, self.read_item, self.mfma2, self.wdma, self.actload, self.log, pre, gap=gap,
                     extra=extra, extra_after=extra_after, T=T, post=post, TB=4, NB=8, NKS=2, fill=fill)
    def pack_ops(self, j, m, t, relu=False):
        x = self.acc(j, 2*m); y = self.acc(j, 2*m+1)
        ops = [f"v_cvt_pk_bf16_f32 v{t}, v{x}, v{x+1}", f"v_cvt_pk_bf16_f32 v{t+1}, v{x+2}, v{x+3}",
               f"v_cvt_pk_bf16_f32 v{t+2}, v{y}, v{y+1}", f"v_cvt_pk_bf16_f32 v{t+3}, v{y+2}, v{y+3}"]
        if relu: ops += [f"v_pk_max_i16 v{t+k}, v{t+k}, 0" for k in range(4)]
        ops += ["s_nop 1", f"v_permlane16_swap_b32 v{t}, v{t+2}", f"v_permlane16_swap_b32 v{t+1}, v{t+3}"]
        return ops

def gen_g256(name, kind, stamp=None, NSLOT=6, NBUF=5, pre=2, gap=2, dbg="", stflag=" sc0 sc1", T=0, touch=True, m16=False, xchg=False, spin_max=200000, fused=None):
    a = Filt(dbg) if fused is None else fused["a"]; L = name
    assert not xchg or (m16 and kind == 'ffn2' and T > 0)
    cfg = {
      "oproj": dict(KT=16, w_arg=32, ws=2048, wbytes=4096*1024*2, act=WS_OF, atb=4096*64, nwg=256),
      "ffn1":  dict(KT=16, w_arg=48, ws=7168, wbytes=1024*3584*2, act=WS_H2F, atb=1024*64, nwg=224),
      "ffn2":  dict(KT=14, w_arg=56, ws=2048, wbytes=3584*1024*2, act=WS_HIDF, atb=3584*64, nwg=256),
    }[kind]
    KT, ws, atb = cfg["KT"], cfg["ws"], cfg["atb"]
    if fused is None:
        kernel_begin(a, name)
        a(f"""
        s_cmp_ge_u32 s2, {cfg["nwg"]}
        s_cbranch_scc1 L_{L}_done
        s_load_dwordx2 s[4:5], s[0:1], {cfg["w_arg"]}
        s_load_dwordx2 s[6:7], s[0:1], 96
        s_load_dwordx4 s[60:63], s[0:1], 48    ; w1 s[60:61], w2 s[62:63]
        s_load_dwordx2 s[8:9], s[0:1], 80      ; out
        """)
        if stamp is not None: stamp_begin(a)
        lane_common(a)
    else:
        a(f"""
        s_mov_b32 s4, s{fused["w"]}
        s_mov_b32 s5, s{fused["w"]+1}
        s_mov_b32 s6, s{fused["ws"]}
        s_mov_b32 s7, s{fused["ws"]+1}
        """)
        if stamp is not None: stamp_begin(a)
    a("""
    s_and_b32 s21, s2, 7
    s_lshr_b32 s22, s2, 3
    s_and_b32 s23, s21, 3                  ; q
    s_lshr_b32 s24, s21, 2
    s_lshl_b32 s24, s24, 2                 ; 4*th
    """)
    if kind == "ffn1":
        a("""
        s_mul_i32 s25, s22, 37
        s_lshr_b32 s25, s25, 8
        s_add_u32 s24, s24, s25
        s_mul_i32 s25, s25, 7
        s_sub_u32 s25, s22, s25            ; idx % 7
        s_mul_i32 s26, s23, 7
        s_add_u32 s25, s25, s26
        s_mov_b32 s26, 0                   ; k offset rows
        s_mov_b32 s27, 0
        """)
    else:
        kq = KT*64
        a(f"""
        s_lshr_b32 s25, s22, 3
        s_add_u32 s24, s24, s25
        s_and_b32 s25, s22, 7              ; n tile
        s_mul_i32 s26, s23, {kq}           ; k offset rows
        s_mul_i32 s27, s23, {kq*64}
        s_lshl_b32 s36, s24, 3
        s_add_u32 s36, s36, s25
        """)
    a(f"""
    s_lshl_b32 s24, s24, 3
    s_lshl_b32 s31, s20, 1
    s_add_u32 s24, s24, s31
    v_add_u32 v3, {atb}, v2
    """)
    if m16:
        g16_setup_w(a, ws)
        a(f"""
        v_lshrrev_b32 v16, 4, v1
        v_lshlrev_b32 v16, 9, v16
        v_and_b32 v17, 15, v1
        v_lshl_add_u32 v16, v17, 4, v16        ; (l>>4)*512 + (l&15)*16
        v_add_u32 v17, {atb}, v16
        """)
    else: g256_setup_w(a, ws)
    if fused is None: a("s_waitcnt lgkmcnt(0)")
    if stamp is not None: stamp_mid(a, 0)
    srd(a, 12, 4, cfg["wbytes"])
    a(f"""
    s_mul_i32 s31, s24, {atb}
    s_add_u32 s31, s31, s27
    s_add_u32 s31, s31, {cfg["act"]}
    s_add_u32 s16, s6, s31
    s_addc_u32 s17, s7, 0
    s_mov_b32 s18, {atb+KT*4096}
    s_mov_b32 s19, 0x20000
    s_lshl_b32 s31, s20, 4
    s_add_u32 s31, s31, s26
    s_mul_i32 s28, s31, {ws}
    s_lshl_b32 s31, s25, 8
    s_add_u32 s28, s28, s31                ; W soffset
    s_mov_b32 s29, 0
    s_lshl_b32 s30, s20, 12
    """)
    g = G16(a, KT, ws, NSLOT, NBUF) if m16 else G256(a, KT, ws, NSLOT, NBUF)
    if fused is None:
        g.issue_stage(0)
        if m16: g16_setup_tr(a, 200, (NSLOT+3)//4, rot=(23 if xchg else None))
        else: g256_setup_tr(a, 8, (NSLOT+3)//4)
        for s in range(1, pre): g.issue_stage(s)
        for i in range(128): a(f"v_mov_b32 v{64+i}, 0")
    else:
        nw = 0
        for s in range(pre):
            for j in range(4):
                for l in g.wdma(s, j): a(l)
                nw += 1
        g16_setup_tr(a, 200, (NSLOT+3)//4, rot=(23 if xchg else None))
        for i in range(128): a(f"v_mov_b32 v{64+i}, 0")
        if fused.get("st"): stamp_mid(a, 0)
        a(f"s_waitcnt vmcnt({nw})")
        if fused.get("st"): stamp_mid(a, 1)
        a(f"v_mov_b32 v36, 1\nglobal_store_dword v{fused['sig']}, v36, s[{fused['fl']}:{fused['fl']+1}] sc1")
        a(f"""
        s_mov_b32 s59, 0
        L_{L}_fpoll:
        global_load_dword v36, v{fused['poll']}, s[{fused['fl']}:{fused['fl']+1}] sc1
        s_waitcnt vmcnt(0)
        v_cmp_eq_u32 vcc, 1, v36
        s_nop 1
        s_cmp_eq_u64 vcc, -1
        s_cbranch_scc1 L_{L}_fpolled
        s_add_u32 s59, s59, 1
        s_cmp_lt_u32 s59, {spin_max}
        s_cbranch_scc0 L_{L}_fpolled
        s_sleep 1
        s_branch L_{L}_fpoll
        L_{L}_fpolled:
        """)
        if fused.get("st"): stamp_mid(a, 2)
        g.ldflag = " sc1"
        for s in range(pre):
            for ks in range(2):
                for tb in range(4):
                    a(g.actload(s, ks, tb)); g.log.issue(('A', s, ks, tb))
    if kind == "ffn1":
        srd(a, 40, 6, 2048*3584*2, WS_HIDF); otb = 3584*64
        a(f"s_mul_i32 s26, s24, {otb}\ns_lshl_b32 s27, s25, 13\ns_add_u32 s26, s26, s27")
    else:
        otb = 65536
        a(f"""
        s_mul_i32 s31, s23, {PSTRIDE}
        s_add_u32 s31, s31, {WS_P1 if kind == "oproj" else WS_P2}
        s_add_u32 s40, s6, s31
        s_addc_u32 s41, s7, 0
        s_mov_b32 s42, {2048*1024*2}
        s_mov_b32 s43, 0x20000
        s_lshl_b32 s26, s24, 16
        s_lshl_b32 s27, s25, 13
        s_add_u32 s26, s26, s27
        """)
    a(f"s_add_u32 s27, s26, {otb}")
    a("s_add_u32 s34, s26, 4096\ns_add_u32 s35, s27, 4096")
    def post16(p_):
        ops = []
        for p in (range(4) if p_ is None else [p_]):
            for m_ in range(2):
                for j in (2*p, 2*p+1):
                    t = 20+4*((2*m_+j) % 4)
                    ops += g.pack_ops(j, m_, t, relu=(kind == "ffn1"))
                    so = ["s26", "s27"][m_] if j < 4 else ["s34", "s35"][m_]
                    ops.append("s_nop 0")
                    ops.append(f"buffer_store_dwordx4 v[{t}:{t+3}], v2, s[40:43], {so} offen offset:{(j & 3)*1024}{stflag}")
        return ops
    def post(db):
        if m16: return post16(db)
        dbs = range(4) if db is None else [db]
        ops = []
        for d_ in dbs:
            for qb in range(2):
                c = g.qacc(d_, qb); t = 20+8*qb
                for j in range(8):
                    ops.append(f"v_cvt_pk_bf16_f32 v{t+j}, v{c+2*j}, v{c+2*j+1}")
                    if kind == "ffn1": ops.append(f"v_pk_max_i16 v{t+j}, v{t+j}, 0")
                so = ["s26", "s27"][qb] if d_ < 2 else ["s34", "s35"][qb]
                ops.append(f"buffer_store_dwordx4 v[{t}:{t+3}], v2, s[40:43], {so} offen offset:{(d_&1)*2048}{stflag}")
                ops.append(f"buffer_store_dwordx4 v[{t+4}:{t+7}], v2, s[40:43], {so} offen offset:{(d_&1)*2048+1024}{stflag}")
        return ops
    if xchg:
        srd(a, 40, 6, 64*16*16384, WS_P1)
        srd(a, 44, 6, 2048*1024*2, WS_X1F)
        srd(a, 48, 6, 4096, WS_GB)
        srd(a, 52, 8, 2048*1024*2)
        a(f"""
        s_add_u32 s56, s6, {WS_FL}
        s_addc_u32 s57, s7, 0
        s_lshl_b32 s58, s20, 12            ; w*4096
        """)
        for b in range(3):
            a(f"""
            s_add_u32 s31, s23, {1+b}
            s_and_b32 s31, s31, 3
            s_lshl_b32 s59, s36, 2
            s_add_u32 s59, s59, s31
            s_lshl_b32 s59, s59, 2
            s_add_u32 s59, s59, s23
            s_lshl_b32 s59, s59, 14
            s_add_u32 s{37+b}, s59, s58
            """)
        for r in range(3):
            a(f"""
            s_add_u32 s31, s23, {1+r}
            s_and_b32 s31, s31, 3
            s_lshl_b32 s59, s36, 2
            s_add_u32 s59, s59, s23
            s_lshl_b32 s59, s59, 2
            s_add_u32 s59, s59, s31
            s_lshl_b32 s59, s59, 14
            s_add_u32 s{64+r}, s59, s58
            """)
        a(f"""
        s_lshl_b32 s31, s24, 16
        s_lshl_b32 s59, s25, 13
        s_add_u32 s31, s31, s59
        s_lshl_b32 s59, s23, 11
        s_add_u32 s67, s31, s59            ; m = 0
        s_add_u32 s31, s67, 65536          ; m = 1
        buffer_load_dwordx4 v[216:219], v2, s[44:47], s67 offen
        buffer_load_dwordx4 v[220:223], v2, s[44:47], s67 offen offset:1024
        buffer_load_dwordx4 v[224:227], v2, s[44:47], s31 offen
        buffer_load_dwordx4 v[228:231], v2, s[44:47], s31 offen offset:1024
        v_lshrrev_b32 v248, 5, v1
        v_lshlrev_b32 v248, 5, v248        ; hh*32
        s_lshl_b32 s31, s25, 9
        s_lshl_b32 s59, s23, 7
        s_add_u32 s31, s31, s59
        buffer_load_dwordx4 v[232:235], v248, s[48:51], s31 offen
        buffer_load_dwordx4 v[236:239], v248, s[48:51], s31 offen offset:16
        buffer_load_dwordx4 v[240:243], v248, s[48:51], s31 offen offset:64
        buffer_load_dwordx4 v[244:247], v248, s[48:51], s31 offen offset:80
        """)
        for k in range(8): g.log.issue(('E', k))
        for b, reg in enumerate([246+0, 0, 0]): pass
        for b, reg in enumerate([250, 39, 251]):
            a(f"""
            s_add_u32 s31, s23, {1+b}
            s_and_b32 s31, s31, 3
            s_lshl_b32 s59, s36, 2
            s_add_u32 s59, s59, s31
            s_lshl_b32 s59, s59, 2
            s_add_u32 s59, s59, s20
            s_lshl_b32 s59, s59, 2
            s_add_u32 s59, s59, s23
            s_lshl_b32 s59, s59, 2
            v_mov_b32 v{reg}, s59
            """)
        a("""
        s_lshl_b32 s59, s36, 2
        s_add_u32 s59, s59, s23
        s_lshl_b32 s59, s59, 2
        s_add_u32 s59, s59, s20
        s_lshl_b32 s59, s59, 4
        v_mov_b32 v252, s59
        v_mov_b32 v249, 1
        s_add_u32 s31, s23, 1
        s_and_b32 s31, s31, 3
        """)
        for k in range(4):
            a(f"""
            s_cmp_eq_u32 s23, {k}
            s_cselect_b32 s58, 1, 0
            v_mov_b32 v{48+k}, s58
            s_cmp_eq_u32 s31, {k}
            s_cselect_b32 s58, 1, s58
            v_mov_b32 v{44+k}, s58
            """)
        n_norm = (KT-T)*2*8; per_pass = T*2*2; SIG1 = int(os.environ.get('SIG1', '10'))
        def sig(b, reg):
            def f(log):
                n = log.wait_for(lambda x: x[0] == 'S' and x[1] == b)
                log.issue(('F', b))
                return [f"s_waitcnt vmcnt({n})", f"global_store_dword v{reg}, v249, s[56:57] sc1"]
            return f
        fill = {n_norm+3*per_pass: sig(0, 250), n_norm+3*per_pass+SIG1: sig(1, 39)}
        def postx(p):
            if p == 3: return []
            ops = []
            for m_ in range(2):
                for e in range(2):
                    t = 20+4*(2*m_+e)
                    ops += g.pack_ops(2*p+e, m_, t)
                    ops.append("s_nop 0")
                    ops.append(f"buffer_store_dwordx4 v[{t}:{t+3}], v2, s[40:43], s{37+p} offen offset:{(2*m_+e)*1024} sc1")
            return ops
        post = postx
    extra = []; ea = {}
    nxt = {"oproj": 60, "ffn1": 62}.get(kind)
    if touch and nxt is not None:
        nw = cfg["nwg"]*4
        lines = 3584*1024*2//128
        per = -(-lines//(nw*64))
        a(f"""
        s_lshl_b32 s46, s2, 2
        s_add_u32 s46, s46, s20
        s_mul_i32 s46, s46, {per*8192}
        v_lshlrev_b32 v18, 7, v1
        v_add_u32 v18, s46, v18
        s_mov_b32 s48, s{nxt}
        s_mov_b32 s49, s{nxt+1}
        s_mov_b32 s51, 0x20000
        s_and_b32 s47, s2, 3
        s_mov_b32 s52, {3584*1024*2}
        """)
        def mkt(ph, k):
            def f():
                return [f"s_cmp_eq_u32 s47, {ph}", "s_cselect_b32 s50, s52, 0", f"s_mov_b32 s53, {k*8192}", "buffer_load_dword v19, v18, s[48:51], s53 offen"]
            return f
        for ph in range(4):
            for k in range(per):
                extra.append((('X', 'pf', ph, k), mkt(ph, k)))
                ea.setdefault(3+2*ph, []).append(len(extra)-1)
    g.first_wait2()
    if fused is not None and fused.get("st"): stamp_mid(a, 3)
    if stamp is not None: stamp_mid(a, 1)
    if fused is None: a.inloop = True
    g.stream2(pre, gap, T=T, post=post, extra=extra, extra_after=ea, **(dict(fill=fill) if xchg else {}))
    if fused is None: a.inloop = False
    if stamp is not None: stamp_mid(a, 2)
    if xchg:
        a(f"s_waitcnt vmcnt({g.log.wait_for(lambda x: x[0] == 'S' and x[1] == 2)})")
        a("global_store_dword v251, v249, s[56:57] sc1")
        if stamp is not None and "xs" in dbg: stamp_mid(a, 0)
        for m_ in range(2):
            for e in range(2):
                for o in g.pack_ops(6+e, m_, 20+4*(2*m_+e)): a(o)
        def reduce_flags(mask, dst):
            return f"""
            v_or_b32 v52, v40, v{mask}
            v_or_b32 v53, v41, v{mask+1}
            v_or_b32 v54, v42, v{mask+2}
            v_or_b32 v55, v43, v{mask+3}
            v_and_b32 v52, v52, v53
            v_and_b32 v54, v54, v55
            v_and_b32 v52, v52, v54
            s_nop 0
            v_readfirstlane_b32 {dst}, v52
            """
        def data_loads(rs):
            for r in rs:
                for k in range(4):
                    a(f"buffer_load_dwordx4 v[{64+16*r+4*k}:{67+16*r+4*k}], v2, s[40:43], s{64+r} offen offset:{k*1024} sc1")
        a(f"""
        s_mov_b32 s59, 0
        L_{L}_polla:
        global_load_dwordx4 v[40:43], v252, s[56:57] sc1
        s_waitcnt vmcnt(0)
        """)
        a(reduce_flags(44, "s58"))
        a(f"""
        s_cmp_eq_u32 s58, 1
        s_cbranch_scc1 L_{L}_polleda
        s_add_u32 s59, s59, 1
        s_cmp_lt_u32 s59, {spin_max}
        s_cbranch_scc0 L_{L}_polleda
        s_sleep 1
        s_branch L_{L}_polla
        L_{L}_polleda:
        """)
        a(reduce_flags(48, "s58"))
        data_loads([1, 2])
        if stamp is not None and "xs" in dbg: stamp_mid(a, 1)
        a(f"""
        s_cmp_eq_u32 s58, 1
        s_cbranch_scc1 L_{L}_polledb
        s_mov_b32 s59, 0
        L_{L}_pollb:
        global_load_dwordx4 v[40:43], v252, s[56:57] sc1
        s_waitcnt vmcnt(0)
        """)
        a(reduce_flags(48, "s58"))
        a(f"""
        s_cmp_eq_u32 s58, 1
        s_cbranch_scc1 L_{L}_polledb
        s_add_u32 s59, s59, 1
        s_cmp_lt_u32 s59, {spin_max}
        s_cbranch_scc0 L_{L}_polledb
        s_sleep 1
        s_branch L_{L}_pollb
        L_{L}_polledb:
        """)
        data_loads([0])
        a("""
        v_and_b32 v36, 31, v1
        v_lshlrev_b32 v36, 11, v36
        v_lshrrev_b32 v37, 5, v1
        v_lshl_add_u32 v36, v37, 4, v36    ; (l&31)*2048 + hh*16
        s_lshl_b32 s31, s24, 16
        s_lshl_b32 s59, s25, 8
        s_add_u32 s31, s31, s59
        s_lshl_b32 s59, s23, 6
        s_add_u32 s31, s31, s59            ; m = 0
        s_add_u32 s59, s31, 65536          ; m = 1
        s_mov_b32 s58, 0xffff0000
        """)
        a("s_waitcnt vmcnt(4)")
        for k in range(4):
            own = 20+4*k
            for d in range(4):
                lo = 112+8*k+2*d; hi = lo+1
                a(f"v_lshlrev_b32 v{lo}, 16, v{own+d}")
                a(f"v_and_b32 v{hi}, s58, v{own+d}")
                for r in (1, 2):
                    src = 64+16*r+4*k+d
                    a(f"v_lshlrev_b32 v42, 16, v{src}")
                    a(f"v_and_b32 v43, s58, v{src}")
                    a(f"v_pk_add_f32 v[{lo}:{hi}], v[{lo}:{hi}], v[42:43]")
        a("s_waitcnt vmcnt(0)")
        if stamp is not None and "xs" in dbg: stamp_mid(a, 4)
        for k in range(4):
            m_, e = k >> 1, k & 1
            x1 = 216+4*k; gb = 232+8*e
            for d in range(4):
                lo = 112+8*k+2*d; hi = lo+1; src = 64+4*k+d
                a(f"v_lshlrev_b32 v42, 16, v{src}")
                a(f"v_and_b32 v43, s58, v{src}")
                a(f"v_lshlrev_b32 v40, 16, v{x1+d}")
                a(f"v_and_b32 v41, s58, v{x1+d}")
                a(f"v_pk_add_f32 v[{lo}:{hi}], v[{lo}:{hi}], v[42:43]")
                a(f"v_pk_fma_f32 v[40:41], v[{gb+2*d}:{gb+2*d+1}], v[{lo}:{hi}], v[40:41]")
                a(f"v_cvt_pk_bf16_f32 v{144+4*k+d}, v40, v41")
            a(f"buffer_store_dwordx4 v[{144+4*k}:{147+4*k}], v36, s[52:55], {'s31' if m_ == 0 else 's59'} offen offset:{e*32}{os.environ.get('OUTFLAG', '')}")
    if stamp is not None: stamp_mid(a, 3); stamp_end2(a, stamp, 6)
    if fused is not None: return 32*NBUF+32
    a(f"""
    L_{L}_done:
    s_endpgm
    """)
    return (name, (cfg["nwg"],1,1), (256,1,1), NSLOT*16384), a.text(), kernel_desc(name, 256+32*NBUF+32, accum=256)
```

```python
from asmlib import *
from gen_small import *
from gen_g256 import WS_P1, WS_P2, PSTRIDE

def common_head(a, L, stamp):
    a(f"""
    s_cmp_ge_u32 s2, 256
    s_cbranch_scc1 L_{L}_done
    s_load_dwordx2 s[4:5], s[0:1], 0
    s_load_dwordx2 s[6:7], s[0:1], 80
    s_load_dwordx2 s[8:9], s[0:1], 96
    """)
    if stamp is not None: stamp_begin(a)
    a(f"""
    v_and_b32 v1, 7, v0
    v_lshrrev_b32 v2, 3, v0              ; 8w + cl
    v_and_b32 v3, 7, v2                  ; cl
    v_lshrrev_b32 v4, 6, v0              ; w
    v_lshl_add_u32 v5, v4, 4, v3
    s_lshr_b32 s10, s2, 2
    s_and_b32 s11, s2, 3
    s_lshl_b32 s10, s10, 16
    s_lshl_b32 s11, s11, 7
    s_add_u32 s10, s10, s11
    v_lshlrev_b32 v6, 9, v5
    v_lshl_add_u32 v6, v1, 4, v6
    v_add_u32 v6, s10, v6
    v_add_u32 v8, 4096, v6
    v_lshlrev_b32 v9, 5, v5
    """)

def load_partials(a, off):
    srd(a, 24, 8, 3*PSTRIDE+2048*1024*2, off)
    a(f"s_mov_b32 s28, {PSTRIDE}\ns_mov_b32 s29, {2*PSTRIDE}\ns_mov_b32 s30, {3*PSTRIDE}")
    for q, so in enumerate(["0", "s28", "s29", "s30"]):
        a(f"buffer_load_dwordx4 v[{100+8*q}:{103+8*q}], v6, s[24:27], {so} offen")
        a(f"buffer_load_dwordx4 v[{104+8*q}:{107+8*q}], v8, s[24:27], {so} offen")

def load_vec(a, dst, idx, sreg):
    a(f"s_mov_b32 s{sreg}, {idx*4096}")
    a(f"buffer_load_dwordx4 v[{dst}:{dst+3}], v9, s[16:19], s{sreg} offen")
    a(f"buffer_load_dwordx4 v[{dst+4}:{dst+7}], v9, s[16:19], s{sreg} offen offset:16")
    a(f"buffer_load_dwordx4 v[{dst+8}:{dst+11}], v9, s[16:19], s{sreg} offen offset:256")
    a(f"buffer_load_dwordx4 v[{dst+12}:{dst+15}], v9, s[16:19], s{sreg} offen offset:272")

def sum_partials_and_residual(a, res, gate, out, part="both"):
    if part in ("both", "sum"): _sum_partials(a)
    if part in ("both", "fin"): _residual(a, res, gate, out)
def _residual(a, res, gate, out):
    for j in range(8):
        a(f"v_lshlrev_b32 v{out+2*j}, 16, v{res+j}")
        a(f"v_and_b32 v{out+2*j+1}, s33, v{res+j}")
    for j in range(16): a(f"v_fmac_f32 v{out+j}, v{gate+j}, v{84+j}")
def _sum_partials(a):
    for j in range(8):
        a(f"v_lshlrev_b32 v{84+2*j}, 16, v{100+j}")
        a(f"v_and_b32 v{85+2*j}, s27_, v{100+j}".replace("s27_", "s33"))
    for q in range(1, 4):
        for j in range(8):
            a(f"v_lshlrev_b32 v40, 16, v{100+8*q+j}")
            a(f"v_and_b32 v41, s33, v{100+8*q+j}")
            a(f"v_add_f32 v{84+2*j}, v{84+2*j}, v40")
            a(f"v_add_f32 v{85+2*j}, v{85+2*j}, v41")

def gen_ln2p(name="ln2_kernel", stamp=None, stflag="", xf=False, parts=False, touch_w2=False, fin_gb=False):
    a = Asm(); L = name
    kernel_begin(a, name)
    a("s_load_dwordx2 s[52:53], s[0:1], 56")
    common_head(a, L, stamp)
    if not xf:
        a("""
        s_lshl_b32 s12, s2, 14
        v_lshlrev_b32 v7, 11, v1
        v_lshl_add_u32 v7, v5, 4, v7
        v_add_u32 v7, s12, v7
        """)
    a("s_waitcnt lgkmcnt(0)")
    assert parts
    srd(a, 16, 8, 4*4096*4, WS_PB)
    modpart_issue(a, 160, 0, 1024, 156, 16384)
    modpart_issue(a, 176, 2048, 2048, 156, 16384)
    load_partials(a, WS_P1)
    if xf:
        srd(a, 12, 8, 2048*1024*2, WS_XF)
        a("buffer_load_dwordx4 v[12:15], v6, s[12:15], 0 offen")
        a("buffer_load_dwordx4 v[16:19], v8, s[12:15], 0 offen")
    else:
        srd(a, 12, 4, 2048*1024*2)
        a("buffer_load_dwordx4 v[12:15], v7, s[12:15], 0 offen")
        a("buffer_load_dwordx4 v[16:19], v7, s[12:15], 0 offen offset:128")
    ntouch = 0
    if touch_w2:
        srd(a, 48, 52, 3584*1024*2)
        a("""
        v_readfirstlane_b32 s54, v4
        s_lshl_b32 s55, s2, 3
        s_add_u32 s55, s55, s54
        s_lshl_b32 s55, s55, 13
        v_and_b32 v159, 63, v0
        v_lshlrev_b32 v159, 7, v159
        buffer_load_dword v155, v159, s[48:51], s55 offen
        """)
        ntouch = 1
    srd(a, 20, 8, 2048*1024*2, WS_H2F)
    srd(a, 44, 8, 2048*1024*2, WS_X1F)
    a("s_mov_b32 s33, 0xffff0000")
    if stamp is not None: stamp_mid(a, 0)
    a(f"s_waitcnt vmcnt({10+ntouch})")
    modpart_sum(a, 160); modpart_sum(a, 176)
    modvec_stage(a, 160, 1024, 156)
    modvec_stage(a, 176, 1024+8192, 157)
    a("s_waitcnt lgkmcnt(0)")
    modvec_read(a, 132, 0, 1024, 156)
    modvec_read(a, 68, 1, 1024, 157)
    modvec_read(a, 52, 0, 1024+8192, 158)
    a(f"s_waitcnt vmcnt({ntouch}) lgkmcnt(0)")
    if stamp is not None: stamp_mid(a, 1)
    sum_partials_and_residual(a, 12, 132, 20)
    for j in range(8): a(f"v_cvt_pk_bf16_f32 v{12+j}, v{20+2*j}, v{21+2*j}")
    a(f"buffer_store_dwordx4 v[12:15], v6, s[44:47], 0 offen{stflag}")
    a(f"buffer_store_dwordx4 v[16:19], v8, s[44:47], 0 offen{stflag}")
    def reduce_lanes(r, t):
        a("s_nop 1")
        a(f"v_add_f32_dpp v{r}, v{r}, v{r} row_ror:8 row_mask:0xf bank_mask:0xf")
        a(f"v_mov_b32 v{t}, v{r}")
        a("s_nop 1")
        a(f"v_permlane16_swap_b32 v{r}, v{t}")
        a("s_nop 1")
        a(f"v_add_f32 v{r}, v{r}, v{t}")
        a(f"v_mov_b32 v{t}, v{r}")
        a("s_nop 1")
        a(f"v_permlane32_swap_b32 v{r}, v{t}")
        a("s_nop 1")
        a(f"v_add_f32 v{r}, v{r}, v{t}")
    a("v_add_f32 v36, v20, v21")
    a("v_add_f32 v37, v22, v23")
    for j in range(2, 8):
        a(f"v_add_f32 v{36+(j&1)}, v{36+(j&1)}, v{20+2*j}")
        a(f"v_add_f32 v{36+(j&1)}, v{36+(j&1)}, v{21+2*j}")
    a("v_add_f32 v36, v36, v37")
    reduce_lanes(36, 38)
    a("v_mul_f32 v36, 0x3c000000, v36")
    for j in range(16): a(f"v_sub_f32 v{84+j}, v{20+j}, v36")
    a("v_mul_f32 v37, v84, v84")
    a("v_mul_f32 v39, v85, v85")
    for j in range(2, 16, 2):
        a(f"v_fmac_f32 v37, v{84+j}, v{84+j}")
        a(f"v_fmac_f32 v39, v{85+j}, v{85+j}")
    a("v_add_f32 v37, v37, v39")
    reduce_lanes(37, 38)
    a("""
    v_lshlrev_b32 v40, 6, v1
    v_lshl_add_u32 v41, v4, 3, v40
    v_and_b32 v42, 63, v0
    v_cmp_gt_u32 vcc, 8, v42
    s_and_saveexec_b64 s[30:31], vcc
    ds_write_b64 v41, v[36:37]
    s_mov_b64 exec, s[30:31]
    s_waitcnt lgkmcnt(0)
    """)
    if stamp is not None: stamp_mid(a, 2)
    a("""
    s_barrier
    ds_read_b128 v[84:87], v40
    ds_read_b128 v[88:91], v40 offset:16
    ds_read_b128 v[92:95], v40 offset:32
    ds_read_b128 v[96:99], v40 offset:48
    s_waitcnt lgkmcnt(0)
    """)
    a("v_add_f32 v36, v84, v86")
    for j in range(2, 8): a(f"v_add_f32 v36, v36, v{84+2*j}")
    a("v_mul_f32 v36, 0x3e000000, v36")
    a("v_add_f32 v37, v85, v87")
    for j in range(2, 8): a(f"v_add_f32 v37, v37, v{85+2*j}")
    for j in range(8): a(f"v_sub_f32 v{84+2*j}, v{84+2*j}, v36")
    a("v_mul_f32 v38, v84, v84")
    for j in range(1, 8): a(f"v_fmac_f32 v38, v{84+2*j}, v{84+2*j}")
    a(f"""
    v_mov_b32 v39, 0x43000000
    v_fmac_f32 v37, v39, v38
    v_mov_b32 v39, 0x3727c5ac
    v_fmac_f32 v39, 0x3a800000, v37
    v_rsq_f32 v39, v39
    s_nop 0
    """)
    for j in range(16): a(f"v_sub_f32 v{20+j}, v{20+j}, v36")
    for j in range(16): a(f"v_add_f32 v{52+j}, 1.0, v{52+j}")
    for j in range(16): a(f"v_mul_f32 v{20+j}, v{20+j}, v39")
    for j in range(16): a(f"v_fmac_f32 v{68+j}, v{20+j}, v{52+j}")
    for j in range(8): a(f"v_cvt_pk_bf16_f32 v{12+j}, v{68+2*j}, v{69+2*j}")
    a(f"""
    buffer_store_dwordx4 v[12:15], v6, s[20:23], 0 offen{stflag}
    buffer_store_dwordx4 v[16:19], v8, s[20:23], 0 offen{stflag}
    """)
    if fin_gb:
        a(f"s_cmp_lg_u32 s2, 0\ns_cbranch_scc1 L_{L}_nofin")
        modpart_issue(a, 160, 3072, 3072, 156, 16384)
        srd(a, 48, 8, 4096, WS_GB)
        srd(a, 52, 8, 16384, WS_FL)
        a("s_waitcnt vmcnt(0)")
        modpart_sum(a, 160)
        a(f"""
        v_and_b32 v156, 31, v0
        v_lshlrev_b32 v156, 4, v156
        v_lshl_add_u32 v156, v4, 9, v156
        buffer_store_dwordx4 v[160:163], v156, s[48:51], 0 offen
        v_mov_b32 v164, 0
        v_mov_b32 v165, 0
        v_mov_b32 v166, 0
        v_mov_b32 v167, 0
        v_lshlrev_b32 v157, 4, v0
        buffer_store_dwordx4 v[164:167], v157, s[52:55], 0 offen
        v_add_u32 v157, 8192, v157
        buffer_store_dwordx4 v[164:167], v157, s[52:55], 0 offen
        L_{L}_nofin:
        """)
    if stamp is not None:
        stamp_mid(a, 3)
        a("s_mov_b32 s74, 0")
        stamp_end2(a, stamp, 8)
    a(f"L_{L}_done:\ns_endpgm")
    return (name, (256,1,1), (512,1,1), 1024+16384), a.text(), kernel_desc(name, 192, sgpr=102)

def gen_redk(name="red_kernel", stamp=None, parts=False):
    a = Asm(); L = name
    kernel_begin(a, name); common_head(a, L, stamp)
    a("s_waitcnt lgkmcnt(0)")
    if parts:
        srd(a, 16, 8, 4*4096*4, WS_PB)
        modpart_issue(a, 160, 3072, 3072, 156, 16384)
    else:
        srd(a, 16, 8, 6144*4, WS_MOD)
        modvec_issue(a, 148, 5, 5, 156)
    load_partials(a, WS_P2)
    srd(a, 12, 8, 2048*1024*2, WS_X1F)
    a("buffer_load_dwordx4 v[12:15], v6, s[12:15], 0 offen")
    a("buffer_load_dwordx4 v[16:19], v8, s[12:15], 0 offen")
    srd(a, 20, 6, 2048*1024*2)
    a("""
    v_xor_b32 v42, v3, v1                ; cl ^ tk
    v_lshlrev_b32 v42, 4, v42
    v_lshl_add_u32 v42, v1, 8, v42
    v_lshl_add_u32 v42, v4, 11, v42      ; write addr (+128 for chunk1)
    v_and_b32 v43, 63, v0
    v_lshrrev_b32 v44, 3, v43            ; tk'
    v_and_b32 v45, 7, v43                ; c'
    v_xor_b32 v46, v45, v44
    v_lshlrev_b32 v46, 4, v46
    v_lshl_add_u32 v46, v44, 8, v46
    v_lshl_add_u32 v46, v4, 11, v46      ; read addr
    s_lshl_b32 s12_, s2, 14
    v_lshlrev_b32 v47, 11, v44
    v_lshl_add_u32 v47, v45, 4, v47
    v_lshl_add_u32 v47, v4, 8, v47       ; + 16w chunks*16
    v_add_u32 v47, s12_, v47             ; out offset
    s_mov_b32 s33, 0xffff0000
    """.replace("s12_", "s37"))
    if stamp is not None: stamp_mid(a, 0)
    a("s_waitcnt vmcnt(10)")
    if parts:
        modpart_sum(a, 160); modvec_stage(a, 160, 16384, 156)
    else:
        modvec_stage(a, 148, 16384, 156)
    a("s_waitcnt lgkmcnt(0)")
    modvec_read(a, 132, 0, 16384, 156)
    a("s_waitcnt vmcnt(0) lgkmcnt(0)")
    if stamp is not None: stamp_mid(a, 1)
    sum_partials_and_residual(a, 12, 132, 20)
    for j in range(8): a(f"v_cvt_pk_bf16_f32 v{12+j}, v{20+2*j}, v{21+2*j}")
    a("""
    ds_write_b128 v42, v[12:15]
    ds_write_b128 v42, v[16:19] offset:128
    s_waitcnt lgkmcnt(0)
    ds_read_b128 v[20:23], v46
    ds_read_b128 v[24:27], v46 offset:128
    s_waitcnt lgkmcnt(1)
    buffer_store_dwordx4 v[20:23], v47, s[20:23], 0 offen
    s_waitcnt lgkmcnt(0)
    buffer_store_dwordx4 v[24:27], v47, s[20:23], 0 offen offset:128
    """)
    if stamp is not None:
        stamp_mid(a, 2)
        a("s_mov_b32 s73, 0\ns_mov_b32 s74, 0")
        stamp_end2(a, stamp, 8)
    a(f"L_{L}_done:\ns_endpgm")
    return (name, (256,1,1), (512,1,1), 16384+8192), a.text(), kernel_desc(name, 176, sgpr=102)
```

```python
from asmlib import *

WS_MOD  = 0x0000000
WS_HF   = 0x0100000
WS_OF   = 0x1000000
WS_X1F  = 0x2000000
import os
REUSE = os.environ.get('NOREUSE', '0') != '1'
WS_H2F  = WS_HF if REUSE else 0x2400000
WS_HIDF = WS_OF if REUSE else 0x3000000
WS_WLIN = 0x4000000

def srd(a, r, base, nbytes, off=0):
    if off:
        a(f"s_add_u32 s{r}, s{base}, {off}")
        a(f"s_addc_u32 s{r+1}, s{base+1}, 0")
    else:
        a(f"s_mov_b32 s{r}, s{base}")
        a(f"s_mov_b32 s{r+1}, s{base+1}")
    a(f"s_mov_b32 s{r+2}, {nbytes}")
    a(f"s_mov_b32 s{r+3}, 0x20000")

def gen_k0(name="k0_kernel", prefetch=None, stamp=None, pfwg=True, code_bytes=131072, stride=128, pf_wq=False):
    a = Asm()
    kernel_begin(a, name)
    a(f"""
    s_cmp_ge_u32 s2, 96
    s_cbranch_scc1 {"L_k0_pf" if pfwg else "L_k0_done"}
    s_load_dwordx4 s[4:7], s[0:1], 64
    s_load_dwordx2 s[8:9], s[0:1], 96
    """)
    if stamp is not None: stamp_begin(a)
    a(f"""
    v_lshrrev_b32 v1, 3, v0              ; 8w+g
    v_and_b32 v2, 7, v0                  ; cc
    v_lshlrev_b32 v3, 5, v1
    s_mov_b32 s24, 196608                ; 16*12288
    v_mul_lo_u32 v4, v1, s24
    v_lshlrev_b32 v2, 4, v2
    s_lshl_b32 s25, s2, 7
    v_add3_u32 v4, v4, v2, s25
    s_waitcnt lgkmcnt(0)
    """)
    srd(a, 12, 4, 2048)
    srd(a, 16, 6, 1024*6144*2)
    srd(a, 20, 8, 6144*4, WS_MOD)
    a("""
    buffer_load_dwordx4 v[8:11], v3, s[12:15], 0 offen
    buffer_load_dwordx4 v[12:15], v3, s[12:15], 0 offen offset:16
    s_mov_b32 s26, 0
    """)
    for i in range(16):
        a(f"buffer_load_dwordx4 v[{64+4*i}:{67+4*i}], v4, s[16:19], s26 offen")
        if i < 15: a(f"s_add_u32 s26, s26, 12288")
    if prefetch:
        prefetch(a)
        npf = prefetch.n
    else:
        npf = 0
    a(f"""
    s_mov_b32 s27, 0xffff0000
    s_mov_b32 s28, 0xbfb8aa3b            ; -log2(e)
    s_waitcnt vmcnt({16+npf})
    """)
    for j in range(8):
        a(f"v_lshlrev_b32 v{16+2*j}, 16, v{8+j}")
        a(f"v_and_b32 v{17+2*j}, s27, v{8+j}")
    for j in range(16): a(f"v_mul_f32 v{32+j}, s28, v{16+j}")
    for j in range(16): a(f"v_exp_f32 v{32+j}, v{32+j}")
    for j in range(16): a(f"v_add_f32 v{32+j}, 1.0, v{32+j}")
    for j in range(16): a(f"v_rcp_f32 v{32+j}, v{32+j}")
    for j in range(16): a(f"v_mul_f32 v{16+j}, v{16+j}, v{32+j}")
    for j in range(8): a(f"v_cvt_pk_bf16_f32 v{8+j}, v{16+2*j}, v{17+2*j}")
    for j in range(8):
        a(f"v_lshlrev_b32 v{16+2*j}, 16, v{8+j}")
        a(f"v_and_b32 v{17+2*j}, s27, v{8+j}")
    for e in range(8): a(f"v_mov_b32 v{32+e}, 0")
    for i in range(16):
        a(f"s_waitcnt vmcnt({15-i+npf})")
        for d in range(4):
            r = 64+4*i+d
            a(f"v_lshlrev_b32 v40, 16, v{r}")
            a(f"v_and_b32 v41, s27, v{r}")
            a(f"v_fmac_f32 v{32+2*d}, v{16+i}, v40")
            a(f"v_fmac_f32 v{33+2*d}, v{16+i}, v41")
    a("s_nop 1")
    for e in range(8): a(f"v_add_f32_dpp v{32+e}, v{32+e}, v{32+e} row_ror:8 row_mask:0xf bank_mask:0xf")
    for e in range(8): a(f"v_mov_b32 v{40+e}, v{32+e}")
    a("s_nop 1")
    for e in range(8): a(f"v_permlane16_swap_b32 v{32+e}, v{40+e}")
    a("s_nop 1")
    for e in range(8): a(f"v_add_f32 v{32+e}, v{32+e}, v{40+e}")
    for e in range(8): a(f"v_mov_b32 v{40+e}, v{32+e}")
    a("s_nop 1")
    for e in range(8): a(f"v_permlane32_swap_b32 v{32+e}, v{40+e}")
    a("s_nop 1")
    for e in range(8): a(f"v_add_f32 v{32+e}, v{32+e}, v{40+e}")
    a("""
    v_and_b32 v5, 63, v0
    v_lshrrev_b32 v6, 6, v0              ; wave
    v_lshlrev_b32 v7, 8, v6              ; w*256
    v_lshl_add_u32 v7, v5, 5, v7
    v_cmp_gt_u32 vcc, 8, v5
    s_and_saveexec_b64 s[30:31], vcc
    ds_write_b128 v7, v[32:35]
    ds_write_b128 v7, v[36:39] offset:16
    s_mov_b64 exec, s[30:31]
    s_waitcnt lgkmcnt(0)
    s_barrier
    v_cmp_gt_u32 vcc, 64, v0
    s_and_saveexec_b64 s[30:31], vcc
    s_cbranch_execz L_k0_end
    v_lshlrev_b32 v7, 2, v0
    """)
    for j in range(8): a(f"ds_read_b32 v{16+j}, v7 offset:{256*j}")
    a("""
    s_lshl_b32 s25, s2, 8
    v_add_u32 v6, s25, v7
    s_waitcnt lgkmcnt(0)
    v_add_f32 v16, v16, v17
    v_add_f32 v18, v18, v19
    v_add_f32 v20, v20, v21
    v_add_f32 v22, v22, v23
    v_add_f32 v16, v16, v18
    v_add_f32 v20, v20, v22
    v_add_f32 v16, v16, v20
    buffer_store_dword v16, v6, s[20:23], 0 offen
    L_k0_end:
    s_mov_b64 exec, s[30:31]
    """)
    if stamp is not None: stamp_end2(a, stamp, 8)
    a("""
    L_k0_done:
    s_endpgm
    """)
    if pfwg:
        a(f"""
        L_k0_pf:
        s_cmp_ge_u32 s2, 256
        s_cbranch_scc1 L_k0_done
        s_load_dwordx4 s[4:7], s[0:1], 0       ; x, k
        s_load_dwordx4 s[8:11], s[0:1], 16     ; v, wq
        s_getpc_b64 s[28:29]
        L_k0_pc:
        s_add_u32 s28, s28, L_code_begin-L_k0_pc
        s_addc_u32 s29, s29, 0
        v_lshrrev_b32 v2, 6, v0
        v_and_b32 v1, 63, v0
        v_readfirstlane_b32 s20, v2
        s_and_b32 s21, s2, 7                   ; xcd
        s_sub_u32 s22, s2, 96
        s_lshr_b32 s22, s22, 3
        s_lshl_b32 s22, s22, 3
        s_add_u32 s22, s22, s20                ; gid 0..159
        v_lshrrev_b32 v3, 4, v1                ; l>>4
        v_and_b32 v4, 15, v1
        v_lshlrev_b32 v4, 7, v4                ; line*128
        v_lshlrev_b32 v5, 7, v1                ; l*128
        s_waitcnt lgkmcnt(0)
        """)
        srd(a, 12, 4, 2048*1024*2)
        srd(a, 16, 10, 1024*4096*2)
        a(f"""
        s_cmp_ge_u32 s22, 64
        s_cbranch_scc1 L_k0_pf_kv
        s_lshr_b32 s23, s22, 1
        s_lshl_b32 s23, s23, 3
        s_add_u32 s23, s23, s21
        s_lshl_b32 s23, s23, 3
        s_and_b32 s24, s22, 1
        s_lshl_b32 s24, s24, 2
        s_add_u32 s23, s23, s24
        s_lshl_b32 s23, s23, 11
        v_lshl_add_u32 v6, v3, 11, v4
        buffer_load_dword v8, v6, s[12:15], s23 offen
        s_branch L_k0_pf_wq
        L_k0_pf_kv:
        s_cmp_ge_u32 s22, 96
        s_cbranch_scc1 L_k0_pf_code
        s_sub_u32 s23, s22, 64                 ; 0..31 : 0..15 K, 16..31 V
        s_cmp_ge_u32 s23, 16
        s_cselect_b32 s12, s8, s6
        s_cselect_b32 s13, s9, s7
        s_mov_b32 s14, {4*2048*128*2}
        s_and_b32 s23, s23, 15
        s_lshl_b32 s23, s23, 13
        s_and_b32 s24, s21, 3
        s_lshl_b32 s24, s24, 19
        s_add_u32 s23, s23, s24
        s_add_u32 s23, s23, {1536*256}
        buffer_load_dword v8, v5, s[12:15], s23 offen
        s_branch L_k0_pf_wq
        L_k0_pf_code:
        s_cmp_ge_u32 s22, {96+code_bytes//8192}
        s_cbranch_scc1 L_k0_pf_wq
        s_sub_u32 s23, s22, 96
        s_lshl_b32 s23, s23, 13
        v_add_u32 v6, s23, v5
        v_min_u32 v6, L_code_end-L_code_begin, v6
        global_load_dword v8, v6, s[28:29]
        L_k0_pf_wq:
        s_and_b32 s24, s21, 3
        s_lshl_b32 s24, s24, 11                ; g*2048
        v_lshl_add_u32 v6, v3, 13, v4
        s_lshl_b32 s23, s22, 15
        s_add_u32 s23, s23, s24
        """)
        if pf_wq:
            a(f"""
            buffer_load_dword v9, v6, s[16:19], s23 offen
            s_add_u32 s23, s23, {160*32768}
            buffer_load_dword v10, v6, s[16:19], s23 offen
            """)
        a(f"""
        s_waitcnt vmcnt(0)
        s_endpgm
        L_code_begin:
        s_endpgm
        """)
    return (name, (256 if pfwg else 96,1,1), (512,1,1), 2048), a.text(), kernel_desc(name, 128, sgpr=102)

def gen_ln(name, src, dst_off, shift_idx, scale_idx, outscale, stamp=None, pf_wq=False, xf=False, stflag="", parts=False, clear_fl3=False):
    a = Asm()
    L = name
    kernel_begin(a, name)
    import struct
    osc = struct.unpack("<I", struct.pack("<f", outscale))[0]
    a(f"""
    s_cmp_ge_u32 s2, 256
    s_cbranch_scc1 L_{L}_done
    s_load_dwordx2 s[4:5], s[0:1], 0
    s_load_dwordx2 s[8:9], s[0:1], 96
    """)
    if stamp is not None: stamp_begin(a)
    a(f"""
    v_and_b32 v1, 7, v0
    v_lshrrev_b32 v2, 3, v0              ; 8w + cl
    v_and_b32 v3, 7, v2                  ; cl
    v_lshrrev_b32 v4, 6, v0              ; w
    v_lshl_add_u32 v5, v4, 4, v3
    s_lshr_b32 s10, s2, 2
    s_and_b32 s11, s2, 3
    s_lshl_b32 s10, s10, 16
    s_lshl_b32 s11, s11, 7
    s_add_u32 s10, s10, s11
    v_lshlrev_b32 v6, 9, v5
    v_lshl_add_u32 v6, v1, 4, v6
    v_add_u32 v6, s10, v6
    v_lshlrev_b32 v9, 5, v5
    """)
    if src == 'x':
        a("""
        s_lshl_b32 s12, s2, 14
        v_lshlrev_b32 v7, 11, v1
        v_lshl_add_u32 v7, v5, 4, v7
        v_add_u32 v7, s12, v7
        """)
    a("s_waitcnt lgkmcnt(0)")
    if src == 'x':
        srd(a, 12, 4, 2048*1024*2)
        a("buffer_load_dwordx4 v[12:15], v7, s[12:15], 0 offen")
        a("buffer_load_dwordx4 v[16:19], v7, s[12:15], 0 offen offset:128")
    else:
        srd(a, 12, 8, 2048*1024*2, src[1])
        a("v_add_u32 v7, 4096, v6")
        a("buffer_load_dwordx4 v[12:15], v6, s[12:15], 0 offen")
        a("buffer_load_dwordx4 v[16:19], v7, s[12:15], 0 offen")
    if pf_wq:
        a(f"""
        s_load_dwordx2 s[34:35], s[0:1], 24
        v_and_b32 v44, 63, v0
        v_lshrrev_b32 v45, 4, v44
        v_and_b32 v44, 15, v44
        v_lshlrev_b32 v44, 7, v44
        v_lshl_add_u32 v44, v45, 13, v44
        v_readfirstlane_b32 s36, v4
        s_lshr_b32 s37, s2, 3
        s_lshl_b32 s37, s37, 3
        s_add_u32 s37, s37, s36
        s_lshl_b32 s37, s37, 15
        s_and_b32 s38, s2, 3
        s_lshl_b32 s38, s38, 11
        s_add_u32 s37, s37, s38
        s_waitcnt lgkmcnt(0)
        """)
        srd(a, 40, 34, int(os.environ.get('WQROWS', '1024'))*4096*2)
    if parts: srd(a, 16, 8, 4*2048*4, WS_PA)
    else: srd(a, 16, 8, 6144*4, WS_MOD)
    srd(a, 20, 8, 2048*1024*2, dst_off)
    if parts: modpart_issue(a, 100, 0, 1024, 116, 8192)
    else: modvec_issue(a, 100, shift_idx, scale_idx, 104)
    if pf_wq: a("buffer_load_dword v46, v44, s[40:43], s37 offen")
    if xf:
        srd(a, 28, 8, 2048*1024*2, WS_XF)
    a("s_mov_b32 s27, 0xffff0000")
    a(f"s_waitcnt vmcnt({(1 if pf_wq else 0)+(4 if parts else 1)})")
    if xf:
        a(f"v_add_u32 v47, 4096, v6")
        a(f"buffer_store_dwordx4 v[12:15], v6, s[28:31], 0 offen{stflag}")
        a(f"buffer_store_dwordx4 v[16:19], v47, s[28:31], 0 offen{stflag}")
    for j in range(8):
        a(f"v_lshlrev_b32 v{20+2*j}, 16, v{12+j}")
        a(f"v_and_b32 v{21+2*j}, s27, v{12+j}")
    def reduce_lanes(r, t):
        a("s_nop 1")
        a(f"v_add_f32_dpp v{r}, v{r}, v{r} row_ror:8 row_mask:0xf bank_mask:0xf")
        a(f"v_mov_b32 v{t}, v{r}")
        a("s_nop 1")
        a(f"v_permlane16_swap_b32 v{r}, v{t}")
        a("s_nop 1")
        a(f"v_add_f32 v{r}, v{r}, v{t}")
        a(f"v_mov_b32 v{t}, v{r}")
        a("s_nop 1")
        a(f"v_permlane32_swap_b32 v{r}, v{t}")
        a("s_nop 1")
        a(f"v_add_f32 v{r}, v{r}, v{t}")
    a("v_add_f32 v36, v20, v21")
    a("v_add_f32 v37, v22, v23")
    for j in range(2, 8):
        a(f"v_add_f32 v{36+(j&1)}, v{36+(j&1)}, v{20+2*j}")
        a(f"v_add_f32 v{36+(j&1)}, v{36+(j&1)}, v{21+2*j}")
    a("v_add_f32 v36, v36, v37")
    reduce_lanes(36, 38)
    a("v_mul_f32 v36, 0x3c000000, v36")
    for j in range(16): a(f"v_sub_f32 v{84+j}, v{20+j}, v36")
    a("v_mul_f32 v37, v84, v84")
    a("v_mul_f32 v39, v85, v85")
    for j in range(2, 16, 2):
        a(f"v_fmac_f32 v37, v{84+j}, v{84+j}")
        a(f"v_fmac_f32 v39, v{85+j}, v{85+j}")
    a("v_add_f32 v37, v37, v39")
    reduce_lanes(37, 38)
    nyoung = (1 if pf_wq else 0)+(2 if xf else 0)
    a(f"s_waitcnt vmcnt({nyoung})")
    if parts: modpart_sum(a, 100)
    modvec_stage(a, 100, 1024, 104)
    a("""
    v_lshlrev_b32 v40, 6, v1
    v_lshl_add_u32 v41, v4, 3, v40
    v_and_b32 v42, 63, v0
    v_cmp_gt_u32 vcc, 8, v42
    s_and_saveexec_b64 s[30:31], vcc
    ds_write_b64 v41, v[36:37]
    s_mov_b64 exec, s[30:31]
    s_waitcnt lgkmcnt(0)
    s_barrier
    ds_read_b128 v[84:87], v40
    ds_read_b128 v[88:91], v40 offset:16
    ds_read_b128 v[92:95], v40 offset:32
    ds_read_b128 v[96:99], v40 offset:48
    """)
    modvec_read(a, 68, 0, 1024, 104)
    modvec_read(a, 52, 1, 1024, 105)
    a("s_waitcnt lgkmcnt(8)")
    a("v_add_f32 v36, v84, v86")
    for j in range(2, 8): a(f"v_add_f32 v36, v36, v{84+2*j}")
    a("v_mul_f32 v36, 0x3e000000, v36")
    a("v_add_f32 v37, v85, v87")
    for j in range(2, 8): a(f"v_add_f32 v37, v37, v{85+2*j}")
    for j in range(8): a(f"v_sub_f32 v{84+2*j}, v{84+2*j}, v36")
    a("v_mul_f32 v38, v84, v84")
    for j in range(1, 8): a(f"v_fmac_f32 v38, v{84+2*j}, v{84+2*j}")
    a(f"""
    v_mov_b32 v39, 0x43000000
    v_fmac_f32 v37, v39, v38             ; M2 total
    v_mov_b32 v39, 0x3727c5ac            ; 1e-5
    v_fmac_f32 v39, 0x3a800000, v37
    v_rsq_f32 v39, v39
    s_waitcnt lgkmcnt(0)
    """)
    for j in range(16): a(f"v_sub_f32 v{20+j}, v{20+j}, v36")
    for j in range(16): a(f"v_add_f32 v{52+j}, 1.0, v{52+j}")
    for j in range(16): a(f"v_mul_f32 v{20+j}, v{20+j}, v39")
    for j in range(16): a(f"v_fmac_f32 v{68+j}, v{20+j}, v{52+j}")
    if outscale != 1.0:
        a(f"s_mov_b32 s28, {osc}")
        for j in range(16): a(f"v_mul_f32 v{68+j}, s28, v{68+j}")
    for j in range(8): a(f"v_cvt_pk_bf16_f32 v{12+j}, v{68+2*j}, v{69+2*j}")
    a(f"""
    v_add_u32 v7, 4096, v6
    buffer_store_dwordx4 v[12:15], v6, s[20:23], 0 offen{stflag}
    buffer_store_dwordx4 v[16:19], v7, s[20:23], 0 offen{stflag}
    """)
    if clear_fl3:
        a(f"s_cmp_lg_u32 s2, 0\ns_cbranch_scc1 L_{L}_noclr")
        srd(a, 44, 8, 16384, WS_FL3)
        a(f"""
        v_mov_b32 v100, 0
        v_mov_b32 v101, 0
        v_mov_b32 v102, 0
        v_mov_b32 v103, 0
        v_lshlrev_b32 v104, 4, v0
        buffer_store_dwordx4 v[100:103], v104, s[44:47], 0 offen
        v_add_u32 v104, 8192, v104
        buffer_store_dwordx4 v[100:103], v104, s[44:47], 0 offen
        L_{L}_noclr:
        """)
    if stamp is not None: stamp_end2(a, stamp, 8)
    a(f"""
    L_{L}_done:
    s_endpgm
    """)
    return (name, (256,1,1), (512,1,1), 1024+8192), a.text(), kernel_desc(name, 120, sgpr=102)


WS_XF = 0x2800000
WS_PA = 0x10000
WS_FL = 0x38000
WS_FL3 = 0x40000
WS_GB = 0x3c000
WS_PB = 0x20000
def modpart_issue(a, dstv, colA, colB, vaddr, qstride, srd0=16):
    a(f"""
    v_and_b32 v{vaddr}, 31, v0
    v_lshlrev_b32 v{vaddr}, 4, v{vaddr}
    v_lshl_add_u32 v{vaddr}, v4, 9, v{vaddr}          ; w*512 + (l&31)*16
    v_bfe_u32 v{vaddr+1}, v0, 5, 1
    v_mul_u32_u24 v{vaddr+1}, {(colB-colA)*4}, v{vaddr+1}
    v_add_u32 v{vaddr}, v{vaddr}, v{vaddr+1}
    """)
    for q in range(4):
        a(f"s_mov_b32 s{60+q}, {colA*4+q*qstride}")
    for q in range(4):
        a(f"buffer_load_dwordx4 v[{dstv+4*q}:{dstv+4*q+3}], v{vaddr}, s[{srd0}:{srd0+3}], s{60+q} offen")
def modpart_sum(a, dstv):
    for j in range(4):
        a(f"v_add_f32 v{dstv+j}, v{dstv+j}, v{dstv+4+j}")
        a(f"v_add_f32 v{dstv+8+j}, v{dstv+8+j}, v{dstv+12+j}")
    for j in range(4): a(f"v_add_f32 v{dstv+j}, v{dstv+j}, v{dstv+8+j}")
def modvec_issue(a, dstv, idxA, idxB, vaddr, srd0=16):
    a(f"""
    v_and_b32 v{vaddr}, 31, v0
    v_lshlrev_b32 v{vaddr}, 4, v{vaddr}
    v_lshl_add_u32 v{vaddr}, v4, 9, v{vaddr}          ; w*512 + (l&31)*16
    v_bfe_u32 v{vaddr+1}, v0, 5, 1
    v_mul_u32_u24 v{vaddr+1}, {(idxB-idxA)*4096}, v{vaddr+1}
    v_add_u32 v{vaddr}, v{vaddr}, v{vaddr+1}
    v_add_u32 v{vaddr}, {idxA*4096}, v{vaddr}
    buffer_load_dwordx4 v[{dstv}:{dstv+3}], v{vaddr}, s[{srd0}:{srd0+3}], 0 offen
    """)
def modvec_stage(a, srcv, ldsbase, vtmp):
    a(f"""
    v_and_b32 v{vtmp}, 63, v0
    v_lshlrev_b32 v{vtmp}, 4, v{vtmp}
    v_lshl_add_u32 v{vtmp}, v4, 10, v{vtmp}
    ds_write_b128 v{vtmp}, v[{srcv}:{srcv+3}] offset:{ldsbase}
    """)
def modvec_read(a, dst, half, ldsbase, vtmp):
    a(f"""
    v_lshlrev_b32 v{vtmp}, 5, v3
    v_lshl_add_u32 v{vtmp}, v4, 10, v{vtmp}
    ds_read_b128 v[{dst}:{dst+3}], v{vtmp} offset:{ldsbase+half*512}
    ds_read_b128 v[{dst+4}:{dst+7}], v{vtmp} offset:{ldsbase+half*512+16}
    ds_read_b128 v[{dst+8}:{dst+11}], v{vtmp} offset:{ldsbase+half*512+256}
    ds_read_b128 v[{dst+12}:{dst+15}], v{vtmp} offset:{ldsbase+half*512+272}
    """)
WS_STAMP = 0x8000000
def stamp_begin(a):
    a("""
    s_memtime s[90:91]
    s_memrealtime s[92:93]
    """)
def stamp_end(a, slot, wsreg):
    a(f"""
    s_waitcnt vmcnt(0) lgkmcnt(0)
    s_memtime s[94:95]
    s_memrealtime s[96:97]
    s_add_u32 s84, s{wsreg}, {WS_STAMP + slot*16384}
    s_addc_u32 s85, s{wsreg+1}, 0
    s_mov_b32 s86, 16384
    s_mov_b32 s87, 0x20000
    s_waitcnt lgkmcnt(0)
    s_sub_u32 s94, s94, s90
    v_mov_b32 v4, s94
    v_mov_b32 v5, s92
    v_mov_b32 v6, s96
    v_mov_b32 v7, s2
    s_lshl_b32 s88, s2, 4
    v_mov_b32 v8, s88
    v_cmp_eq_u32 vcc, 0, v0
    s_and_saveexec_b64 s[98:99], vcc
    s_cbranch_execz L_stamp_skip_{slot}
    buffer_store_dwordx4 v[4:7], v8, s[84:87], 0 offen
    L_stamp_skip_{slot}:
    s_mov_b64 exec, s[98:99]
    """)

def stamp_mid(a, k):
    a(f"""
    s_memtime s[68:69]
    s_waitcnt lgkmcnt(0)
    s_sub_u32 s{70+k}, s68, s90
    """)
def stamp_end2(a, slot, wsreg):
    a(f"""
    s_waitcnt vmcnt(0) lgkmcnt(0)
    s_memtime s[94:95]
    s_memrealtime s[96:97]
    s_add_u32 s84, s{wsreg}, {WS_STAMP + slot*16384}
    s_addc_u32 s85, s{wsreg+1}, 0
    s_mov_b32 s86, 16384
    s_mov_b32 s87, 0x20000
    s_waitcnt lgkmcnt(0)
    s_sub_u32 s94, s94, s90
    v_mov_b32 v4, s94
    v_mov_b32 v5, s92
    v_mov_b32 v6, s96
    v_mov_b32 v7, s70
    v_mov_b32 v8, s71
    v_mov_b32 v9, s72
    v_mov_b32 v10, s73
    v_mov_b32 v11, s74
    s_lshl_b32 s88, s2, 5
    v_mov_b32 v12, s88
    v_cmp_eq_u32 vcc, 0, v0
    s_and_saveexec_b64 s[98:99], vcc
    s_cbranch_execz L_stamp_skip_{slot}
    buffer_store_dwordx4 v[4:7], v12, s[84:87], 0 offen
    buffer_store_dwordx4 v[8:11], v12, s[84:87], 0 offen offset:16
    L_stamp_skip_{slot}:
    s_mov_b64 exec, s[98:99]
    """)


def gen_k0b(name="k0_kernel", stamp=None):
    a = Asm(); L = name
    kernel_begin(a, name)
    a(f"""
    s_cmp_ge_u32 s2, 128
    s_cbranch_scc1 L_{L}_pf
    s_load_dwordx4 s[4:7], s[0:1], 64
    s_load_dwordx2 s[8:9], s[0:1], 96
    """)
    if stamp is not None: stamp_begin(a)
    a(f"""
    v_lshrrev_b32 v1, 3, v0              ; 8w+g
    v_and_b32 v2, 7, v0                  ; cc
    s_and_b32 s20, s2, 3                 ; kq
    s_lshr_b32 s21, s2, 2                ; strip
    v_lshlrev_b32 v3, 2, v1
    s_lshl_b32 s22, s20, 8
    v_add_u32 v3, s22, v3
    s_mov_b32 s24, 12288
    v_mul_lo_u32 v4, v3, s24
    v_lshlrev_b32 v2, 4, v2
    s_lshl_b32 s25, s21, 7
    v_add3_u32 v4, v4, v2, s25
    v_lshlrev_b32 v3, 1, v3
    s_waitcnt lgkmcnt(0)
    """)
    srd(a, 12, 4, 2048)
    srd(a, 16, 6, 1024*6144*2)
    srd(a, 36, 8, 4*2048*4, WS_PA)
    a("buffer_load_dwordx2 v[8:9], v3, s[12:15], 0 offen")
    a("s_mov_b32 s26, 0")
    for i in range(4):
        a(f"buffer_load_dwordx4 v[{64+4*i}:{67+4*i}], v4, s[16:19], s26 offen")
        if i < 3: a("s_add_u32 s26, s26, 12288")
    a("""
    s_mov_b32 s27, 0xffff0000
    s_mov_b32 s33, 0xbfb8aa3b
    s_waitcnt vmcnt(4)
    v_lshlrev_b32 v16, 16, v8
    v_and_b32 v17, s27, v8
    v_lshlrev_b32 v18, 16, v9
    v_and_b32 v19, s27, v9
    """)
    for j in range(4): a(f"v_mul_f32 v{20+j}, s33, v{16+j}")
    for j in range(4): a(f"v_exp_f32 v{20+j}, v{20+j}")
    for j in range(4): a(f"v_add_f32 v{20+j}, 1.0, v{20+j}")
    for j in range(4): a(f"v_rcp_f32 v{20+j}, v{20+j}")
    for j in range(4): a(f"v_mul_f32 v{16+j}, v{16+j}, v{20+j}")
    a("""
    v_cvt_pk_bf16_f32 v8, v16, v17
    v_cvt_pk_bf16_f32 v9, v18, v19
    v_lshlrev_b32 v16, 16, v8
    v_and_b32 v17, s27, v8
    v_lshlrev_b32 v18, 16, v9
    v_and_b32 v19, s27, v9
    """)
    for e in range(8): a(f"v_mov_b32 v{32+e}, 0")
    for i in range(4):
        a(f"s_waitcnt vmcnt({3-i})")
        for d in range(4):
            r = 64+4*i+d
            a(f"v_lshlrev_b32 v40, 16, v{r}")
            a(f"v_and_b32 v41, s27, v{r}")
            a(f"v_fmac_f32 v{32+2*d}, v{16+i}, v40")
            a(f"v_fmac_f32 v{33+2*d}, v{16+i}, v41")
    a("s_nop 1")
    for e in range(8): a(f"v_add_f32_dpp v{32+e}, v{32+e}, v{32+e} row_ror:8 row_mask:0xf bank_mask:0xf")
    for sw in ["v_permlane16_swap_b32", "v_permlane32_swap_b32"]:
        for e in range(8): a(f"v_mov_b32 v{40+e}, v{32+e}")
        a("s_nop 1")
        for e in range(8): a(f"{sw} v{32+e}, v{40+e}")
        a("s_nop 1")
        for e in range(8): a(f"v_add_f32 v{32+e}, v{32+e}, v{40+e}")
    a(f"""
    v_and_b32 v5, 63, v0
    v_lshrrev_b32 v6, 6, v0
    v_lshlrev_b32 v7, 8, v6
    v_lshl_add_u32 v7, v5, 5, v7
    v_cmp_gt_u32 vcc, 8, v5
    s_and_saveexec_b64 s[30:31], vcc
    ds_write_b128 v7, v[32:35]
    ds_write_b128 v7, v[36:39] offset:16
    s_mov_b64 exec, s[30:31]
    s_waitcnt lgkmcnt(0)
    s_barrier
    v_cmp_gt_u32 vcc, 64, v0
    s_and_saveexec_b64 s[30:31], vcc
    s_cbranch_execz L_{L}_end
    v_lshlrev_b32 v7, 2, v0
    """)
    for j in range(8): a(f"ds_read_b32 v{16+j}, v7 offset:{256*j}")
    a(f"""
    s_lshl_b32 s25, s21, 8
    s_lshl_b32 s26, s20, 13
    s_add_u32 s25, s25, s26
    v_add_u32 v6, s25, v7
    s_waitcnt lgkmcnt(0)
    v_add_f32 v16, v16, v17
    v_add_f32 v18, v18, v19
    v_add_f32 v20, v20, v21
    v_add_f32 v22, v22, v23
    v_add_f32 v16, v16, v18
    v_add_f32 v20, v20, v22
    v_add_f32 v16, v16, v20
    buffer_store_dword v16, v6, s[36:39], 0 offen
    L_{L}_end:
    s_mov_b64 exec, s[30:31]
    """)
    if stamp is not None:
        a("s_mov_b32 s70, 0\ns_mov_b32 s71, 0\ns_mov_b32 s72, 0\ns_mov_b32 s73, 0\ns_mov_b32 s74, 0")
        stamp_end2(a, stamp, 8)
    a(f"""
    L_{L}_done:
    s_endpgm
    L_{L}_pf:
    s_cmp_ge_u32 s2, 256
    s_cbranch_scc1 L_{L}_done
    s_load_dwordx4 s[4:7], s[0:1], 0       ; x, k
    s_load_dwordx2 s[8:9], s[0:1], 16      ; v
    s_getpc_b64 s[28:29]
    L_{L}_pc:
    s_add_u32 s28, s28, L_code_begin-L_{L}_pc
    s_addc_u32 s29, s29, 0
    v_lshrrev_b32 v2, 6, v0
    v_and_b32 v1, 63, v0
    v_readfirstlane_b32 s20, v2
    s_and_b32 s21, s2, 7                   ; xcd
    s_sub_u32 s22, s2, 128
    s_lshr_b32 s22, s22, 3
    s_lshl_b32 s22, s22, 3
    s_add_u32 s22, s22, s20                ; gid 0..127
    v_lshrrev_b32 v3, 4, v1
    v_and_b32 v4, 15, v1
    v_lshlrev_b32 v4, 7, v4
    v_lshlrev_b32 v5, 7, v1
    s_waitcnt lgkmcnt(0)
    """)
    srd(a, 12, 4, 2048*1024*2)
    a(f"""
    s_cmp_ge_u32 s22, 64
    s_cbranch_scc1 L_{L}_pf_kv
    s_lshr_b32 s23, s22, 1
    s_lshl_b32 s23, s23, 3
    s_add_u32 s23, s23, s21
    s_lshl_b32 s23, s23, 3
    s_and_b32 s24, s22, 1
    s_lshl_b32 s24, s24, 2
    s_add_u32 s23, s23, s24
    s_lshl_b32 s23, s23, 11
    v_lshl_add_u32 v6, v3, 11, v4
    buffer_load_dword v8, v6, s[12:15], s23 offen
    s_endpgm
    L_{L}_pf_kv:
    s_cmp_ge_u32 s22, 96
    s_cbranch_scc1 L_{L}_pf_code
    s_sub_u32 s23, s22, 64
    s_cmp_ge_u32 s23, 16
    s_cselect_b32 s12, s8, s6
    s_cselect_b32 s13, s9, s7
    s_mov_b32 s14, {4*2048*128*2}
    s_and_b32 s23, s23, 15
    s_lshl_b32 s23, s23, 13
    s_and_b32 s24, s21, 3
    s_lshl_b32 s24, s24, 19
    s_add_u32 s23, s23, s24
    s_add_u32 s23, s23, {1536*256}
    buffer_load_dword v8, v5, s[12:15], s23 offen
    s_endpgm
    L_{L}_pf_code:
    s_cmp_ge_u32 s22, 112
    s_cbranch_scc1 L_{L}_done
    s_sub_u32 s23, s22, 96
    s_lshl_b32 s23, s23, 13
    v_add_u32 v6, s23, v5
    v_min_u32 v6, L_code_end-L_code_begin, v6
    global_load_dword v8, v6, s[28:29]
    s_endpgm
    L_code_begin:
    s_endpgm
    """)
    return (name, (256,1,1), (512,1,1), 2048), a.text(), kernel_desc(name, 80, sgpr=102)
```

```python
import sys, math
from asmlib import *
from gen_small import *
from gen_gemm import *
from gen_attn import *
from gen_g256 import *
from gen_red import *
from gen_k01 import *
QS = 128**-0.5 * math.log2(math.e)
def build(kernels, path):
    launches = [k[0] for k in kernels]
    seen = set(); bodies = []; descs = []
    for k in kernels:
        if k[0][0] in seen: continue
        seen.add(k[0][0]); bodies.append(k[1]); descs.append(k[2])
    open(path, "w").write(assemble_file(launches, bodies, descs))
def pipeline(st=False, **kw):
    S = (lambda i: i) if st else (lambda i: None)
    wt = kw.get("wt", " sc1")
    G = kw.get("G", dict(NSLOT=6, NBUF=6, T=4, touch=False, m16=kw.get("m16", True)))
    pp = kw.get("parts", True)
    xc = kw.get("xchg", True)
    if kw.get("k01", False): head = [gen_k01("k01_kernel", QS, stamp=S(0))]
    else: head = [gen_k0b(stamp=S(0)) if pp else gen_k0(stamp=S(0)), gen_ln("ln1_kernel", 'x', WS_HF, 0, 1, QS, stamp=S(1), pf_wq=True, xf=kw.get("xf", False), stflag=kw.get("l1wt", " sc1"), parts=pp, clear_fl3=kw.get("fuse_o", False))]
    fo = kw.get("fuse_o", False)
    return head + [gen_attn("attn_kernel", stamp=S(2), dbg=kw.get("adbg", ""), stflag=kw.get("awt", " sc1"), side=pp, m16=kw.get("am16", True), pfw=kw.get("pfw", True), fuse_oproj=(dict(stamp=S(3), stflag=wt, **G) if fo else None))] + ([] if fo else [
            gen_g256("oproj_kernel", "oproj", stamp=S(3), stflag=wt, **G)]) + [gen_ln2p("ln2_kernel", stamp=S(4), stflag=kw.get("lwt", " sc1"), xf=kw.get("xf", False), parts=pp, touch_w2=kw.get("tw2", False), fin_gb=xc),
            gen_g256("ffn1_kernel", "ffn1", stamp=S(5), stflag=wt, **G), gen_g256("ffn2_kernel", "ffn2", stamp=S(6), stflag=wt, xchg=xc, dbg=kw.get("fdbg", ""), **kw.get("G2", dict(NSLOT=7, NBUF=6, T=5, touch=False, m16=True) if xc else G))] + ([] if xc else [gen_redk("red_kernel", stamp=S(7), parts=pp)])
def variants(d):
    import hk
    for nm, kw in d.items():
        build(pipeline(True, **kw), f"b_{nm}.s"); hk.build(f"b_{nm}.s")
if __name__ == "__main__":
    import hk
    build(pipeline(False), "full.s"); hk.build("full.s")
    build(pipeline(True), "full_st.s"); hk.build("full_st.s")
```
